```python
import torch

def _softmax(x, axis=-1):
    return torch.softmax(x, dim=axis)
def _gelu(x):
    return torch.nn.functional.gelu(x, approximate="tanh")
def _silu(x):
    return torch.nn.functional.silu(x)
def _sigmoid(x):
    return torch.sigmoid(x)
def _layernorm(x, axis=-1, eps=1e-5):
    m = x.mean(dim=axis, keepdim=True)
    v = x.var(dim=axis, keepdim=True, unbiased=False)
    return (x - m) / torch.sqrt(v + eps)
def _scatter_add(tgt, idx, src, axis=0):
    return tgt.clone().index_add_(axis, idx, src)
def _segment_sum(src, seg, n):
    out = torch.zeros((n,) + src.shape[1:], dtype=src.dtype)
    return out.index_add_(0, seg, src)
def _pad(x, pw):
    flat = tuple(v for pair in reversed(pw) for v in pair)
    return torch.nn.functional.pad(x, flat)

kernel_name = 'sequential_preLN__ssm_conv_s4__swiglu_ffn__prompt'

def setup_inputs():

    _w = (lambda a: (lambda t: t.to(torch.bfloat16) if t.is_floating_point() else t)(torch.as_tensor(a)))
    def _A_setup():
        B, L, D, N = 1, 2048, 1024, 128
        A_re = -(lambda _x: torch.exp(torch.as_tensor(_x)))((lambda *s: torch.randn(*s, dtype=torch.bfloat16) * 6.4)(D, N))
        A_im = torch.pi * (lambda *s: torch.randn(*s, dtype=torch.bfloat16) * 0.05)(D, N)
        B_re = (lambda *s: torch.randn(*s, dtype=torch.bfloat16) * 0.05)(D, N)
        B_im = (lambda *s: torch.randn(*s, dtype=torch.bfloat16) * 0.05)(D, N)
        C_re = (lambda *s: torch.randn(*s, dtype=torch.bfloat16) * 0.05)(D, N)
        C_im = (lambda *s: torch.randn(*s, dtype=torch.bfloat16) * 0.05)(D, N)
        log_dt = (lambda *s: torch.randn(*s, dtype=torch.bfloat16) * 0.05)(D) * 0.5 - 4.0
        Dskip = (lambda *s: torch.randn(*s, dtype=torch.bfloat16) * 0.05)(D)
        return {
            "u": _w((lambda *s: torch.randn(*s, dtype=torch.bfloat16) * 0.05)(B, L, D)),
            "A_re": _w(A_re),
            "A_im": _w(A_im),
            "B_re": _w(B_re),
            "B_im": _w(B_im),
            "C_re": _w(C_re),
            "C_im": _w(C_im),
            "log_dt": _w(log_dt),
            "Dskip": _w(Dskip),
        }
    _A_in = _A_setup()

    def _B_setup():
        B, S, D, F = 1, 2048, 1024, 3584
        return {
            "x": _w((lambda *s: torch.randn(*s, dtype=torch.bfloat16) * 0.05)(B, S, D)),
            "w_gate": _w((lambda *s: torch.randn(*s, dtype=torch.bfloat16) * 0.05)(D, F)),
            "w_up": _w((lambda *s: torch.randn(*s, dtype=torch.bfloat16) * 0.05)(D, F)),
            "w_down": _w((lambda *s: torch.randn(*s, dtype=torch.bfloat16) * 0.05)(F, D)),
        }
    _B_in = _B_setup()

    return {
        "A_u": _A_in["u"],
        "A_A_re": _A_in["A_re"],
        "A_A_im": _A_in["A_im"],
        "A_B_re": _A_in["B_re"],
        "A_B_im": _A_in["B_im"],
        "A_C_re": _A_in["C_re"],
        "A_C_im": _A_in["C_im"],
        "A_log_dt": _A_in["log_dt"],
        "A_Dskip": _A_in["Dskip"],
        "B_x": _B_in["x"],
        "B_w_gate": _B_in["w_gate"],
        "B_w_up": _B_in["w_up"],
        "B_w_down": _B_in["w_down"],
    }

def reference(A_u, A_A_re, A_A_im, A_B_re, A_B_im, A_C_re, A_C_im, A_log_dt, A_Dskip, B_x, B_w_gate, B_w_up, B_w_down):
    def _A_ref(u, A_re, A_im, B_re, B_im, C_re, C_im, log_dt, Dskip):
        Bsz, L, D = u.shape
        dt = torch.exp(log_dt)[:, None]
        A = A_re + 1j * A_im
        Bc = B_re + 1j * B_im
        Cc = C_re + 1j * C_im
        logdA = dt * A
        dB = dt * Bc
        l = (lambda x, dt: x.to(dt))(torch.arange(L), A_re.dtype)
        P = torch.exp(logdA[:, :, None] * l[None, None, :])
        K = torch.einsum("dn,dnl,dn->dl", Cc, P, dB).real
        L2 = 2 * L
        Kp = _pad(K, ((0, 0), (0, L)))
        up = (lambda x, *d: x.permute(*d))(u, 0, 2, 1)
        up = _pad(up, ((0, 0), (0, 0), (0, L)))
        Kf = (lambda x, axes=(-2,-1): torch.fft.rfft2(x.float(), dim=axes))(Kp[:, None, :], axes=(-2, -1))
        Uf = (lambda x, axes=(-2,-1): torch.fft.rfft2(x.float(), dim=axes))(up[:, :, None, :], axes=(-2, -1))
        Yf = Uf * Kf[None, :, :, :]
        y = (lambda x, s, axes=(-2,-1): torch.fft.irfft2(x, s=s, dim=axes).to(torch.bfloat16))(Yf, (1, L2), axes=(-2, -1))[:, :, 0, :L]
        y = (lambda x, *d: x.permute(*d))(y, 0, 2, 1) + u * Dskip[None, None, :]
        return y

    def _B_ref(x, w_gate, w_up, w_down):
        g = _silu(x @ w_gate)
        u = x @ w_up
        return (g * u) @ w_down

    x = A_u
    h = x + _A_ref(_layernorm(x, axis=-1), A_A_re, A_A_im, A_B_re, A_B_im, A_C_re, A_C_im, A_log_dt, A_Dskip)
    h2 = h + _B_ref(_layernorm(h, axis=-1), B_w_gate, B_w_up, B_w_down)
    return h2
```

```python
class Asm:
    def __init__(self):
        self.lines = []
    def __call__(self, s=""):
        for l in s.split("\n"):
            self.lines.append(l)
    def text(self):
        return "\n".join(self.lines) + "\n"

def vr(a, n=1):
    return f"v{a}" if n == 1 else f"v[{a}:{a+n-1}]"
def ar(a, n=1):
    return f"a{a}" if n == 1 else f"a[{a}:{a+n-1}]"
def sr(a, n=1):
    return f"s{a}" if n == 1 else f"s[{a}:{a+n-1}]"

def kernel_head(name):
    return f""".text
.globl {name}
.p2align 8
.type {name},@function
{name}:"""

def kernel_desc(name, vgpr, sgpr=96, accum=None, wgy=False):
    if accum is None:
        accum = (vgpr + 3) // 4 * 4
    y = "  .amdhsa_system_sgpr_workgroup_id_y 1\n" if wgy else ""
    return f""".section .rodata,"a"
.p2align 6
.amdhsa_kernel {name}
  .amdhsa_next_free_vgpr {vgpr}
  .amdhsa_next_free_sgpr {sgpr}
  .amdhsa_accum_offset {accum}
  .amdhsa_group_segment_fixed_size 0
  .amdhsa_kernarg_size 128
  .amdhsa_user_sgpr_count 2
  .amdhsa_user_sgpr_kernarg_segment_ptr 1
  .amdhsa_system_sgpr_workgroup_id_x 1
{y}  .amdhsa_float_denorm_mode_32 3
  .amdhsa_float_denorm_mode_16_64 3
.end_amdhsa_kernel"""
```

```python
from asmgen import *
from sched import *
from layout import *
from g1 import diag_store, assemble_file

def wave_allsum(a, regs, tmp):
    for ctl in ["quad_perm:[1,0,3,2]", "quad_perm:[2,3,0,1]", "row_half_mirror", "row_mirror"]:
        a("  s_nop 1" if len(regs) == 1 else "  s_nop 0" if len(regs) == 2 else "")
        for r in regs:
            a(f"  v_add_f32_dpp v{r}, v{r}, v{r} {ctl} row_mask:0xf bank_mask:0xf")
    for sw in ["v_permlane16_swap_b32", "v_permlane32_swap_b32"]:
        for r, t in zip(regs, tmp): a(f"  v_mov_b32 v{t}, v{r}")
        a("  s_nop 1")
        for r, t in zip(regs, tmp): a(f"  {sw} v{t}, v{r}")
        for r, t in zip(regs, tmp): a(f"  v_add_f32 v{r}, v{r}, v{t}")

def ln_finish(a, mean, var, out_r, out_mr, t0):
    a(f"""  v_cvt_pk_bf16_f32 v{t0}, v{var}, v{mean}
  v_lshlrev_b32 v{var}, 16, v{t0}
  v_and_b32 v{mean}, 0xffff0000, v{t0}
  v_add_f32 v{var}, 0x3727c5ac, v{var}
  v_cvt_pk_bf16_f32 v{var}, v{var}, v{var}
  v_lshlrev_b32 v{var}, 16, v{var}
  v_sqrt_f32 v{var}, v{var}
  s_nop 0
  v_cvt_pk_bf16_f32 v{var}, v{var}, v{var}
  v_lshlrev_b32 v{var}, 16, v{var}
  v_rcp_f32 v{out_r}, v{var}
  s_nop 0
  v_mul_f32 v{out_mr}, -v{mean}, v{out_r}""")

def gen_k0(name="k0_kernel", diag=False, dbg_idx=0):
    a = Asm()
    a(kernel_head(name))
    a(f"""  s_cmp_ge_u32 s2, 256
  s_cbranch_scc1 L_{name}_end""")
    if diag: a("  s_memrealtime s[40:41]\n  s_memtime s[30:31]")
    a(f"""  s_load_dwordx2 s[4:5], s[0:1], 0
  s_load_dwordx2 s[24:25], s[0:1], 120
  v_lshrrev_b32 v1, 6, v0
  v_and_b32 v2, 63, v0
  s_lshr_b32 s3, s2, 2
  v_readfirstlane_b32 s28, v1
  s_lshl_b32 s3, s3, 5
  s_and_b32 s12, s2, 3
  s_add_u32 s3, s3, s12
  v_lshlrev_b32 v3, 4, v2
  s_lshl_b32 s12, s28, 3
  s_add_u32 s3, s3, s12
  s_lshl_b32 s3, s3, 11             ; row(e=2w) * 2048
  s_add_u32 s12, s3, {4*2048}
  s_mov_b32 s6, {4<<20}
  s_mov_b32 s7, 0x20000
  s_waitcnt lgkmcnt(0)
  buffer_load_dwordx4 v[8:11], v3, s[4:7], s3 offen
  buffer_load_dwordx4 v[12:15], v3, s[4:7], s3 offen offset:1024
  buffer_load_dwordx4 v[16:19], v3, s[4:7], s12 offen
  buffer_load_dwordx4 v[20:23], v3, s[4:7], s12 offen offset:1024
  s_add_u32 s8, s24, {ST1_OFF}
  s_addc_u32 s9, s25, 0
  s_mov_b32 s10, 16384
  s_mov_b32 s11, 0x20000
  s_lshl_b32 s13, s2, 6
  s_lshl_b32 s12, s28, 4
  s_add_u32 s13, s13, s12""")
    for row in range(2):
        a(f"  s_waitcnt vmcnt({2-2*row})")
        for i in range(8):
            s = 8+8*row+i; d = 32+16*row+2*i
            a(f"  v_lshlrev_b32 v{d}, 16, v{s}\n  v_and_b32 v{d+1}, 0xffff0000, v{s}")
        b = 32+16*row
        a(f"  v_pk_add_f32 v[4:5], {vr(b,2)}, {vr(b+2,2)}")
        for i in range(2, 8): a(f"  v_pk_add_f32 v[4:5], v[4:5], {vr(b+2*i,2)}")
        a(f"  v_add_f32 v{24+row}, v4, v5")
    if diag: a("  s_memtime s[32:33]")
    wave_allsum(a, [24, 25], [26, 27])
    a("  v_mul_f32 v24, 0x3a800000, v24\n  v_mul_f32 v25, 0x3a800000, v25")
    for row in range(2):
        b = 32+16*row
        for i in range(8):
            a(f"  v_pk_add_f32 {vr(b+2*i,2)}, {vr(b+2*i,2)}, v[24:25] op_sel:[0,{row}] op_sel_hi:[1,{row}] neg_lo:[0,1] neg_hi:[0,1]")
        a(f"  v_pk_mul_f32 v[4:5], {vr(b,2)}, {vr(b,2)}")
        for i in range(1, 8): a(f"  v_pk_fma_f32 v[4:5], {vr(b+2*i,2)}, {vr(b+2*i,2)}, v[4:5]")
        a(f"  v_add_f32 v{28+row}, v4, v5")
    wave_allsum(a, [28, 29], [26, 27])
    a("  v_mul_f32 v28, 0x3a800000, v28\n  v_mul_f32 v29, 0x3a800000, v29")
    ln_finish(a, 24, 28, 4, 6, 26)
    ln_finish(a, 25, 29, 5, 7, 26)
    a(f"""  v_mov_b32 v3, 0
  v_cmp_eq_u32 vcc, 0, v2
  s_and_saveexec_b64 s[14:15], vcc
  buffer_store_dwordx4 v[4:7], v3, s[8:11], s13 offen""")
    if diag:
        a("  s_mov_b64 exec, s[14:15]\n  s_memtime s[34:35]\n  s_memtime s[36:37]\n  s_waitcnt vmcnt(0)\n  s_memtime s[38:39]")
        diag_store(a, name, dbg_idx, [30, 32, 34, 36, 38], 24)
    a(f"L_{name}_end:\n  s_endpgm")
    return a.text(), kernel_desc(name, 64), f"; @launch kernel={name} grid=(256,1,1) block=(256,1,1) lds=0"

USZ = 4864
UTOT = 4*USZ
TROW = 528
REG = 64*TROW
YOFF = 4224

def gen_conv(name="conv_kernel", diag=False, dbg_idx=0, stflags=""):
    a = Asm()
    a(kernel_head(name))
    a(f"""  s_cmp_ge_u32 s2, 256
  s_cbranch_scc1 L_{name}_end""")
    if diag: a("  s_memrealtime s[40:41]\n  s_memtime s[30:31]")
    XP = 64
    ST = 80
    XF = 96
    ACC = [128, 144]
    a(f"""  s_load_dwordx16 s[52:67], s[0:1], 0
  s_load_dwordx2 s[68:69], s[0:1], 64
  s_load_dwordx2 s[24:25], s[0:1], 120
  v_lshrrev_b32 v1, 6, v0
  v_and_b32 v2, 63, v0
  s_and_b32 s3, s2, 7
  v_readfirstlane_b32 s28, v1       ; wave
  s_lshl_b32 s3, s3, 5
  s_lshr_b32 s26, s2, 3
  s_add_u32 s26, s26, s3            ; cg
  s_lshl_b32 s27, s26, 2
  s_add_u32 s27, s27, s28           ; d
  s_lshl_b32 s29, s27, 8
  v_lshl_add_u32 v3, v2, 2, s29
  s_lshr_b32 s29, s27, 1
  s_lshl_b32 s29, s29, 2
  s_waitcnt lgkmcnt(0)
  s_load_dword s16, s[66:67], s29
  s_load_dword s17, s[68:69], s29
  global_load_dword v8, v3, s[54:55]
  global_load_dword v9, v3, s[56:57]
  global_load_dword v10, v3, s[58:59]
  global_load_dword v11, v3, s[60:61]
  global_load_dword v12, v3, s[62:63]
  global_load_dword v13, v3, s[64:65]
  s_add_u32 s8, s24, {ST1_OFF}
  s_addc_u32 s9, s25, 0
  s_mov_b32 s10, 16384
  s_mov_b32 s11, 0x20000
  v_lshlrev_b32 v4, 6, v0""")
    for i in range(4):
        a(f"  buffer_load_dwordx4 {vr(ST+4*i,4)}, v4, s[8:11], 0 offen offset:{16*i}")
    a(f"""  s_mov_b32 s4, s52
  s_mov_b32 s5, s53
  s_mov_b32 s6, {4<<20}
  s_mov_b32 s7, 0x20000
  v_lshrrev_b32 v4, 2, v0           ; tb
  v_and_b32 v5, 3, v0               ; rho
  v_lshl_add_u32 v6, v4, 5, v5
  v_lshlrev_b32 v6, 11, v6
  s_lshl_b32 s18, s26, 3""")
    for e in range(8):
        a(f"  buffer_load_dwordx2 {vr(XP+2*e,2)}, v6, s[4:7], s18 offen")
        if e < 7: a(f"  s_add_u32 s18, s18, 8192")
    a(f"""  s_add_u32 s12, s24, {HB_OFF}
  s_addc_u32 s13, s25, 0
  s_mov_b32 s14, {4<<20}
  s_mov_b32 s15, 0x20000
  s_mul_i32 s19, s28, {REG}
  s_add_u32 s19, s19, {UTOT}
  v_lshl_add_u32 v7, v2, 3, s19
  v_mov_b32 v20, 0
  v_mov_b32 v21, 0
  v_mov_b32 v22, 0
  v_mov_b32 v23, 0
  v_bfe_u32 v14, v0, 3, 4
  v_mul_u32_u24 v14, 1216, v14
  v_and_b32 v15, 7, v0
  v_lshl_add_u32 v14, v15, 4, v14
  ds_write_b128 v14, v[20:23]
  v_mul_u32_u24 v30, 1216, v5
  v_lshl_add_u32 v30, v4, 4, v30
  v_mul_u32_u24 v31, 36, v4
  v_add_lshl_u32 v31, v31, v5, 2
  v_add_u32 v31, {UTOT+YOFF}, v31
  s_waitcnt lgkmcnt(0)
  s_and_b32 s29, s28, 1
  s_lshl_b32 s29, s29, 4
  s_lshr_b32 s16, s16, s29
  s_lshl_b32 s16, s16, 16           ; log_dt
  s_lshr_b32 s17, s17, s29
  s_lshl_b32 s17, s17, 16           ; Dskip
  v_mov_b32 v14, 0x3fb8aa3b
  v_mul_f32 v14, s16, v14
  v_exp_f32 v14, v14
  s_nop 0
  v_cvt_pk_bf16_f32 v14, v14, v14
  v_lshlrev_b32 v14, 16, v14        ; dt
  v_mul_f32 v15, 0x3fb8aa3b, v14    ; dt*log2e
  v_mul_f32 v16, 0.15915494, v14    ; dt/2pi
  s_waitcnt vmcnt(12)""")
    if diag: a("  s_memtime s[32:33]")
    def unp(dst, src, n):
        a(f"  v_lshlrev_b32 v{dst}, 16, v{src}" if n == 0 else f"  v_and_b32 v{dst}, 0xffff0000, v{src}")
    for n in range(2):
        unp(32+n, 8, n); unp(34+n, 9, n); unp(36+2*n, 10, n); unp(37+2*n, 11, n); unp(40+2*n, 12, n); unp(41+2*n, 13, n)
    a("""  v_mul_f32 v32, v32, v15
  v_mul_f32 v33, v33, v15
  v_mul_f32 v34, v34, v16
  v_mul_f32 v35, v35, v16
  v_pk_mul_f32 v[36:37], v[36:37], v[14:15] op_sel:[0,0] op_sel_hi:[1,0]
  v_pk_mul_f32 v[38:39], v[38:39], v[14:15] op_sel:[0,0] op_sel_hi:[1,0]""")
    T = 16
    def cmul(dst, x, w):
        for n in range(2):
            a(f"  v_pk_mul_f32 {vr(T+2*n,2)}, {vr(x+2*n,2)}, {vr(w+2*n,2)} op_sel:[0,0] op_sel_hi:[1,0]")
        for n in range(2):
            a(f"  v_pk_fma_f32 {vr(dst+2*n,2)}, {vr(x+2*n,2)}, {vr(w+2*n,2)}, {vr(T+2*n,2)} op_sel:[1,1,0] op_sel_hi:[0,1,1] neg_lo:[1,0,0]")
    def cexp(dst, l):
        lit = {1: "1.0", 8: "0x41000000", 256: "0x43800000"}[l]
        for n in range(2):
            a(f"  v_mul_f32 v{T+n}, {lit}, v{32+n}\n  v_mul_f32 v{T+2+n}, {lit}, v{34+n}")
        for n in range(2):
            a(f"  v_exp_f32 v{T+n}, v{T+n}\n  v_fract_f32 v{T+2+n}, v{T+2+n}")
        for n in range(2):
            a(f"  v_cos_f32 v{dst+2*n}, v{T+2+n}\n  v_sin_f32 v{dst+2*n+1}, v{T+2+n}")
        a("  s_nop 0")
        for n in range(2):
            a(f"  v_pk_mul_f32 {vr(dst+2*n,2)}, {vr(dst+2*n,2)}, {vr(T,2)} op_sel:[0,{n}] op_sel_hi:[1,{n}]")
    tog = [0]
    def emitrow(x, rows, neg):
        t = 20 + 2*tog[0]; tog[0] ^= 1
        s = "-" if neg else ""
        a(f"  v_cvt_pk_bf16_f32 v{t}, v{x}, {s}v{x+1}\n  v_cvt_pk_bf16_f32 v{t+1}, v{x+2}, {s}v{x+3}")
        for r in rows: a(f"  ds_write_b64 v7, {vr(t,2)} offset:{r*TROW}")
    C, E1, E8, E256, Z, W, E2 = 36, 44, 48, 52, 56, 60, 40
    cmul(C, 36, 40)
    cexp(E1, 1); cexp(E8, 8); cexp(E256, 256)
    rowmap = {}
    for h, lst in enumerate([[0,1,2,3,256,258,260,None,512,516,768,772,1024,1032,1280,1288],
                             [4,5,6,7,260,262,264,None,516,520,772,776,1536,1544,1792,1800]]):
        for k, v in enumerate(lst):
            if v is not None: rowmap.setdefault(v, []).append(8*(k//4) + 4*h + (k % 4))
    emitrow(C, rowmap[0], True)
    cmul(W, C, E1); emitrow(W, rowmap[1], True)
    for l in range(2, 8):
        cmul(W, W, E1); emitrow(W, rowmap[l], True)
    cmul(E2, E1, E1)
    cmul(E1, E2, E2)
    E4 = E1
    cmul(Z, C, E256); emitrow(Z, rowmap[256], True)
    cmul(W, Z, E2); emitrow(W, rowmap[258], True)
    for l in (260, 262, 264):
        cmul(W, W, E2); emitrow(W, rowmap[l], True)
    for b in (512, 768):
        cmul(Z, Z, E256); emitrow(Z, rowmap[b], True)
        cmul(W, Z, E4); emitrow(W, rowmap[b+4], True)
        cmul(W, W, E4); emitrow(W, rowmap[b+8], True)
    for b in (1024, 1280, 1536, 1792):
        cmul(Z, Z, E256); emitrow(Z, rowmap[b], True)
        cmul(W, Z, E8); emitrow(W, rowmap[b+8], True)
    a(f"""  v_mov_b32 v20, 0x3f80
  v_mov_b32 v21, 0x3f80
  ds_write_b64 v7, v[20:21] offset:{32*TROW}
  v_mov_b32 v{W}, v{E8}
  v_mov_b32 v{W+1}, v{E8+1}
  v_mov_b32 v{W+2}, v{E8+2}
  v_mov_b32 v{W+3}, v{E8+3}
  v_add_u32 v24, {33*TROW}, v7
  s_mov_b32 s20, 0
L_{name}_ytab:
  v_cvt_pk_bf16_f32 v22, v{W}, v{W+1}
  v_cvt_pk_bf16_f32 v23, v{W+2}, v{W+3}""")
    cmul(W, W, E8)
    a(f"""  ds_write_b64 v24, v[22:23]
  v_add_u32 v24, {TROW}, v24
  s_add_u32 s20, s20, 1
  s_cmp_lt_u32 s20, 31
  s_cbranch_scc1 L_{name}_ytab""")
    a(f"""  v_and_b32 v24, 31, v2
  v_mul_u32_u24 v24, {TROW}, v24
  v_lshrrev_b32 v25, 5, v2          ; h / kg
  v_lshl_add_u32 v24, v25, 4, v24
  v_add_u32 v24, s19, v24""")
    S = Stream()
    for s in range(16):
        S.add(f"  ds_read_b128 {ar(8*s,4)}, v24 offset:{32*s}", 'lg', ('a', s))
        S.add(f"  ds_read_b128 {ar(8*s+4,4)}, v24 offset:{32*TROW+32*s}", 'lg', ('b', s))
        if s >= 6:
            q = s-6
            S.wait(lg=('b', q))
            S.add(f"  v_mfma_f32_32x32x16_bf16 {vr(ACC[0],16)}, {ar(8*q,4)}, {ar(8*q+4,4)}, {vr(ACC[0],16) if q else 0}")
    for q in range(10, 16):
        S.wait(lg=('b', q))
        S.add(f"  v_mfma_f32_32x32x16_bf16 {vr(ACC[0],16)}, {ar(8*q,4)}, {ar(8*q+4,4)}, {vr(ACC[0],16)}")
    emit(a, S.resolve())
    if diag: a("  s_memtime s[34:35]")
    D = ACC[0]
    a(f"""  v_mov_b32 v20, 0
  v_mov_b32 v21, 0
  v_mov_b32 v22, 0
  v_mov_b32 v23, 0
  v_lshl_add_u32 v26, v2, 4, s19""")
    a(f"  v_min_u32 v27, 15, v2\n  v_lshl_add_u32 v27, v27, 2, s19\n  ds_write_b32 v27, v20")
    for i in range(10): a(f"  ds_write_b128 v26, v[20:23] offset:{YOFF+1024*i}")
    a(f"""  v_and_b32 v26, 31, v2
  v_lshlrev_b32 v26, 4, v26
  v_add_u32 v26, s19, v26
  v_lshl_add_u32 v27, v25, 3, v26   ; + 8h
  v_lshl_add_u32 v26, v25, 10, v26  ; + 1024 h
  v_cmp_eq_u32 vcc, 0, v2
  v_mov_b32 v28, s17
  v_and_b32 v29, 1, v2
  v_cndmask_b32 v28, 0, v28, vcc
  v_cmp_eq_u32 s[20:21], 1, v25
  v_cmp_eq_u32 s[22:23], 1, v29
  v_add_f32 v{D}, v{D}, v28
  v_cvt_pk_bf16_f32 v8, v{D}, v{D+1}
  v_cvt_pk_bf16_f32 v9, v{D+2}, v{D+3}
  ds_write_b64 v27, v[8:9] offset:64
  v_cvt_pk_bf16_f32 v10, v{D+4}, v{D+4}
  v_cvt_pk_bf16_f32 v11, v{D+5}, v{D+6}
  ds_write_b64 v27, v[10:11] offset:{64+512}""")
    for k in range(2):
        A, B = D+8+2*k, D+9+2*k
        t = 8+2*k
        a(f"""  v_cndmask_b32 v12, v{A}, v{B}, s[20:21]
  v_cvt_pk_bf16_f32 v{t}, v{A}, v{A}
  v_cvt_pk_bf16_f32 v{t+1}, v12, v{B}
  ds_write_b64 v27, {vr(t,2)} offset:{64+1024+512*k}""")
    for k in range(2):
        A, B = D+12+2*k, D+13+2*k
        t = 16+4*k
        a(f"""  v_cndmask_b32 v12, v{A}, v{B}, s[22:23]
  v_cvt_pk_bf16_f32 v{t}, v{A}, v{A}
  v_cvt_pk_bf16_f32 v{t+1}, v{A}, v{A}
  v_cvt_pk_bf16_f32 v{t+2}, v12, v{B}
  v_cvt_pk_bf16_f32 v{t+3}, v{B}, v{B}
  ds_write_b128 v26, {vr(t,4)} offset:{64+2048+512*k}""")
    a("  s_waitcnt vmcnt(0)")
    for e in range(8):
        for ch in range(4):
            unp(XF+8*ch+e, XP+2*e+(ch >> 1), ch & 1)
    for ch in range(4):
        t = 8 + 4*(ch % 2)
        for p in range(4):
            a(f"  v_pk_fma_f32 v[16:17], {vr(XF+8*ch+2*p,2)}, {vr(ST+4*p,2)}, {vr(ST+4*p+2,2)}")
            a(f"  v_cvt_pk_bf16_f32 v{t+p}, v16, v17")
        a(f"  ds_write_b128 v30, {vr(t,4)} offset:{ch*USZ+128}")
    a(f"""  v_bfe_u32 v8, v2, 4, 1            ; gamma&1
  v_and_b32 v9, 3, v2               ; c4 / rho
  v_lshlrev_b32 v10, 2, v9
  v_lshl_add_u32 v10, v8, 4, v10    ; q0
  v_lshrrev_b32 v11, 5, v2          ; kg / h
  v_lshlrev_b32 v12, 5, v11
  v_sub_u32 v10, v10, v12
  v_bfe_u32 v12, v2, 2, 2
  v_lshlrev_b32 v12, 2, v12
  v_sub_u32 v10, v10, v12
  v_add_u32 v10, 48, v10
  v_lshl_add_u32 v24, v10, 1, s19
  v_bfe_u32 v12, v2, 2, 3           ; p
  v_add_u32 v13, v12, v11
  v_mul_u32_u24 v14, 1216, v9
  v_lshl_add_u32 v13, v13, 4, v14
  s_mul_i32 s20, s28, {USZ}
  v_add_u32 v25, s20, v13
  v_mul_u32_u24 v12, 36, v12
  v_lshl_add_u32 v13, v11, 2, v9    ; 4h + rho
  v_add_lshl_u32 v12, v12, v13, 2
  s_add_u32 s20, s19, {YOFF}
  v_add_u32 v26, s20, v12""")
    for rr in range(1, 4):
        a(f"""  v_cmp_le_u32 vcc, {8-rr}, v13
  v_add_u32 v14, 16, v26
  s_nop 0
  v_cndmask_b32 v{26+rr}, v26, v14, vcc""")
    a("  s_waitcnt lgkmcnt(0)\n  s_barrier")
    if diag: a("  s_memtime s[36:37]\n  s_waitcnt lgkmcnt(0)")
    S = Stream()
    def AF(c): return 4*c
    def BF(b): return 128 + 4*(b+3)
    def rd(i):
        ops = []
        for k in range(4):
            c = 4*i+k; b = 4*i-3+k
            ops.append((f"  ds_read_b128 {ar(BF(b),4)}, v25 offset:{(7+2*b)*16}", ('B', b)))
            ops.append((f"  ds_read_b64_tr_b16 {ar(AF(c),2)}, v24 offset:{128*c+32}", ('A0', c)))
            ops.append((f"  ds_read_b64_tr_b16 {ar(AF(c)+2,2)}, v24 offset:{128*c}", ('A', c)))
        return ops
    def adds(i):
        ops = []
        for j in range(16):
            ip, rr = divmod(j, 4)
            ad = 26+rr if (ip == 3 and rr > 0) else 26
            ops.append((f"  ds_add_f32 v{ad}, v{ACC[i%2]+j} offset:{1152*i+4*(8*ip+rr)}", None))
        return ops
    for t, tag in rd(0): S.add(t, 'lg', tag)
    for i in range(8):
        order = list(range(4, 4*i)) + list(range(0, min(4, 4*i))) + list(range(4*i, 4*i+4))
        fill = (rd(i+1) if i < 7 else [])
        nslots_before_add = len(fill)
        if i > 0: fill = fill + adds(i-1)
        n = len(order)
        per = -(-len(fill)//n)
        issued = 0
        for k, c in enumerate(order):
            b = 4*i-c
            S.wait(lg=[('A', c), ('B', b)])
            S.add(f"  v_mfma_f32_32x32x16_bf16 {vr(ACC[i%2],16)}, {ar(AF(c),4)}, {ar(BF(b),4)}, {vr(ACC[i%2],16) if k else 0}")
            issued += 1
            cnt = 0
            while fill and cnt < per:
                t, tag = fill[0]
                if tag is None and issued < 13: break
                fill.pop(0); S.add(t, 'lg', tag); cnt += 1; issued += 1
        assert not fill, (i, fill)
    S.add("  s_nop 11")
    for t, tag in adds(7): S.add(t, 'lg', tag)
    res = S.resolve()
    emit(a, res)
    a(f"""  v_add_u32 v8, {REG}, v31
  v_add_u32 v9, {2*REG}, v31
  v_add_u32 v10, {3*REG}, v31
  s_lshl_b32 s20, s28, 13
  v_lshl_add_u32 v11, v2, 4, s20
  s_and_b32 s20, s26, 1
  s_lshl_b32 s20, s20, 3
  v_add_u32 v11, s20, v11
  s_lshr_b32 s20, s26, 1
  s_lshl_b32 s20, s20, 15
  s_add_u32 s21, s20, 4096
  s_waitcnt lgkmcnt(0)
  s_barrier""")
    if diag: a("  s_memtime s[38:39]\n  s_waitcnt lgkmcnt(0)")
    YR = 32
    for p in range(4):
        for ch in range(4):
            ad = [31, 8, 9, 10][ch]
            a(f"  ds_read2_b32 {vr(YR+8*ch+2*p,2)}, v{ad} offset0:{8*p} offset1:{8*p+4}")
    for p in range(4):
        a(f"  s_waitcnt lgkmcnt({12-4*p})")
        for ch in range(4):
            a(f"  v_pk_add_f32 {vr(YR+8*ch+2*p,2)}, {vr(YR+8*ch+2*p,2)}, {vr(XF+8*ch+2*p,2)}")
        for k in range(2):
            e = 2*p+k; t = 12+2*(e % 4)
            a(f"""  v_cvt_pk_bf16_f32 v{t}, v{YR+e}, v{YR+8+e}
  v_cvt_pk_bf16_f32 v{t+1}, v{YR+16+e}, v{YR+24+e}
  buffer_store_dwordx2 {vr(t,2)}, v11, s[12:15], s{20+e//4} offen offset:{1024*(e%4)} {stflags}""")
    if diag:
        a("  s_waitcnt vmcnt(0)\n  s_memtime s[50:51]")
        diag_store(a, name, dbg_idx, [30, 32, 34, 36, 38, 50], 24)
    a(f"L_{name}_end:\n  s_endpgm")
    return a.text(), kernel_desc(name, 160+256, 96, 160), f"; @launch kernel={name} grid=(256,1,1) block=(256,1,1) lds={UTOT+4*REG}"

def gen_ln2(name="ln2_kernel", diag=False, dbg_idx=0):
    a = Asm()
    a(kernel_head(name))
    a(f"""  s_cmp_ge_u32 s2, 256
  s_cbranch_scc1 L_{name}_end""")
    if diag: a("  s_memrealtime s[40:41]\n  s_memtime s[30:31]")
    a(f"""  s_load_dwordx2 s[24:25], s[0:1], 120
  v_lshrrev_b32 v1, 3, v0
  v_and_b32 v2, 7, v0
  v_lshlrev_b32 v3, 15, v1
  v_lshl_add_u32 v3, v2, 4, v3
  s_lshl_b32 s3, s2, 7
  s_add_u32 s16, s3, {1<<20}
  s_add_u32 s17, s3, {2<<20}
  s_add_u32 s18, s3, {3<<20}
  s_waitcnt lgkmcnt(0)
  s_add_u32 s4, s24, {HB_OFF}
  s_addc_u32 s5, s25, 0
  s_mov_b32 s6, {4<<20}
  s_mov_b32 s7, 0x20000
  buffer_load_dwordx4 v[8:11], v3, s[4:7], s3 offen
  buffer_load_dwordx4 v[12:15], v3, s[4:7], s16 offen
  buffer_load_dwordx4 v[16:19], v3, s[4:7], s17 offen
  buffer_load_dwordx4 v[20:23], v3, s[4:7], s18 offen
  s_add_u32 s8, s24, {HN_OFF}
  s_addc_u32 s9, s25, 0
  s_mov_b32 s10, {4<<20}
  s_mov_b32 s11, 0x20000
  v_lshrrev_b32 v6, 6, v0
  v_lshlrev_b32 v6, 5, v6
  v_lshl_add_u32 v6, v2, 2, v6
  v_lshlrev_b32 v7, 2, v2
  s_waitcnt vmcnt(0)""")
    for i in range(16):
        a(f"  v_lshlrev_b32 v{32+2*i}, 16, v{8+i}\n  v_and_b32 v{33+2*i}, 0xffff0000, v{8+i}")
    def red(off):
        a(f"""  v_add_f32 v24, v4, v5
  s_nop 1
  v_add_f32_dpp v24, v24, v24 row_ror:8 row_mask:0xf bank_mask:0xf""")
        for sw in ["v_permlane16_swap_b32", "v_permlane32_swap_b32"]:
            a(f"  v_mov_b32 v26, v24\n  s_nop 1\n  {sw} v26, v24\n  v_add_f32 v24, v24, v26")
        a(f"""  ds_write_b32 v6, v24 offset:{off}
  s_waitcnt lgkmcnt(0)
  s_barrier
  ds_read2_b32 v[26:27], v7 offset0:{off//4} offset1:{off//4+8}
  ds_read2_b32 v[28:29], v7 offset0:{off//4+16} offset1:{off//4+24}
  s_waitcnt lgkmcnt(0)
  v_pk_add_f32 v[26:27], v[26:27], v[28:29]
  v_add_f32 v24, v26, v27
  v_mul_f32 v24, 0x3a800000, v24""")
    a("  v_pk_add_f32 v[4:5], v[32:33], v[34:35]")
    for i in range(2, 16): a(f"  v_pk_add_f32 v[4:5], v[4:5], {vr(32+2*i,2)}")
    red(0)
    a("  v_mov_b32 v30, v24")
    for i in range(16):
        a(f"  v_pk_add_f32 v[26:27], {vr(32+2*i,2)}, v[30:31] op_sel:[0,0] op_sel_hi:[1,0] neg_lo:[0,1] neg_hi:[0,1]")
        a("  v_pk_mul_f32 v[4:5], v[26:27], v[26:27]" if i == 0 else "  v_pk_fma_f32 v[4:5], v[26:27], v[26:27], v[4:5]")
    red(128)
    ln_finish(a, 30, 24, 4, 5, 26)
    for i in range(16):
        a(f"  v_pk_fma_f32 {vr(32+2*i,2)}, {vr(32+2*i,2)}, v[4:5], v[4:5] op_sel:[0,0,1] op_sel_hi:[1,0,1]")
        a(f"  v_cvt_pk_bf16_f32 v{8+i}, v{32+2*i}, v{33+2*i}")
        if i % 4 == 3:
            a(f"  buffer_store_dwordx4 {vr(8+i-3,4)}, v3, s[8:11], s{[3,16,17,18][i//4]} offen")
    if diag:
        a("  s_memtime s[32:33]\n  s_waitcnt vmcnt(0)\n  s_memtime s[34:35]")
        diag_store(a, name, dbg_idx, [30, 32, 34, 34, 34], 24)
    a(f"L_{name}_end:\n  s_endpgm")
    return a.text(), kernel_desc(name, 64), f"; @launch kernel={name} grid=(256,1,1) block=(256,1,1) lds=256"
```

```python
from asmgen import *
from sched import *
from layout import *

def diag_store(a, name, dbg_idx, stamps, wsreg, tidreg="v0"):
    a(f"""  s_memrealtime s[42:43]
  s_waitcnt lgkmcnt(0)
  s_add_u32 s44, s{wsreg}, {DBG_OFF + dbg_idx*(1<<20)}
  s_addc_u32 s45, s{wsreg+1}, 0
  s_mov_b32 s46, {1<<20}
  s_mov_b32 s47, 0x20000
  v_lshrrev_b32 v1, 6, {tidreg}
  v_lshlrev_b32 v1, 6, v1
  s_lshl_b32 s48, s2, 10
  v_mov_b32 v2, s40
  v_mov_b32 v3, s42
  buffer_store_dwordx2 v[2:3], v1, s[44:47], s48 offen""")
    for i, s in enumerate(stamps):
        a(f"  v_mov_b32 v2, s{s}\n  buffer_store_dword v2, v1, s[44:47], s48 offen offset:{8+4*i}")
    a("  s_waitcnt vmcnt(0)")

def gen_g1(name="g1_kernel", diag=False, AHEAD=3, xoff=HN_OFF, dbg_idx=0, nobar=False, nodma=False, nox=False,
           dpos=None, xpos=None, wfl='', stflags=''):
    a = Asm()
    NT = 7
    ROWB = NT*32
    MATB = 64*ROWB
    SLOT = 2*MATB
    NF = 2*NT
    RING = AHEAD+1
    assert (4*NF) % RING == 0
    ACC = 32
    def acc(j, m, n): return ACC + ((j*2+m)*4+n)*4
    AF = 0
    XR = 4*RING
    def xreg(st2, ks, n): return XR + ((st2*2+ks)*4+n)*4
    nagpr = XR + 64
    a(kernel_head(name))
    a(f"""  s_cmp_ge_u32 s2, 256
  s_cbranch_scc1 L_{name}_end""")
    if diag: a("  s_memrealtime s[40:41]\n  s_memtime s[30:31]")
    a(f"""  s_load_dwordx4 s[20:23], s[0:1], 80
  s_load_dwordx2 s[24:25], s[0:1], 120
  v_lshrrev_b32 v10, 6, v0
  v_and_b32 v11, 63, v0
  s_and_b32 s26, s2, 7
  s_lshr_b32 s27, s2, 3
  v_readfirstlane_b32 s28, v10
  s_and_b32 s3, s26, 1
  s_lshl_b32 s3, s3, 2
  s_and_b32 s29, s27, 3
  s_add_u32 s3, s3, s29             ; tt
  s_lshr_b32 s26, s26, 1
  s_lshl_b32 s26, s26, 3
  s_lshr_b32 s27, s27, 2
  s_add_u32 s26, s26, s27           ; ft
  s_lshl_b32 s3, s3, 8              ; t0
  s_lshl_b32 s29, s28, 6
  s_add_u32 s3, s3, s29             ; t0 + 64 w
  ; DMA per-lane offsets v1..v7""")
    a("  s_and_b32 s29, s28, 1\n  s_lshl_b32 s29, s29, 5          ; 32*hf")
    a("  s_movk_i32 s19, 4682\n  s_movk_i32 s18, 7168")
    for n in range(NT):
        a(f"""  v_add_u32 v12, {64*n}, v11
  v_mul_u32_u24 v13, s19, v12
  v_lshrrev_b32 v13, 16, v13        ; pos_local
  v_mul_u32_u24 v14, 14, v13
  v_sub_u32 v12, v12, v14           ; part
  v_and_b32 v14, 4, v13
  v_and_b32 v15, 8, v13
  v_and_b32 v13, 0x13, v13
  v_lshl_or_b32 v13, v14, 1, v13
  v_lshrrev_b32 v15, 1, v15
  v_or3_b32 v13, v13, v15, s29      ; row
  v_mul_u32_u24 v13, s18, v13
  v_lshl_add_u32 v{1+n}, v12, 4, v13""")
    a(f"""  ; X voffset v8, tr address v9, store voffset v10
  v_lshrrev_b32 v12, 4, v11         ; g
  v_and_b32 v13, 15, v11
  v_add_u32 v13, s3, v13            ; token
  v_lshlrev_b32 v14, 11, v12
  v_add_lshl_u32 v8, v14, v13, 4
  v_lshrrev_b32 v14, 1, v12
  v_lshlrev_b32 v14, 11, v14
  v_and_b32 v15, 1, v12
  v_lshl_add_u32 v14, v15, 4, v14
  v_add_lshl_u32 v10, v14, v13, 4
  v_lshrrev_b32 v14, 1, v12
  v_lshlrev_b32 v14, 4, v14
  v_lshl_add_u32 v14, v15, 2, v14
  v_bfe_u32 v15, v11, 2, 2
  v_add_u32 v14, v14, v15
  v_mul_u32_u24 v14, {ROWB}, v14
  v_and_b32 v15, 3, v11
  v_lshl_add_u32 v9, v15, 3, v14
  s_waitcnt lgkmcnt(0)
  s_cmp_ge_u32 s28, 2
  s_cselect_b32 s4, s22, s20
  s_cselect_b32 s5, s23, s21
  s_mul_i32 s27, s26, {ROWB}
  s_add_u32 s4, s4, s27
  s_addc_u32 s5, s5, 0
  s_sub_u32 s6, {1024*7168}, s27
  s_mov_b32 s7, 0x20000
  s_add_u32 s8, s24, {xoff}
  s_addc_u32 s9, s25, 0
  s_mov_b32 s10, {4<<20}
  s_mov_b32 s11, 0x20000
  s_add_u32 s12, s24, {ACT_OFF}
  s_addc_u32 s13, s25, 0
  s_mov_b32 s14, {ACT_SIZE}
  s_mov_b32 s15, 0x20000
  s_mov_b32 s16, 0                  ; W soffset
  s_mov_b32 s17, 0                  ; X soffset
  s_mul_i32 s18, s28, {MATB//2}
  s_mov_b32 s21, {2*SLOT}
  s_mov_b32 s22, {2*SLOT}""")
    S = Stream()
    NST = 16
    pend = []
    inloop = [False]
    def dma(st, n):
        S.add(f"  s_add_u32 m0, s18, {(st%2)*SLOT + n*1024}")
        t = f"  buffer_load_dwordx4 v{1+n}, s[4:7], s16 offen {wfl} lds"
        if nodma and inloop[0]: t = "  s_nop 0"
        pend.append((t, ('W', st, n)))
    def xload(st, ks, n):
        t = f"  buffer_load_dwordx4 {ar(xreg(st%2,ks,n),4)}, v8, s[8:11], s17 offen offset:{256*n}"
        if nox and inloop[0]: t = "  s_nop 0"
        S.add(t, 'vm', ('X', st, ks, n))
        if n == 3: S.add(f"  s_add_u32 s17, s17, {4*32768}")
    def flush_pend():
        while pend:
            t, tag = pend.pop(0)
            S.add(t, 'vm', tag)
            if tag[2] == NT-1:
                S.add(f"  s_add_u32 s16, s16, {64*7168}")
                if tag[1] % 2 == 1:
                    S.add(f"  s_add_u32 s18, s18, s22\n  s_sub_u32 s22, 0, s22")
    def trread(st, f):
        ks, rem = divmod(f, NF); j, m = divmod(rem, 2)
        r = AF + 4*(((st%2)*2*NF + f) % RING)
        for jj in range(2):
            off = (st%2)*SLOT + m*MATB + (32*ks+8*jj)*ROWB + 32*j
            S.add(f"  ds_read_b64_tr_b16 {ar(r+2*jj,2)}, v9 offset:{off}", 'lg', ('A', st, f, jj))
    for st in range(2):
        for n in range(NT):
            dma(st, n); S.add("  s_nop 0"); flush_pend()
        for ks in range(2):
            if st == 1 and ks == 1: continue
            for n in range(4): xload(st, ks, n)
    for r in range(ACC, 256): S.add(f"  v_mov_b32 v{r}, 0")
    S.wait(vm=('W', 0, NT-1))
    S.add("  s_barrier")
    if diag: S.add("  s_memtime s[32:33]\n  s_waitcnt lgkmcnt(0)")
    for f in range(AHEAD): trread(0, f)
    S.add("  s_mov_b32 s19, 0")
    inloop[0] = True
    if dpos is None: dpos = [8, 10, 12, NF, NF+8, NF+10, NF+12]
    if xpos is None: xpos = [1, 3, 5, 7]
    for st in range(NST):
        if st % 2 == 0: S.mark(('body', st//2))
        acts = {}
        for n in range(4):
            acts.setdefault((xpos[n], 1), []).append(('x', st+1, 1, n))
            acts.setdefault((NF+xpos[n], 1), []).append(('x', st+2, 0, n))
        for n in range(NT):
            acts.setdefault((dpos[n], 1), []).append(('d', st+2, n))
        for f in range(2*NF):
            ks, rem = divmod(f, NF); j, m = divmod(rem, 2)
            fa = f + AHEAD
            ring = AF + 4*(((st%2)*2*NF + f) % RING)
            if fa == 2*NF:
                S.wait(vm=('W', st+1, NT-1))
                if not nobar: S.add("  s_barrier")
                if st % 2 == 1:
                    S.add("  v_add_u32 v9, s21, v9\n  s_sub_u32 s21, 0, s21")
            for n in range(4):
                if n == 0:
                    S.wait(lg=('A', st, f, 1), vm=(('X', st, ks, 3) if rem == 0 else None))
                c = acc(j, m, n)
                S.add(f"  v_mfma_f32_16x16x32_bf16 {vr(c,4)}, {ar(ring,4)}, {ar(xreg(st%2,ks,n),4)}, {vr(c,4)}")
                if n == 0:
                    if fa < 2*NF: trread(st, fa)
                    else: trread(st+1, fa-2*NF)
                flush_pend()
                for act in acts.get((f, n), []):
                    if act[0] == 'x': xload(act[1], act[2], act[3])
                    else: dma(act[1], act[2])
        assert not pend
        if st % 2 == 1:
            S.add(f"  s_add_u32 s19, s19, 1\n  s_cmp_lt_u32 s19, {NST//2}\n  s_cbranch_scc1 L_{name}_loop")
    S.mark('end')
    segs = split_marks(S.resolve())
    emit(a, segs[0][1])
    a("  .p2align 6")
    a(f"L_{name}_loop:")
    emit(a, merge_iters([s[1] for s in segs[1:1+NST//2]]))
    a("  s_waitcnt vmcnt(0) lgkmcnt(0)")
    if diag: a("  s_memtime s[34:35]")
    a(f"""  s_mul_i32 s16, s26, {NT*2*32768}
  s_mov_b32 s20, 0xbfb8aa3b
  s_mov_b32 s21, 0xbfb8aa3b
  s_nop 4""")
    for j in range(NT):
        for np_ in range(2):
            P = 12 + 4*((j*2+np_) % 2)
            for h in range(2):
                n = 2*np_ + h
                G = acc(j, 0, n); U = acc(j, 1, n)
                a(f"""  v_pk_mul_f32 v[20:21], {vr(G,2)}, s[20:21]
  v_pk_mul_f32 v[22:23], {vr(G+2,2)}, s[20:21]
  v_exp_f32 v20, v20
  v_exp_f32 v21, v21
  v_exp_f32 v22, v22
  v_exp_f32 v23, v23
  v_pk_mul_f32 {vr(G,2)}, {vr(G,2)}, {vr(U,2)}
  v_pk_mul_f32 {vr(G+2,2)}, {vr(G+2,2)}, {vr(U+2,2)}
  v_pk_add_f32 v[20:21], v[20:21], 1.0 op_sel_hi:[1,0]
  v_pk_add_f32 v[22:23], v[22:23], 1.0 op_sel_hi:[1,0]
  v_rcp_f32 v20, v20
  v_rcp_f32 v21, v21
  v_rcp_f32 v22, v22
  v_rcp_f32 v23, v23
  s_nop 0
  v_pk_mul_f32 {vr(G,2)}, {vr(G,2)}, v[20:21]
  v_pk_mul_f32 {vr(G+2,2)}, {vr(G+2,2)}, v[22:23]
  v_cvt_pk_bf16_f32 v{P+2*h}, v{G}, v{G+1}
  v_cvt_pk_bf16_f32 v{P+2*h+1}, v{G+2}, v{G+3}""")
            a(f"""  s_nop 1
  v_permlane16_swap_b32 v{P}, v{P+2}
  v_permlane16_swap_b32 v{P+1}, v{P+3}
  buffer_store_dwordx4 {vr(P,4)}, v10, s[12:15], s16 offen offset:{512*np_} {stflags}""")
        a(f"  s_add_u32 s16, s16, {2*32768}")
    if diag:
        a("  s_memtime s[36:37]\n  s_waitcnt vmcnt(0)\n  s_memtime s[38:39]")
        diag_store(a, name, dbg_idx, [30, 32, 34, 36, 38], 24)
    a(f"L_{name}_end:\n  s_endpgm")
    desc = kernel_desc(name, 256+nagpr, 96, 256)
    return a.text(), desc, f"; @launch kernel={name} grid=(256,1,1) block=(256,1,1) lds={4*SLOT}"

def assemble_file(parts):
    out = [p[2] for p in parts]
    out.append('.amdgcn_target "amdgcn-amd-amdhsa--gfx950"')
    seen = set()
    for p in parts:
        if p[0] not in seen: out.append(p[0]); seen.add(p[0])
    seen = set()
    for p in parts:
        if p[1] not in seen: out.append(p[1]); seen.add(p[1])
    return "\n".join(out) + "\n"

if __name__ == "__main__":
    assert all((u*4682)>>16 == u//14 for u in range(448))
    parts = [gen_g1("a_kernel", diag=True, dbg_idx=0),
             gen_g1("b_kernel", diag=True, dbg_idx=1, nobar=True),
             gen_g1("c_kernel", diag=True, dbg_idx=2, nodma=True),
             gen_g1("d_kernel", diag=True, dbg_idx=3, nox=True),
             gen_g1("e_kernel", diag=True, dbg_idx=4, nox=True, nodma=True),
             gen_g1("f_kernel", diag=True, dbg_idx=5, nox=True, nodma=True, nobar=True),
             gen_g1("g_kernel", diag=True, dbg_idx=6, AHEAD=6),
             gen_g1("h_kernel", diag=True, dbg_idx=7, AHEAD=1),
             ]
    open("g1test.s", "w").write(assemble_file(parts))
```

```python
from asmgen import *
from sched import *
from layout import *
from g1 import diag_store, assemble_file

def gen_g2(name="g2_kernel", diag=False, P=4, AHEAD=3, dbg_idx=0, nobar=False, nodma=False, nox=False, nomfma=False, stflags="", perm=False):
    a = Asm()
    SLOT = 16384
    NS = 2*P
    NST = 28
    assert NST % P == 0
    RING = AHEAD+1
    assert 16 % RING == 0
    ACC = 32
    def acc(j, n): return ACC + (j*2+n)*4
    AF = 0
    XR = 4*RING
    def xreg(st, ks, n): return XR + (((st % P)*4+ks)*2+n)*4
    nagpr = XR + 32*P
    tokmap = "  v_lshlrev_b32 v10, 11, v13"
    if perm:
        tokmap = """  v_and_b32 v10, 0x603, v13
  v_bfe_u32 v20, v13, 2, 4
  v_lshl_or_b32 v10, v20, 5, v10
  v_bfe_u32 v20, v13, 6, 3
  v_lshl_or_b32 v10, v20, 2, v10
  v_lshlrev_b32 v10, 11, v10"""
    nstep = (128 if perm else 16)*2048
    a(kernel_head(name))
    a(f"""  s_cmp_ge_u32 s2, 256
  s_cbranch_scc1 L_{name}_end""")
    if diag: a("  s_memrealtime s[40:41]\n  s_memtime s[30:31]")
    a(f"""  s_load_dwordx4 s[20:23], s[0:1], 96
  s_load_dwordx2 s[24:25], s[0:1], 120
  v_lshrrev_b32 v10, 6, v0
  v_and_b32 v11, 63, v0
  s_and_b32 s26, s2, 7
  s_lshr_b32 s27, s2, 3
  v_readfirstlane_b32 s28, v10
  s_lshr_b32 s3, s26, 1
  s_lshl_b32 s3, s3, 2
  s_and_b32 s29, s27, 3
  s_add_u32 s3, s3, s29             ; tt
  s_and_b32 s26, s26, 1
  s_lshl_b32 s26, s26, 3
  s_lshr_b32 s27, s27, 2
  s_add_u32 s26, s26, s27           ; ct
  s_lshl_b32 s3, s3, 7              ; t0
  s_lshl_b32 s29, s28, 5
  s_add_u32 s3, s3, s29             ; t0 + 32 w
  v_bfe_u32 v12, v11, 3, 2          ; p1p0
  v_bfe_u32 v13, v11, 5, 1          ; p2
  v_lshl_add_u32 v12, v13, 3, v12
  v_add_lshl_u32 v12, v12, s29, 11  ; row*2048
  v_bfe_u32 v14, v11, 4, 1          ; p1
  v_lshl_add_u32 v14, v13, 2, v14   ; s
  v_and_b32 v15, 7, v11
  v_xor_b32 v14, v14, v15
  v_lshl_add_u32 v1, v14, 4, v12
  v_add_u32 v2, {4*2048}, v1
  v_add_u32 v3, {16*2048}, v1
  v_add_u32 v4, {20*2048}, v1
  ; X voffset v8
  v_lshrrev_b32 v12, 4, v11         ; g
  v_and_b32 v13, 15, v11
  v_add_u32 v13, s3, v13            ; token
  v_lshlrev_b32 v14, 11, v12
  v_add_lshl_u32 v8, v14, v13, 4
  v_lshrrev_b32 v14, 1, v12
  v_lshlrev_b32 v15, 12, v14
  v_add_lshl_u32 v9, v15, v13, 4
  v_and_b32 v15, 1, v12
  v_lshl_add_u32 v9, v15, 3, v9
{tokmap}
  v_lshl_add_u32 v10, v12, 4, v10
  v_bfe_u32 v20, v11, 2, 2          ; r
  v_lshl_add_u32 v21, v15, 2, v20   ; 4 g0 + r
  v_lshl_add_u32 v21, v14, 4, v21   ; pos
  v_lshlrev_b32 v21, 7, v21
  v_lshrrev_b32 v20, 1, v20         ; r1
  v_lshl_add_u32 v20, v15, 2, v20   ; r1 + 4 g0
  v_and_b32 v22, 2, v11
  v_or_b32 v20, v20, v22            ; + 2 c1
  v_lshl_add_u32 v21, v20, 4, v21
  v_and_b32 v22, 1, v11
  v_lshl_add_u32 v16, v22, 3, v21
  v_xor_b32 v17, 16, v16
  v_xor_b32 v18, 64, v16
  v_xor_b32 v19, 0x50, v16
  s_waitcnt lgkmcnt(0)
  s_lshl_b32 s27, s26, 7
  s_add_u32 s4, s20, s27
  s_addc_u32 s5, s21, 0
  s_sub_u32 s6, {3584*2048}, s27
  s_mov_b32 s7, 0x20000
  s_add_u32 s8, s24, {ACT_OFF}
  s_addc_u32 s9, s25, 0
  s_mov_b32 s10, {ACT_SIZE}
  s_mov_b32 s11, 0x20000
  s_add_u32 s12, s22, s27
  s_addc_u32 s13, s23, 0
  s_sub_u32 s14, {4<<20}, s27
  s_mov_b32 s15, 0x20000
  s_add_u32 s48, s24, {HB_OFF}
  s_addc_u32 s49, s25, 0
  s_mov_b32 s50, {4<<20}
  s_mov_b32 s51, 0x20000
  s_mov_b32 s16, 0                  ; W soffset
  s_mov_b32 s17, 0                  ; X soffset
  s_lshl_b32 s18, s28, 12
  s_lshl_b32 s27, s26, 18           ; ct*8*32768""")
    S = Stream()
    pend = []
    inloop = [False]
    def dma(st, n):
        S.add(f"  s_add_u32 m0, s18, {(st%P)*SLOT + n*1024}")
        t = f"  buffer_load_dwordx4 v{1+n}, s[4:7], s16 offen lds"
        if nodma and inloop[0]: t = "  s_nop 0"
        pend.append((t, ('W', st, n)))
    def xload(st, ks, n):
        t = f"  buffer_load_dwordx4 {ar(xreg(st,ks,n),4)}, v8, s[8:11], s17 offen offset:{256*n}"
        if nox and inloop[0]: t = "  s_nop 0"
        S.add(t, 'vm', ('X', st, ks, n))
        if n == 1: S.add(f"  s_add_u32 s17, s17, {4*32768}")
    def flush_pend():
        while pend:
            t, tag = pend.pop(0)
            S.add(t, 'vm', tag)
            if tag[2] == 3:
                S.add(f"  s_add_u32 s16, s16, {128*2048}")
                if tag[1] % P == P-1:
                    S.add(f"  s_xor_b32 s18, s18, {P*SLOT}")
    def trread(st, f):
        ks, j = divmod(f, 4)
        r = AF + 4*(f % RING)
        for jj in range(2):
            off = (st%P)*SLOT + (32*ks+8*jj)*128
            S.add(f"  ds_read_b64_tr_b16 {ar(r+2*jj,2)}, v{16+j} offset:{off}", 'lg', ('A', st, f, jj))
    UB = [0, 1, 4, 5]
    for st in range(P):
        for n in range(4):
            dma(st, n); S.add("  s_nop 0"); flush_pend()
        for ks in range(4):
            if st == P-1 and ks == 3: continue
            for n in range(2): xload(st, ks, n)
        if st == 0:
            for j in range(4):
                S.add(f"  s_add_u32 s29, s27, {UB[j]*32768}")
                for n in range(2):
                    S.add(f"  buffer_load_dwordx2 {vr(acc(j,n)+2,2)}, v9, s[48:51], s29 offen offset:{256*n}", 'vm', ('H', j, n))
    S.wait(vm=('H', 3, 1))
    for j in range(4):
        for n in range(2):
            c = acc(j, n)
            S.add(f"""  v_lshlrev_b32 v{c}, 16, v{c+2}
  v_and_b32 v{c+1}, 0xffff0000, v{c+2}
  v_lshlrev_b32 v{c+2}, 16, v{c+3}
  v_and_b32 v{c+3}, 0xffff0000, v{c+3}""")
    S.add("  s_barrier")
    if diag: S.add("  s_memtime s[32:33]\n  s_waitcnt lgkmcnt(0)")
    for f in range(AHEAD): trread(0, f)
    S.add("  s_mov_b32 s19, 0")
    inloop[0] = True
    for st in range(NST):
        if st % P == 0: S.mark(('body', st//P))
        acts = {}
        for ks in range(4):
            s2, k2 = (st+P-1, 3) if ks == 0 else (st+P, ks-1)
            acts.setdefault((4*ks+0, 1), []).append(('x', s2, k2, 0))
            acts.setdefault((4*ks+1, 1), []).append(('x', s2, k2, 1))
            acts.setdefault((4*ks+2, 0), []).append(('d', st+P, ks))
        for f in range(16):
            ks, j = divmod(f, 4)
            fa = f + AHEAD
            ring = AF + 4*(f % RING)
            if fa == 16:
                S.wait(vm=('W', st+1, 3))
                if not nobar: S.add("  s_barrier")
                if st % P == P-1:
                    for q in range(4): S.add(f"  v_xor_b32 v{16+q}, {P*SLOT}, v{16+q}")
            for n in range(2):
                if n == 0:
                    S.wait(lg=('A', st, f, 1), vm=(('X', st, ks, 1) if j == 0 else None))
                c = acc(j, n)
                if not nomfma:
                    S.add(f"  v_mfma_f32_16x16x32_bf16 {vr(c,4)}, {ar(ring,4)}, {ar(xreg(st,ks,n),4)}, {vr(c,4)}")
                else: S.add("  s_nop 0")
                if n == 0:
                    if fa < 16: trread(st, fa)
                    else: trread(st+1, fa-16)
                flush_pend()
                for act in acts.get((f, n), []):
                    if act[0] == 'x': xload(act[1], act[2], act[3])
                    else: dma(act[1], act[2])
        assert not pend
        if st % P == P-1:
            S.add(f"  s_add_u32 s19, s19, 1\n  s_cmp_lt_u32 s19, {NST//P}\n  s_cbranch_scc1 L_{name}_loop")
    S.mark('end')
    segs = split_marks(S.resolve())
    emit(a, segs[0][1])
    a("  .p2align 6")
    a(f"L_{name}_loop:")
    emit(a, merge_iters([s[1] for s in segs[1:1+NST//P]]))
    a("  s_waitcnt vmcnt(0) lgkmcnt(0)")
    if diag: a("  s_memtime s[34:35]")
    a("  s_nop 6")
    for n in range(2):
        for jp in range(2):
            Pp = 20 + 4*jp
            A = acc(2*jp, n); B = acc(2*jp+1, n)
            a(f"""  v_cvt_pk_bf16_f32 v{Pp}, v{A}, v{A+1}
  v_cvt_pk_bf16_f32 v{Pp+1}, v{A+2}, v{A+3}
  v_cvt_pk_bf16_f32 v{Pp+2}, v{B}, v{B+1}
  v_cvt_pk_bf16_f32 v{Pp+3}, v{B+2}, v{B+3}
  s_nop 1
  v_permlane16_swap_b32 v{Pp}, v{Pp+2}
  v_permlane16_swap_b32 v{Pp+1}, v{Pp+3}
  s_mov_b32 s16, {n*nstep}
  buffer_store_dwordx4 {vr(Pp,4)}, v10, s[12:15], s16 offen offset:{64*jp} {stflags}""")
    if diag:
        a("  s_memtime s[36:37]\n  s_waitcnt vmcnt(0)\n  s_memtime s[38:39]")
        diag_store(a, name, dbg_idx, [30, 32, 34, 36, 38], 24)
    a(f"L_{name}_end:\n  s_endpgm")
    desc = kernel_desc(name, 64+nagpr, 96, 64)
    return a.text(), desc, f"; @launch kernel={name} grid=(256,1,1) block=(256,1,1) lds={NS*SLOT}"

if __name__ == "__main__":
    parts = [gen_g2("a_kernel", diag=True, dbg_idx=0),
             gen_g2("b_kernel", diag=True, dbg_idx=1, P=2),
             gen_g2("c_kernel", diag=True, dbg_idx=2, nodma=True),
             gen_g2("d_kernel", diag=True, dbg_idx=3, nox=True),
             gen_g2("e_kernel", diag=True, dbg_idx=4, nox=True, nodma=True),
             gen_g2("f_kernel", diag=True, dbg_idx=5, nomfma=True),
             gen_g2("g_kernel", diag=True, dbg_idx=6, nobar=True),
             gen_g2("h_kernel", diag=True, dbg_idx=7, AHEAD=1),
             ]
    open("g2test.s", "w").write(assemble_file(parts))
```

```python
class Stream:
    def __init__(self):
        self.ops = []
    def add(self, text, kind=None, tag=None):
        self.ops.append([text, kind, tag])
    def wait(self, vm=None, lg=None):
        self.ops.append([None, 'wait', (vm, lg)])
    def mark(self, name):
        self.ops.append([None, 'mark', name])
    def resolve(self):
        vm_idx = {}; lg_idx = {}; nvm = 0; nlg = 0
        out = []
        for text, kind, tag in self.ops:
            if kind == 'vm':
                nvm += 1
                if tag is not None: vm_idx[tag] = nvm
                out.append(text)
            elif kind == 'lg':
                nlg += 1
                if tag is not None: lg_idx[tag] = nlg
                out.append(text)
            elif kind == 'wait':
                vm, lg = tag
                cv = cl = None
                if vm is not None:
                    ts = vm if isinstance(vm, list) else [vm]
                    cv = nvm - max(vm_idx[t] for t in ts)
                if lg is not None:
                    ts = lg if isinstance(lg, list) else [lg]
                    cl = nlg - max(lg_idx[t] for t in ts)
                out.append(('wait', cv, cl))
            elif kind == 'mark':
                out.append(('mark', tag))
            else:
                out.append(text)
        return out

def wait_text(cv, cl):
    parts = []
    if cv is not None: parts.append(f"vmcnt({min(cv,63)})")
    if cl is not None: parts.append(f"lgkmcnt({min(cl,15)})")
    return "  s_waitcnt " + " ".join(parts)

def split_marks(res):
    segs = []; cur = []; name = None
    for x in res:
        if isinstance(x, tuple) and x[0] == 'mark':
            segs.append((name, cur)); name = x[1]; cur = []
        else:
            cur.append(x)
    segs.append((name, cur))
    return segs

def merge_iters(bodies):
    n = len(bodies[0])
    for b in bodies: assert len(b) == n, (len(b), n)
    out = []
    for i in range(n):
        x = bodies[0][i]
        if isinstance(x, tuple):
            cv = [b[i][1] for b in bodies]; cl = [b[i][2] for b in bodies]
            out.append(('wait', None if cv[0] is None else min(cv), None if cl[0] is None else min(cl)))
        else:
            for b in bodies: assert b[i] == x, (b[i], x)
            out.append(x)
    return out

def emit(a, res):
    for x in res:
        if isinstance(x, tuple):
            a(wait_text(x[1], x[2]))
        else:
            a(x)
```

```python
import sys
from g1 import gen_g1, assemble_file
from g2 import gen_g2
from conv import *
diag = len(sys.argv) > 2 and sys.argv[2] == "diag"
parts = [gen_k0(diag=diag, dbg_idx=0), gen_conv(diag=diag, dbg_idx=1), gen_ln2(diag=diag, dbg_idx=2),
         gen_g1(diag=diag, dbg_idx=3), gen_g2(diag=diag, dbg_idx=4, P=2, perm=True)]
open(sys.argv[1], "w").write(assemble_file(parts))
```

```python
from asmgen import *
from sched import *
from layout import *
from g1 import diag_store, assemble_file

def wave_allsum(a, regs, tmp):
    for ctl in ["quad_perm:[1,0,3,2]", "quad_perm:[2,3,0,1]", "row_half_mirror", "row_mirror"]:
        a("  s_nop 1" if len(regs) == 1 else "  s_nop 0" if len(regs) == 2 else "")
        for r in regs:
            a(f"  v_add_f32_dpp v{r}, v{r}, v{r} {ctl} row_mask:0xf bank_mask:0xf")
    for sw in ["v_permlane16_swap_b32", "v_permlane32_swap_b32"]:
        for r, t in zip(regs, tmp): a(f"  v_mov_b32 v{t}, v{r}")
        a("  s_nop 1")
        for r, t in zip(regs, tmp): a(f"  {sw} v{t}, v{r}")
        for r, t in zip(regs, tmp): a(f"  v_add_f32 v{r}, v{r}, v{t}")

def ln_finish(a, mean, var, out_r, out_mr, t0):
    a(f"""  v_cvt_pk_bf16_f32 v{t0}, v{var}, v{mean}
  v_lshlrev_b32 v{var}, 16, v{t0}
  v_and_b32 v{mean}, 0xffff0000, v{t0}
  v_add_f32 v{var}, 0x3727c5ac, v{var}
  v_cvt_pk_bf16_f32 v{var}, v{var}, v{var}
  v_lshlrev_b32 v{var}, 16, v{var}
  v_sqrt_f32 v{var}, v{var}
  s_nop 0
  v_cvt_pk_bf16_f32 v{var}, v{var}, v{var}
  v_lshlrev_b32 v{var}, 16, v{var}
  v_rcp_f32 v{out_r}, v{var}
  s_nop 0
  v_mul_f32 v{out_mr}, -v{mean}, v{out_r}""")

def gen_k0(name="k0_kernel", diag=False, dbg_idx=0):
    a = Asm()
    a(kernel_head(name))
    a(f"""  s_cmp_ge_u32 s2, 256
  s_cbranch_scc1 L_{name}_end""")
    if diag: a("  s_memrealtime s[40:41]\n  s_memtime s[30:31]")
    a(f"""  s_load_dwordx2 s[4:5], s[0:1], 0
  s_load_dwordx2 s[24:25], s[0:1], 120
  v_lshrrev_b32 v1, 6, v0
  v_and_b32 v2, 63, v0
  s_lshr_b32 s3, s2, 2
  v_readfirstlane_b32 s28, v1
  s_lshl_b32 s3, s3, 5
  s_and_b32 s12, s2, 3
  s_add_u32 s3, s3, s12
  v_lshlrev_b32 v3, 4, v2
  s_lshl_b32 s12, s28, 3
  s_add_u32 s3, s3, s12
  s_lshl_b32 s3, s3, 11             ; row(e=2w) * 2048
  s_add_u32 s12, s3, {4*2048}
  s_mov_b32 s6, {4<<20}
  s_mov_b32 s7, 0x20000
  s_waitcnt lgkmcnt(0)
  buffer_load_dwordx4 v[8:11], v3, s[4:7], s3 offen
  buffer_load_dwordx4 v[12:15], v3, s[4:7], s3 offen offset:1024
  buffer_load_dwordx4 v[16:19], v3, s[4:7], s12 offen
  buffer_load_dwordx4 v[20:23], v3, s[4:7], s12 offen offset:1024
  s_add_u32 s8, s24, {ST1_OFF}
  s_addc_u32 s9, s25, 0
  s_mov_b32 s10, 16384
  s_mov_b32 s11, 0x20000
  s_lshl_b32 s13, s2, 6
  s_lshl_b32 s12, s28, 4
  s_add_u32 s13, s13, s12""")
    for row in range(2):
        a(f"  s_waitcnt vmcnt({2-2*row})")
        for i in range(8):
            s = 8+8*row+i; d = 32+16*row+2*i
            a(f"  v_lshlrev_b32 v{d}, 16, v{s}\n  v_and_b32 v{d+1}, 0xffff0000, v{s}")
        b = 32+16*row
        a(f"  v_pk_add_f32 v[4:5], {vr(b,2)}, {vr(b+2,2)}")
        for i in range(2, 8): a(f"  v_pk_add_f32 v[4:5], v[4:5], {vr(b+2*i,2)}")
        a(f"  v_add_f32 v{24+row}, v4, v5")
    if diag: a("  s_memtime s[32:33]")
    wave_allsum(a, [24, 25], [26, 27])
    a("  v_mul_f32 v24, 0x3a800000, v24\n  v_mul_f32 v25, 0x3a800000, v25")
    for row in range(2):
        b = 32+16*row
        for i in range(8):
            a(f"  v_pk_add_f32 {vr(b+2*i,2)}, {vr(b+2*i,2)}, v[24:25] op_sel:[0,{row}] op_sel_hi:[1,{row}] neg_lo:[0,1] neg_hi:[0,1]")
        a(f"  v_pk_mul_f32 v[4:5], {vr(b,2)}, {vr(b,2)}")
        for i in range(1, 8): a(f"  v_pk_fma_f32 v[4:5], {vr(b+2*i,2)}, {vr(b+2*i,2)}, v[4:5]")
        a(f"  v_add_f32 v{28+row}, v4, v5")
    wave_allsum(a, [28, 29], [26, 27])
    a("  v_mul_f32 v28, 0x3a800000, v28\n  v_mul_f32 v29, 0x3a800000, v29")
    ln_finish(a, 24, 28, 4, 6, 26)
    ln_finish(a, 25, 29, 5, 7, 26)
    a(f"""  v_mov_b32 v3, 0
  v_cmp_eq_u32 vcc, 0, v2
  s_and_saveexec_b64 s[14:15], vcc
  buffer_store_dwordx4 v[4:7], v3, s[8:11], s13 offen""")
    if diag:
        a("  s_mov_b64 exec, s[14:15]\n  s_memtime s[34:35]\n  s_memtime s[36:37]\n  s_waitcnt vmcnt(0)\n  s_memtime s[38:39]")
        diag_store(a, name, dbg_idx, [30, 32, 34, 36, 38], 24)
    a(f"L_{name}_end:\n  s_endpgm")
    return a.text(), kernel_desc(name, 64), f"; @launch kernel={name} grid=(256,1,1) block=(256,1,1) lds=0"

USZ = 4864
UTOT = 4*USZ
TROW = 528
REG = 64*TROW
YOFF = 4224
HHOFF = YOFF + 8192

def gen_conv(name="conv_kernel", diag=False, dbg_idx=0, stflags="", pf=0, pfd=0, pfl=""):
    a = Asm()
    a(kernel_head(name))
    a(f"""  s_cmp_ge_u32 s2, 256
  s_cbranch_scc1 L_{name}_end""")
    if diag: a("  s_memrealtime s[40:41]\n  s_memtime s[30:31]")
    XP = 64
    ST = 80
    XF = 96
    ACC = [128, 144]
    a(f"""  s_load_dwordx16 s[52:67], s[0:1], 0
  s_load_dwordx2 s[68:69], s[0:1], 64
  s_load_dwordx4 s[72:75], s[0:1], 80
  s_load_dwordx2 s[76:77], s[0:1], 96
  s_load_dwordx2 s[24:25], s[0:1], 120
  v_lshrrev_b32 v1, 6, v0
  v_and_b32 v2, 63, v0
  s_and_b32 s3, s2, 7
  v_readfirstlane_b32 s28, v1       ; wave
  s_lshl_b32 s3, s3, 5
  s_lshr_b32 s26, s2, 3
  s_add_u32 s26, s26, s3            ; cg
  s_lshl_b32 s27, s26, 2
  s_add_u32 s27, s27, s28           ; d
  s_lshl_b32 s29, s27, 8
  v_lshl_add_u32 v3, v2, 2, s29
  s_lshr_b32 s29, s27, 1
  s_lshl_b32 s29, s29, 2
  s_waitcnt lgkmcnt(0)
  s_load_dword s16, s[66:67], s29
  s_load_dword s17, s[68:69], s29
  global_load_dword v8, v3, s[54:55]
  global_load_dword v9, v3, s[56:57]
  global_load_dword v10, v3, s[58:59]
  global_load_dword v11, v3, s[60:61]
  global_load_dword v12, v3, s[62:63]
  global_load_dword v13, v3, s[64:65]
  s_add_u32 s8, s24, {ST1_OFF}
  s_addc_u32 s9, s25, 0
  s_mov_b32 s10, 16384
  s_mov_b32 s11, 0x20000
  v_lshlrev_b32 v4, 6, v0""")
    for i in range(4):
        a(f"  buffer_load_dwordx4 {vr(ST+4*i,4)}, v4, s[8:11], 0 offen offset:{16*i}")
    a(f"""  s_mov_b32 s4, s52
  s_mov_b32 s5, s53
  s_mov_b32 s6, {4<<20}
  s_mov_b32 s7, 0x20000
  v_lshrrev_b32 v4, 2, v0           ; tb
  v_and_b32 v5, 3, v0               ; rho
  v_lshl_add_u32 v6, v4, 5, v5
  v_lshlrev_b32 v6, 11, v6
  s_lshl_b32 s18, s26, 3""")
    for e in range(8):
        a(f"  buffer_load_dwordx2 {vr(XP+2*e,2)}, v6, s[4:7], s18 offen")
        if e < 7: a(f"  s_add_u32 s18, s18, 8192")
    a(f"""  s_add_u32 s12, s24, {HB_OFF}
  s_addc_u32 s13, s25, 0
  s_mov_b32 s14, {4<<20}
  s_mov_b32 s15, 0x20000
  s_mul_i32 s19, s28, {REG}
  s_add_u32 s19, s19, {UTOT}
  v_lshl_add_u32 v7, v2, 3, s19
  v_mov_b32 v20, 0
  v_mov_b32 v21, 0
  v_mov_b32 v22, 0
  v_mov_b32 v23, 0
  v_bfe_u32 v14, v0, 3, 4
  v_mul_u32_u24 v14, 1216, v14
  v_and_b32 v15, 7, v0
  v_lshl_add_u32 v14, v15, 4, v14
  ds_write_b128 v14, v[20:23]
  v_mul_u32_u24 v30, 1216, v5
  v_lshl_add_u32 v30, v4, 4, v30
  v_lshlrev_b32 v31, 2, v0
  v_add_u32 v31, {UTOT+YOFF}, v31
  s_waitcnt lgkmcnt(0)
  s_and_b32 s29, s28, 1
  s_lshl_b32 s29, s29, 4
  s_lshr_b32 s16, s16, s29
  s_lshl_b32 s16, s16, 16           ; log_dt
  s_lshr_b32 s17, s17, s29
  s_lshl_b32 s17, s17, 16           ; Dskip
  v_mov_b32 v14, 0x3fb8aa3b
  v_mul_f32 v14, s16, v14
  v_exp_f32 v14, v14
  s_nop 0
  v_cvt_pk_bf16_f32 v14, v14, v14
  v_lshlrev_b32 v14, 16, v14        ; dt
  v_mul_f32 v15, 0x3fb8aa3b, v14    ; dt*log2e
  v_mul_f32 v16, 0.15915494, v14    ; dt/2pi
  s_waitcnt vmcnt(12)""")
    if diag: a("  s_memtime s[32:33]")
    def unp(dst, src, n):
        a(f"  v_lshlrev_b32 v{dst}, 16, v{src}" if n == 0 else f"  v_and_b32 v{dst}, 0xffff0000, v{src}")
    for n in range(2):
        unp(32+n, 8, n); unp(34+n, 9, n); unp(36+2*n, 10, n); unp(37+2*n, 11, n); unp(40+2*n, 12, n); unp(41+2*n, 13, n)
    a("""  v_mul_f32 v32, v32, v15
  v_mul_f32 v33, v33, v15
  v_mul_f32 v34, v34, v16
  v_mul_f32 v35, v35, v16
  v_pk_mul_f32 v[36:37], v[36:37], v[14:15] op_sel:[0,0] op_sel_hi:[1,0]
  v_pk_mul_f32 v[38:39], v[38:39], v[14:15] op_sel:[0,0] op_sel_hi:[1,0]""")
    T = 16
    def cmul(dst, x, w):
        for n in range(2):
            a(f"  v_pk_mul_f32 {vr(T+2*n,2)}, {vr(x+2*n,2)}, {vr(w+2*n,2)} op_sel:[0,0] op_sel_hi:[1,0]")
        for n in range(2):
            a(f"  v_pk_fma_f32 {vr(dst+2*n,2)}, {vr(x+2*n,2)}, {vr(w+2*n,2)}, {vr(T+2*n,2)} op_sel:[1,1,0] op_sel_hi:[0,1,1] neg_lo:[1,0,0]")
    def cexp(dst, l):
        lit = {1: "1.0", 8: "0x41000000", 256: "0x43800000"}[l]
        for n in range(2):
            a(f"  v_mul_f32 v{T+n}, {lit}, v{32+n}\n  v_mul_f32 v{T+2+n}, {lit}, v{34+n}")
        for n in range(2):
            a(f"  v_exp_f32 v{T+n}, v{T+n}\n  v_fract_f32 v{T+2+n}, v{T+2+n}")
        for n in range(2):
            a(f"  v_cos_f32 v{dst+2*n}, v{T+2+n}\n  v_sin_f32 v{dst+2*n+1}, v{T+2+n}")
        a("  s_nop 0")
        for n in range(2):
            a(f"  v_pk_mul_f32 {vr(dst+2*n,2)}, {vr(dst+2*n,2)}, {vr(T,2)} op_sel:[0,{n}] op_sel_hi:[1,{n}]")
    tog = [0]
    def emitrow(x, rows, neg):
        t = 20 + 2*tog[0]; tog[0] ^= 1
        s = "-" if neg else ""
        a(f"  v_cvt_pk_bf16_f32 v{t}, v{x}, {s}v{x+1}\n  v_cvt_pk_bf16_f32 v{t+1}, v{x+2}, {s}v{x+3}")
        for r in rows: a(f"  ds_write_b64 v7, {vr(t,2)} offset:{r*TROW}")
    C, E1, E8, E256, Z, W, E2 = 36, 44, 48, 52, 56, 60, 40
    cmul(C, 36, 40)
    cexp(E1, 1); cexp(E8, 8); cexp(E256, 256)
    rowmap = {}
    for h, lst in enumerate([[0,1,2,3,256,258,260,None,512,516,768,772,1024,1032,1280,1288],
                             [4,5,6,7,260,262,264,None,516,520,772,776,1536,1544,1792,1800]]):
        for k, v in enumerate(lst):
            if v is not None: rowmap.setdefault(v, []).append(8*(k//4) + 4*h + (k % 4))
    emitrow(C, rowmap[0], True)
    cmul(W, C, E1); emitrow(W, rowmap[1], True)
    for l in range(2, 8):
        cmul(W, W, E1); emitrow(W, rowmap[l], True)
    cmul(E2, E1, E1)
    cmul(E1, E2, E2)
    E4 = E1
    cmul(Z, C, E256); emitrow(Z, rowmap[256], True)
    cmul(W, Z, E2); emitrow(W, rowmap[258], True)
    for l in (260, 262, 264):
        cmul(W, W, E2); emitrow(W, rowmap[l], True)
    for b in (512, 768):
        cmul(Z, Z, E256); emitrow(Z, rowmap[b], True)
        cmul(W, Z, E4); emitrow(W, rowmap[b+4], True)
        cmul(W, W, E4); emitrow(W, rowmap[b+8], True)
    for b in (1024, 1280, 1536, 1792):
        cmul(Z, Z, E256); emitrow(Z, rowmap[b], True)
        cmul(W, Z, E8); emitrow(W, rowmap[b+8], True)
    a(f"""  v_mov_b32 v20, 0x3f80
  v_mov_b32 v21, 0x3f80
  ds_write_b64 v7, v[20:21] offset:{32*TROW}
""")
    emitrow(E8, [33], False)
    cmul(W, E8, E8); emitrow(W, [34], False)
    for j in range(3, 32):
        cmul(W, W, E8); emitrow(W, [32+j], False)
    a(f"""  v_and_b32 v24, 31, v2
  v_mul_u32_u24 v24, {TROW}, v24
  v_lshrrev_b32 v25, 5, v2          ; h / kg
  v_lshl_add_u32 v24, v25, 4, v24
  v_add_u32 v24, s19, v24""")
    S = Stream()
    for s in range(16):
        S.add(f"  ds_read_b128 {ar(8*s,4)}, v24 offset:{32*s}", 'lg', ('a', s))
        S.add(f"  ds_read_b128 {ar(8*s+4,4)}, v24 offset:{32*TROW+32*s}", 'lg', ('b', s))
        if s >= 6:
            q = s-6
            S.wait(lg=('b', q))
            S.add(f"  v_mfma_f32_32x32x16_bf16 {vr(ACC[0],16)}, {ar(8*q,4)}, {ar(8*q+4,4)}, {vr(ACC[0],16) if q else 0}")
    for q in range(10, 16):
        S.wait(lg=('b', q))
        S.add(f"  v_mfma_f32_32x32x16_bf16 {vr(ACC[0],16)}, {ar(8*q,4)}, {ar(8*q+4,4)}, {vr(ACC[0],16)}")
    emit(a, S.resolve())
    if diag: a("  s_memtime s[34:35]")
    D = ACC[0]
    a(f"""  v_mov_b32 v20, 0
  v_mov_b32 v21, 0
  v_mov_b32 v22, 0
  v_mov_b32 v23, 0
  v_lshl_add_u32 v26, v2, 4, s19""")
    a(f"  v_min_u32 v27, 15, v2\n  v_lshl_add_u32 v27, v27, 2, s19\n  ds_write_b32 v27, v20")
    a(f"  ds_write_b32 v27, v20 offset:{HHOFF}")
    a(f"""  v_and_b32 v26, 31, v2
  v_lshlrev_b32 v26, 4, v26
  v_add_u32 v26, s19, v26
  v_lshl_add_u32 v27, v25, 3, v26   ; + 8h
  v_lshl_add_u32 v26, v25, 10, v26  ; + 1024 h
  v_cmp_eq_u32 vcc, 0, v2
  v_mov_b32 v28, s17
  v_and_b32 v29, 1, v2
  v_cndmask_b32 v28, 0, v28, vcc
  v_cmp_eq_u32 s[20:21], 1, v25
  v_cmp_eq_u32 s[22:23], 1, v29
  v_add_f32 v{D}, v{D}, v28
  v_cvt_pk_bf16_f32 v8, v{D}, v{D+1}
  v_cvt_pk_bf16_f32 v9, v{D+2}, v{D+3}
  ds_write_b64 v27, v[8:9] offset:64
  v_cvt_pk_bf16_f32 v10, v{D+4}, v{D+4}
  v_cvt_pk_bf16_f32 v11, v{D+5}, v{D+6}
  ds_write_b64 v27, v[10:11] offset:{64+512}""")
    for k in range(2):
        A, B = D+8+2*k, D+9+2*k
        t = 8+2*k
        a(f"""  v_cndmask_b32 v12, v{A}, v{B}, s[20:21]
  v_cvt_pk_bf16_f32 v{t}, v{A}, v{A}
  v_cvt_pk_bf16_f32 v{t+1}, v12, v{B}
  ds_write_b64 v27, {vr(t,2)} offset:{64+1024+512*k}""")
    for k in range(2):
        A, B = D+12+2*k, D+13+2*k
        t = 16+4*k
        a(f"""  v_cndmask_b32 v12, v{A}, v{B}, s[22:23]
  v_cvt_pk_bf16_f32 v{t}, v{A}, v{A}
  v_cvt_pk_bf16_f32 v{t+1}, v{A}, v{A}
  v_cvt_pk_bf16_f32 v{t+2}, v12, v{B}
  v_cvt_pk_bf16_f32 v{t+3}, v{B}, v{B}
  ds_write_b128 v26, {vr(t,4)} offset:{64+2048+512*k}""")
    a("  s_waitcnt vmcnt(0)")
    if pf:
        nl = 224 if pf == 2 else 112
        a(f"""  s_cmp_ge_u32 s28, 2
  s_cselect_b32 s80, s74, s72
  s_cselect_b32 s81, s75, s73
  s_mov_b32 s82, {1024*7168}
  s_mov_b32 s83, 0x20000
  s_lshr_b32 s20, s2, 3
  s_lshl_b32 s20, s20, 1
  s_and_b32 s21, s28, 1
  s_add_u32 s20, s20, s21""")
        if pf == 1:
            a("  s_lshl_b32 s20, s20, 1\n  s_and_b32 s21, s2, 1\n  s_add_u32 s20, s20, s21")
        a(f"""  s_mul_i32 s20, s20, {(nl//14)*7168}
  s_bfe_u32 s21, s2, 0x20001
  s_mul_i32 s21, s21, 1792
  s_add_u32 s20, s20, s21
  s_movk_i32 s21, 4682
  s_movk_i32 s22, 7168""")
        for q in range((nl+63)//64):
            a(f"""  v_add_u32 v8, {64*q}, v2
  v_min_u32 v8, {nl-1}, v8
  v_mul_u32_u24 v9, s21, v8
  v_lshrrev_b32 v9, 16, v9
  v_mul_u32_u24 v10, 14, v9
  v_sub_u32 v8, v8, v10
  v_mul_u32_u24 v9, s22, v9
  v_lshl_add_u32 v8, v8, 7, v9
  buffer_load_dword v160, v8, s[80:83], s20 offen {pfl}""")
    if pfd:
        a(f"""  s_mov_b32 s84, s76
  s_mov_b32 s85, s77
  s_mov_b32 s86, {3584*2048}
  s_mov_b32 s87, 0x20000
  s_mul_i32 s20, s2, {224*128}
  v_and_b32 v8, 63, v0
  v_min_u32 v8, 55, v8
  s_mul_i32 s21, s28, 56
  v_add_lshl_u32 v8, v8, s21, 7
  buffer_load_dword v160, v8, s[84:87], s20 offen {pfl}""")
    for e in range(8):
        for ch in range(4):
            unp(XF+8*ch+e, XP+2*e+(ch >> 1), ch & 1)
    for ch in range(4):
        t = 8 + 4*(ch % 2)
        for p in range(4):
            a(f"  v_pk_fma_f32 v[16:17], {vr(XF+8*ch+2*p,2)}, {vr(ST+4*p,2)}, {vr(ST+4*p+2,2)}")
            a(f"  v_cvt_pk_bf16_f32 v{t+p}, v16, v17")
        a(f"  ds_write_b128 v30, {vr(t,4)} offset:{ch*USZ+128}")
    a(f"""  v_bfe_u32 v8, v2, 4, 1            ; gamma&1
  v_and_b32 v9, 3, v2               ; c4 / rho
  v_and_b32 v10, 1, v2
  v_lshlrev_b32 v10, 4, v10
  v_lshl_add_u32 v10, v8, 3, v10
  v_and_b32 v8, 2, v2
  v_lshl_add_u32 v10, v8, 1, v10    ; q0 = 16(c4&1) + 8(gamma&1) + 4(c4>>1)
  v_lshrrev_b32 v11, 5, v2          ; kg / h
  v_lshlrev_b32 v12, 5, v11
  v_sub_u32 v10, v10, v12
  v_bfe_u32 v12, v2, 2, 2
  v_lshlrev_b32 v12, 2, v12
  v_sub_u32 v10, v10, v12
  v_add_u32 v10, 48, v10
  v_lshl_add_u32 v24, v10, 1, s19
  v_bfe_u32 v12, v2, 2, 3           ; p
  v_add_u32 v13, v12, v11
  v_mul_u32_u24 v14, 1216, v9
  v_lshl_add_u32 v13, v13, 4, v14
  s_mul_i32 s20, s28, {USZ}
  v_add_u32 v25, s20, v13
  v_and_b32 v12, 31, v2
  v_lshlrev_b32 v12, 2, v12
  s_add_u32 s20, s19, {YOFF}
  v_lshl_add_u32 v26, v11, 12, v12
  v_add_u32 v26, s20, v26
  v_mul_u32_u24 v13, 1024, v11
  v_sub_u32 v27, v12, v13
  s_add_u32 s20, s19, {HHOFF+1040}
  v_add_u32 v27, s20, v27""")
    for dl in range(1, 4):
        a(f"""  v_cmp_le_u32 vcc, {dl}, v9
  s_nop 1
  v_cndmask_b32 v{15+dl}, 0, 1.0, vcc
  v_cndmask_b32 v{18+dl}, 1.0, 0, vcc""")
    a("  s_waitcnt lgkmcnt(0)\n  s_barrier")
    if diag: a("  s_memtime s[36:37]\n  s_waitcnt lgkmcnt(0)")
    S = Stream()
    def AF(c): return 4*c
    def BF(b): return 128 + 4*(b+3)
    def rd(i):
        ops = []
        for k in range(4):
            c = 4*i+k; b = 4*i-3+k
            ops.append((f"  ds_read_b128 {ar(BF(b),4)}, v25 offset:{(7+2*b)*16}", ('B', b)))
            ops.append((f"  ds_read_b64_tr_b16 {ar(AF(c),2)}, v24 offset:{128*c+32}", ('A0', c)))
            ops.append((f"  ds_read_b64_tr_b16 {ar(AF(c)+2,2)}, v24 offset:{128*c}", ('A', c)))
        return ops
    QP = {1: "[3,0,1,2]", 2: "[2,3,0,1]", 3: "[1,2,3,0]"}
    def adds(i):
        ops = []
        D = ACC[i % 2]; H = 22 + (i % 2)
        def dpp(op, dst, src, msk, dl):
            ops.append((f"  {op} v{dst}, v{src}, v{msk} quad_perm:{QP[dl]} row_mask:0xf bank_mask:0xf", 'v'))
        for ip in range(4):
            for dl in range(1, 4):
                dpp("v_fmac_f32_dpp", D+4*ip, D+4*ip+dl, 15+dl, dl)
                if ip < 3: dpp("v_fmac_f32_dpp", D+4*ip+4, D+4*ip+dl, 18+dl, dl)
                else: dpp("v_mul_f32_dpp" if dl == 1 else "v_fmac_f32_dpp", H, D+4*ip+dl, 18+dl, dl)
            if ip % 2 == 1:
                ops.append((f"  ds_write2st64_b32 v26, v{D+4*ip-4}, v{D+4*ip} offset0:{4*ip-4} offset1:{4*ip}", 'w'))
        ops.append((f"  ds_write_b32 v27, v{H} offset:{128*i}", 'w'))
        ops.append((f"  v_add_u32 v26, 128, v26", 'v'))
        return ops
    for t, tag in rd(0): S.add(t, 'lg', tag)
    for i in range(8):
        order = list(range(4, 4*i)) + list(range(0, min(4, 4*i))) + list(range(4*i, 4*i+4))
        fill = (rd(i+1) if i < 7 else [])
        nslots_before_add = len(fill)
        if i > 0: fill = fill + adds(i-1)
        n = len(order)
        per = -(-len(fill)//n)
        issued = 0
        for k, c in enumerate(order):
            b = 4*i-c
            S.wait(lg=[('A', c), ('B', b)])
            S.add(f"  v_mfma_f32_32x32x16_bf16 {vr(ACC[i%2],16)}, {ar(AF(c),4)}, {ar(BF(b),4)}, {vr(ACC[i%2],16) if k else 0}")
            issued += 1
            cnt = 0
            while fill and cnt < per:
                t, tag = fill[0]
                if tag in ('v', 'w') and issued < 13: break
                fill.pop(0); S.add(t, None if tag == 'v' else 'lg', None if tag == 'w' else tag); cnt += 1; issued += 1
        for t, tag in fill: S.add(t, None if tag == 'v' else 'lg', None if tag == 'w' else tag)
    S.add("  s_nop 11")
    for t, tag in adds(7): S.add(t, None if tag == 'v' else 'lg', None)
    res = S.resolve()
    emit(a, res)
    a(f"""  v_add_u32 v8, {REG}, v31
  v_add_u32 v9, {2*REG}, v31
  v_add_u32 v10, {3*REG}, v31
  s_lshl_b32 s20, s28, 13
  v_lshl_add_u32 v11, v2, 4, s20
  s_and_b32 s20, s26, 1
  s_lshl_b32 s20, s20, 3
  v_add_u32 v11, s20, v11
  s_lshr_b32 s20, s26, 1
  s_lshl_b32 s20, s20, 15
  s_add_u32 s21, s20, 4096
  s_waitcnt lgkmcnt(0)
  s_barrier""")
    if diag: a("  s_memtime s[38:39]\n  s_waitcnt lgkmcnt(0)")
    YR = 32
    for ch in range(4):
        a(f"  ds_read_b32 v{64+2*ch}, v{[31,8,9,10][ch]} offset:8192")
        a(f"  ds_read_b32 v{65+2*ch}, v{[31,8,9,10][ch]} offset:{8192+1040}")
    for p in range(4):
        for ch in range(4):
            ad = [31, 8, 9, 10][ch]
            a(f"  ds_read2st64_b32 {vr(YR+8*ch+2*p,2)}, v{ad} offset0:{8*p} offset1:{8*p+4}")
        if p == 0:
            a("  s_waitcnt lgkmcnt(4)")
            for ch in range(4):
                a(f"  v_add_f32 v{XF+8*ch}, v{XF+8*ch}, v{64+2*ch}\n  v_add_f32 v{XF+8*ch+4}, v{XF+8*ch+4}, v{65+2*ch}")
    for p in range(4):
        a(f"  s_waitcnt lgkmcnt({12-4*p})")
        for ch in range(4):
            a(f"  v_pk_add_f32 {vr(YR+8*ch+2*p,2)}, {vr(YR+8*ch+2*p,2)}, {vr(XF+8*ch+2*p,2)}")
        for k in range(2):
            e = 2*p+k; t = 12+2*(e % 4)
            a(f"""  v_cvt_pk_bf16_f32 v{t}, v{YR+e}, v{YR+8+e}
  v_cvt_pk_bf16_f32 v{t+1}, v{YR+16+e}, v{YR+24+e}
  buffer_store_dwordx2 {vr(t,2)}, v11, s[12:15], s{20+e//4} offen offset:{1024*(e%4)} {stflags}""")
    if diag:
        a("  s_waitcnt vmcnt(0)\n  s_memtime s[50:51]")
        diag_store(a, name, dbg_idx, [30, 32, 34, 36, 38, 50], 24)
    a(f"L_{name}_end:\n  s_endpgm")
    return a.text(), kernel_desc(name, 164+256, 96, 164), f"; @launch kernel={name} grid=(256,1,1) block=(256,1,1) lds={UTOT+4*REG}"

def gen_ln2(name="ln2_kernel", diag=False, dbg_idx=0):
    a = Asm()
    a(kernel_head(name))
    a(f"""  s_cmp_ge_u32 s2, 256
  s_cbranch_scc1 L_{name}_end""")
    if diag: a("  s_memrealtime s[40:41]\n  s_memtime s[30:31]")
    a(f"""  s_load_dwordx2 s[24:25], s[0:1], 120
  v_lshrrev_b32 v1, 3, v0
  v_and_b32 v2, 7, v0
  v_lshlrev_b32 v3, 15, v1
  v_lshl_add_u32 v3, v2, 4, v3
  s_lshl_b32 s3, s2, 7
  s_add_u32 s16, s3, {1<<20}
  s_add_u32 s17, s3, {2<<20}
  s_add_u32 s18, s3, {3<<20}
  s_waitcnt lgkmcnt(0)
  s_add_u32 s4, s24, {HB_OFF}
  s_addc_u32 s5, s25, 0
  s_mov_b32 s6, {4<<20}
  s_mov_b32 s7, 0x20000
  buffer_load_dwordx4 v[8:11], v3, s[4:7], s3 offen
  buffer_load_dwordx4 v[12:15], v3, s[4:7], s16 offen
  buffer_load_dwordx4 v[16:19], v3, s[4:7], s17 offen
  buffer_load_dwordx4 v[20:23], v3, s[4:7], s18 offen
  s_add_u32 s8, s24, {HN_OFF}
  s_addc_u32 s9, s25, 0
  s_mov_b32 s10, {4<<20}
  s_mov_b32 s11, 0x20000
  v_lshrrev_b32 v6, 6, v0
  v_lshlrev_b32 v6, 5, v6
  v_lshl_add_u32 v6, v2, 2, v6
  v_lshlrev_b32 v7, 2, v2
  s_waitcnt vmcnt(0)""")
    for i in range(16):
        a(f"  v_lshlrev_b32 v{32+2*i}, 16, v{8+i}\n  v_and_b32 v{33+2*i}, 0xffff0000, v{8+i}")
    def red(off):
        a(f"""  v_add_f32 v24, v4, v5
  s_nop 1
  v_add_f32_dpp v24, v24, v24 row_ror:8 row_mask:0xf bank_mask:0xf""")
        for sw in ["v_permlane16_swap_b32", "v_permlane32_swap_b32"]:
            a(f"  v_mov_b32 v26, v24\n  s_nop 1\n  {sw} v26, v24\n  v_add_f32 v24, v24, v26")
        a(f"""  ds_write_b32 v6, v24 offset:{off}
  s_waitcnt lgkmcnt(0)
  s_barrier
  ds_read2_b32 v[26:27], v7 offset0:{off//4} offset1:{off//4+8}
  ds_read2_b32 v[28:29], v7 offset0:{off//4+16} offset1:{off//4+24}
  s_waitcnt lgkmcnt(0)
  v_pk_add_f32 v[26:27], v[26:27], v[28:29]
  v_add_f32 v24, v26, v27
  v_mul_f32 v24, 0x3a800000, v24""")
    a("  v_pk_add_f32 v[4:5], v[32:33], v[34:35]")
    for i in range(2, 16): a(f"  v_pk_add_f32 v[4:5], v[4:5], {vr(32+2*i,2)}")
    red(0)
    a("  v_mov_b32 v30, v24")
    for i in range(16):
        a(f"  v_pk_add_f32 v[26:27], {vr(32+2*i,2)}, v[30:31] op_sel:[0,0] op_sel_hi:[1,0] neg_lo:[0,1] neg_hi:[0,1]")
        a("  v_pk_mul_f32 v[4:5], v[26:27], v[26:27]" if i == 0 else "  v_pk_fma_f32 v[4:5], v[26:27], v[26:27], v[4:5]")
    red(128)
    ln_finish(a, 30, 24, 4, 5, 26)
    for i in range(16):
        a(f"  v_pk_fma_f32 {vr(32+2*i,2)}, {vr(32+2*i,2)}, v[4:5], v[4:5] op_sel:[0,0,1] op_sel_hi:[1,0,1]")
        a(f"  v_cvt_pk_bf16_f32 v{8+i}, v{32+2*i}, v{33+2*i}")
        if i % 4 == 3:
            a(f"  buffer_store_dwordx4 {vr(8+i-3,4)}, v3, s[8:11], s{[3,16,17,18][i//4]} offen")
    if diag:
        a("  s_memtime s[32:33]\n  s_waitcnt vmcnt(0)\n  s_memtime s[34:35]")
        diag_store(a, name, dbg_idx, [30, 32, 34, 34, 34], 24)
    a(f"L_{name}_end:\n  s_endpgm")
    return a.text(), kernel_desc(name, 64), f"; @launch kernel={name} grid=(256,1,1) block=(256,1,1) lds=256"
```

```python
from asmgen import *
from sched import *
from layout import *
from g1 import diag_store, assemble_file

def gen_g2(name="g2_kernel", diag=False, P=4, AHEAD=3, dbg_idx=0, nobar=False, nodma=False, nox=False, nomfma=False, stflags="", perm=False, patch=0, wlin=False, xlin=False, wfl="", xfl=""):
    a = Asm()
    SLOT = 16384
    NS = 2*P
    NST = 28
    assert NST % P == 0
    RING = AHEAD+1
    assert 16 % RING == 0
    ACC = 32
    def acc(j, n): return ACC + (j*2+n)*4
    AF = 0
    XR = 4*RING
    def xreg(st, ks, n): return XR + (((st % P)*4+ks)*2+n)*4
    nagpr = XR + 32*P
    tokmap = "  v_lshlrev_b32 v10, 11, v13"
    if perm:
        tokmap = """  v_and_b32 v10, 0x603, v13
  v_bfe_u32 v20, v13, 2, 4
  v_lshl_or_b32 v10, v20, 5, v10
  v_bfe_u32 v20, v13, 6, 3
  v_lshl_or_b32 v10, v20, 2, v10
  v_lshlrev_b32 v10, 11, v10"""
    nstep = (128 if perm else 16)*2048
    if patch == 0:
        patchcode = """  s_lshr_b32 s3, s26, 1
  s_lshl_b32 s3, s3, 2
  s_and_b32 s29, s27, 3
  s_add_u32 s3, s3, s29             ; tt
  s_and_b32 s26, s26, 1
  s_lshl_b32 s26, s26, 3
  s_lshr_b32 s27, s27, 2
  s_add_u32 s26, s26, s27           ; ct"""
    elif patch == 1:
        patchcode = """  s_lshl_b32 s3, s26, 1
  s_and_b32 s29, s27, 1
  s_add_u32 s3, s3, s29             ; tt
  s_lshr_b32 s26, s27, 1            ; ct"""
    elif patch == 2:
        patchcode = """  s_lshr_b32 s3, s26, 1
  s_lshl_b32 s3, s3, 2
  s_and_b32 s29, s27, 3
  s_add_u32 s3, s3, s29             ; tt
  s_and_b32 s26, s26, 1
  s_lshr_b32 s27, s27, 2
  s_lshl_b32 s27, s27, 1
  s_add_u32 s26, s26, s27           ; ct"""
    elif patch == 3:
        patchcode = """  s_lshr_b32 s3, s26, 2
  s_lshl_b32 s3, s3, 3
  s_and_b32 s29, s27, 7
  s_add_u32 s3, s3, s29             ; tt
  s_and_b32 s26, s26, 3
  s_lshl_b32 s26, s26, 2
  s_lshr_b32 s27, s27, 3
  s_add_u32 s26, s26, s27           ; ct"""
    a(kernel_head(name))
    a(f"""  s_cmp_ge_u32 s2, 256
  s_cbranch_scc1 L_{name}_end""")
    if diag: a("  s_memrealtime s[40:41]\n  s_memtime s[30:31]")
    a(f"""  s_load_dwordx4 s[20:23], s[0:1], 96
  s_load_dwordx2 s[24:25], s[0:1], 120
  v_lshrrev_b32 v10, 6, v0
  v_and_b32 v11, 63, v0
  s_and_b32 s26, s2, 7
  s_lshr_b32 s27, s2, 3
  v_readfirstlane_b32 s28, v10
{patchcode}
  s_lshl_b32 s3, s3, 7              ; t0
  s_lshl_b32 s29, s28, 5
  s_add_u32 s3, s3, s29             ; t0 + 32 w
  v_bfe_u32 v12, v11, 3, 2          ; p1p0
  v_bfe_u32 v13, v11, 5, 1          ; p2
  v_lshl_add_u32 v12, v13, 3, v12
  v_add_lshl_u32 v12, v12, s29, 11  ; row*2048
  v_bfe_u32 v14, v11, 4, 1          ; p1
  v_lshl_add_u32 v14, v13, 2, v14   ; s
  v_and_b32 v15, 7, v11
  v_xor_b32 v14, v14, v15
  v_lshl_add_u32 v1, v14, 4, v12
  v_add_u32 v2, {4*2048}, v1
  v_add_u32 v3, {16*2048}, v1
  v_add_u32 v4, {20*2048}, v1
  ; X voffset v8
  v_lshrrev_b32 v12, 4, v11         ; g
  v_and_b32 v13, 15, v11
  v_add_u32 v13, s3, v13            ; token
  v_lshlrev_b32 v14, 11, v12
  v_add_lshl_u32 v8, v14, v13, 4
  v_lshrrev_b32 v14, 1, v12
  v_lshlrev_b32 v15, 12, v14
  v_add_lshl_u32 v9, v15, v13, 4
  v_and_b32 v15, 1, v12
  v_lshl_add_u32 v9, v15, 3, v9
{tokmap}
  v_lshl_add_u32 v10, v12, 4, v10
  v_bfe_u32 v20, v11, 2, 2          ; r
  v_lshl_add_u32 v21, v15, 2, v20   ; 4 g0 + r
  v_lshl_add_u32 v21, v14, 4, v21   ; pos
  v_lshlrev_b32 v21, 7, v21
  v_lshrrev_b32 v20, 1, v20         ; r1
  v_lshl_add_u32 v20, v15, 2, v20   ; r1 + 4 g0
  v_and_b32 v22, 2, v11
  v_or_b32 v20, v20, v22            ; + 2 c1
  v_lshl_add_u32 v21, v20, 4, v21
  v_and_b32 v22, 1, v11
  v_lshl_add_u32 v16, v22, 3, v21
  v_xor_b32 v17, 16, v16
  v_xor_b32 v18, 64, v16
  v_xor_b32 v19, 0x50, v16
  s_waitcnt lgkmcnt(0)
  s_lshl_b32 s27, s26, 7
  s_add_u32 s4, s20, s27
  s_addc_u32 s5, s21, 0
  s_sub_u32 s6, {3584*2048}, s27
  s_mov_b32 s7, 0x20000
  s_add_u32 s8, s24, {ACT_OFF}
  s_addc_u32 s9, s25, 0
  s_mov_b32 s10, {ACT_SIZE}
  s_mov_b32 s11, 0x20000
  s_add_u32 s12, s22, s27
  s_addc_u32 s13, s23, 0
  s_sub_u32 s14, {4<<20}, s27
  s_mov_b32 s15, 0x20000
  s_add_u32 s48, s24, {HB_OFF}
  s_addc_u32 s49, s25, 0
  s_mov_b32 s50, {4<<20}
  s_mov_b32 s51, 0x20000
  s_mov_b32 s16, 0                  ; W soffset
  s_mov_b32 s17, 0                  ; X soffset
  s_lshl_b32 s18, s28, 12
  s_lshl_b32 s27, s26, 18           ; ct*8*32768""")
    if wlin:
        a(f"""  v_lshlrev_b32 v1, 4, v11
  s_lshl_b32 s29, s28, 12
  v_add_u32 v1, s29, v1
  v_add_u32 v2, 1024, v1
  v_add_u32 v3, 2048, v1
  v_add_u32 v4, 3072, v1
  s_mul_i32 s29, s26, {3584*128}
  s_add_u32 s4, s20, s29
  s_addc_u32 s5, s21, 0
  s_sub_u32 s6, {3584*2048}, s29""")
    if xlin:
        a(f"""  v_lshlrev_b32 v8, 4, v11
  s_lshl_b32 s29, s3, 6
  v_add_u32 v8, s29, v8""")
    WSTEP = 16384 if wlin else 128*2048
    XO = 1024 if xlin else 256
    S = Stream()
    pend = []
    inloop = [False]
    def dma(st, n):
        S.add(f"  s_add_u32 m0, s18, {(st%P)*SLOT + n*1024}")
        t = f"  buffer_load_dwordx4 v{1+n}, s[4:7], s16 offen {wfl} lds"
        if nodma and inloop[0]: t = "  s_nop 0"
        pend.append((t, ('W', st, n)))
    def xload(st, ks, n):
        t = f"  buffer_load_dwordx4 {ar(xreg(st,ks,n),4)}, v8, s[8:11], s17 offen offset:{XO*n} {xfl}"
        if nox and inloop[0]: t = "  s_nop 0"
        S.add(t, 'vm', ('X', st, ks, n))
        if n == 1: S.add(f"  s_add_u32 s17, s17, {4*32768}")
    def flush_pend():
        while pend:
            t, tag = pend.pop(0)
            S.add(t, 'vm', tag)
            if tag[2] == 3:
                S.add(f"  s_add_u32 s16, s16, {WSTEP}")
                if tag[1] % P == P-1:
                    S.add(f"  s_xor_b32 s18, s18, {P*SLOT}")
    def trread(st, f):
        ks, j = divmod(f, 4)
        r = AF + 4*(f % RING)
        for jj in range(2):
            off = (st%P)*SLOT + (32*ks+8*jj)*128
            S.add(f"  ds_read_b64_tr_b16 {ar(r+2*jj,2)}, v{16+j} offset:{off}", 'lg', ('A', st, f, jj))
    UB = [0, 1, 4, 5]
    for st in range(P):
        for n in range(4):
            dma(st, n); S.add("  s_nop 0"); flush_pend()
        for ks in range(4):
            if st == P-1 and ks == 3: continue
            for n in range(2): xload(st, ks, n)
        if st == 0:
            for j in range(4):
                S.add(f"  s_add_u32 s29, s27, {UB[j]*32768}")
                for n in range(2):
                    S.add(f"  buffer_load_dwordx2 {vr(acc(j,n)+2,2)}, v9, s[48:51], s29 offen offset:{256*n}", 'vm', ('H', j, n))
    S.wait(vm=('H', 3, 1))
    for j in range(4):
        for n in range(2):
            c = acc(j, n)
            S.add(f"""  v_lshlrev_b32 v{c}, 16, v{c+2}
  v_and_b32 v{c+1}, 0xffff0000, v{c+2}
  v_lshlrev_b32 v{c+2}, 16, v{c+3}
  v_and_b32 v{c+3}, 0xffff0000, v{c+3}""")
    S.add("  s_barrier")
    if diag: S.add("  s_memtime s[32:33]\n  s_waitcnt lgkmcnt(0)")
    for f in range(AHEAD): trread(0, f)
    S.add("  s_mov_b32 s19, 0")
    inloop[0] = True
    for st in range(NST):
        if st % P == 0: S.mark(('body', st//P))
        acts = {}
        for ks in range(4):
            s2, k2 = (st+P-1, 3) if ks == 0 else (st+P, ks-1)
            acts.setdefault((4*ks+0, 1), []).append(('x', s2, k2, 0))
            acts.setdefault((4*ks+1, 1), []).append(('x', s2, k2, 1))
            acts.setdefault((4*ks+2, 0), []).append(('d', st+P, ks))
        for f in range(16):
            ks, j = divmod(f, 4)
            fa = f + AHEAD
            ring = AF + 4*(f % RING)
            if fa == 16:
                S.wait(vm=('W', st+1, 3))
                if not nobar: S.add("  s_barrier")
                if st % P == P-1:
                    for q in range(4): S.add(f"  v_xor_b32 v{16+q}, {P*SLOT}, v{16+q}")
            for n in range(2):
                if n == 0:
                    S.wait(lg=('A', st, f, 1), vm=(('X', st, ks, 1) if j == 0 else None))
                c = acc(j, n)
                if not nomfma:
                    S.add(f"  v_mfma_f32_16x16x32_bf16 {vr(c,4)}, {ar(ring,4)}, {ar(xreg(st,ks,n),4)}, {vr(c,4)}")
                else: S.add("  s_nop 0")
                if n == 0:
                    if fa < 16: trread(st, fa)
                    else: trread(st+1, fa-16)
                flush_pend()
                for act in acts.get((f, n), []):
                    if act[0] == 'x': xload(act[1], act[2], act[3])
                    else: dma(act[1], act[2])
        assert not pend
        if st % P == P-1:
            S.add(f"  s_add_u32 s19, s19, 1\n  s_cmp_lt_u32 s19, {NST//P}\n  s_cbranch_scc1 L_{name}_loop")
    S.mark('end')
    segs = split_marks(S.resolve())
    emit(a, segs[0][1])
    a("  .p2align 6")
    a(f"L_{name}_loop:")
    emit(a, merge_iters([s[1] for s in segs[1:1+NST//P]]))
    a("  s_waitcnt vmcnt(0) lgkmcnt(0)")
    if diag: a("  s_memtime s[34:35]")
    a("  s_nop 6")
    for n in range(2):
        for jp in range(2):
            Pp = 20 + 4*jp
            A = acc(2*jp, n); B = acc(2*jp+1, n)
            a(f"""  v_cvt_pk_bf16_f32 v{Pp}, v{A}, v{A+1}
  v_cvt_pk_bf16_f32 v{Pp+1}, v{A+2}, v{A+3}
  v_cvt_pk_bf16_f32 v{Pp+2}, v{B}, v{B+1}
  v_cvt_pk_bf16_f32 v{Pp+3}, v{B+2}, v{B+3}
  s_nop 1
  v_permlane16_swap_b32 v{Pp}, v{Pp+2}
  v_permlane16_swap_b32 v{Pp+1}, v{Pp+3}
  s_mov_b32 s16, {n*nstep}
  buffer_store_dwordx4 {vr(Pp,4)}, v10, s[12:15], s16 offen offset:{64*jp} {stflags}""")
    if diag:
        a("  s_memtime s[36:37]\n  s_waitcnt vmcnt(0)\n  s_memtime s[38:39]")
        diag_store(a, name, dbg_idx, [30, 32, 34, 36, 38], 24)
    a(f"L_{name}_end:\n  s_endpgm")
    desc = kernel_desc(name, 64+nagpr, 96, 64)
    return a.text(), desc, f"; @launch kernel={name} grid=(256,1,1) block=(256,1,1) lds={NS*SLOT}"

if __name__ == "__main__":
    parts = [gen_g2("a_kernel", diag=True, dbg_idx=0, P=2),
             gen_g2("b_kernel", diag=True, dbg_idx=1, P=2, wlin=True),
             gen_g2("c_kernel", diag=True, dbg_idx=2, P=2, xlin=True),
             gen_g2("d_kernel", diag=True, dbg_idx=3, P=2, wlin=True, xlin=True),
             gen_g2("e_kernel", diag=True, dbg_idx=4, P=2, wfl="sc1"),
             gen_g2("f_kernel", diag=True, dbg_idx=5, P=2, wfl="sc1", xfl="sc1"),
             gen_g2("g_kernel", diag=True, dbg_idx=6, P=2, wfl="nt", xfl="nt"),
             gen_g2("h_kernel", diag=True, dbg_idx=7, P=4, wlin=True, xlin=True),
             gen_g2("i_kernel", diag=True, dbg_idx=8, P=4, wlin=True, xlin=True, nomfma=True),
             ]
    open("g2test.s", "w").write(assemble_file(parts))
```

```python
from asmgen import *
from sched import *
from layout import *
from g1 import diag_store
from conv import wave_allsum

USZ = 4864
UTOT = 4*USZ
TROW = 528
REG = 64*TROW
YOFF = 4224
HHOFF = YOFF + 8192
CSOFF = HHOFF + 2112

def ln_pack(a, s1, s2, out, t):
    a(f"""  v_mul_f32 v{s1}, 0x3a800000, v{s1}
  v_mul_f32 v{s2}, 0x3a800000, v{s2}
  v_fma_f32 v{s2}, -v{s1}, v{s1}, v{s2}
  v_max_f32 v{s2}, 0, v{s2}
  v_cvt_pk_bf16_f32 v{t}, v{s2}, v{s2}
  v_lshlrev_b32 v{t}, 16, v{t}
  v_add_f32 v{t}, 0x3727c5ac, v{t}
  v_cvt_pk_bf16_f32 v{t}, v{t}, v{t}
  v_lshlrev_b32 v{t}, 16, v{t}
  v_sqrt_f32 v{t}, v{t}
  s_nop 0
  v_cvt_pk_bf16_f32 v{out}, v{s1}, v{t}""")

def gen_a(name="a_kernel", diag=False, dbg_idx=0, selfpf=True, pfnext=(), sleep=2, NB1=3, XSP=7, CS0=4, CSP=14):
    a = Asm()
    a(kernel_head(name))
    a(f"""  s_cmp_ge_u32 s2, 256
  s_cbranch_scc1 L_{name}_end""")
    if diag: a("  s_memrealtime s[40:41]\n  s_memtime s[30:31]")
    XP = 64
    ST = 80
    XF = 96
    ACC = [128, 144]
    RW = 164
    a(f"""  s_load_dwordx16 s[52:67], s[0:1], 0
  s_load_dwordx2 s[68:69], s[0:1], 64
  s_load_dwordx4 s[72:75], s[0:1], 80
  s_load_dwordx2 s[24:25], s[0:1], 120""")
    a(f"""  v_lshrrev_b32 v1, 6, v0
  v_and_b32 v2, 63, v0""")
    if selfpf:
        a(f"""  s_getpc_b64 s[76:77]
  v_lshlrev_b32 v3, 6, v0
  global_load_dword v240, v3, s[76:77]""")
    a(f"""  s_and_b32 s3, s2, 7
  v_readfirstlane_b32 s28, v1       ; wave
  s_lshl_b32 s3, s3, 5
  s_lshr_b32 s26, s2, 3
  s_add_u32 s26, s26, s3            ; cg
  s_lshl_b32 s27, s26, 2
  s_add_u32 s27, s27, s28           ; d
  s_lshl_b32 s29, s27, 8
  v_lshl_add_u32 v3, v2, 2, s29
  s_lshr_b32 s29, s27, 1
  s_lshl_b32 s29, s29, 2
  s_lshr_b32 s20, s2, 2
  s_lshl_b32 s20, s20, 5
  s_and_b32 s21, s2, 3
  s_add_u32 s20, s20, s21
  s_lshl_b32 s21, s28, 3
  s_add_u32 s20, s20, s21
  s_lshl_b32 s20, s20, 11
  s_add_u32 s21, s20, {4*2048}
  v_lshlrev_b32 v14, 4, v2
  v_lshrrev_b32 v4, 2, v0           ; tb
  v_and_b32 v5, 3, v0               ; rho
  v_lshl_add_u32 v6, v4, 5, v5
  v_lshlrev_b32 v6, 11, v6
  s_lshl_b32 s18, s26, 3
  s_mov_b32 s6, {4<<20}
  s_mov_b32 s7, 0x20000
  s_mov_b32 s22, {NONCE_OFF}
  s_waitcnt lgkmcnt(0)
  s_mov_b32 s4, s52
  s_mov_b32 s5, s53
  s_load_dword s70, s[24:25], s22
  s_load_dword s16, s[66:67], s29
  s_load_dword s17, s[68:69], s29
  buffer_load_dwordx4 {vr(RW,4)}, v14, s[4:7], s20 offen
  buffer_load_dwordx4 {vr(RW+4,4)}, v14, s[4:7], s20 offen offset:1024
  buffer_load_dwordx4 {vr(RW+8,4)}, v14, s[4:7], s21 offen
  buffer_load_dwordx4 {vr(RW+12,4)}, v14, s[4:7], s21 offen offset:1024
  global_load_dword v8, v3, s[54:55]
  global_load_dword v9, v3, s[56:57]
  global_load_dword v10, v3, s[58:59]
  global_load_dword v11, v3, s[60:61]
  global_load_dword v12, v3, s[62:63]
  global_load_dword v13, v3, s[64:65]""")
    xl = list(range(8))
    def xstr():
        e = xl.pop(0)
        a(f"  buffer_load_dwordx2 {vr(XP+2*e,2)}, v6, s[4:7], s18 offen")
        if e < 7: a(f"  s_add_u32 s18, s18, 8192")
    if NB1:
        a("  s_barrier")
        for _ in range(NB1): xstr()
    a(f"""  s_add_u32 s8, s24, {ST1_OFF}
  s_addc_u32 s9, s25, 0
  s_mov_b32 s10, 16384
  s_mov_b32 s11, 0x20000
  s_add_u32 s12, s24, {HB_OFF}
  s_addc_u32 s13, s25, 0
  s_mov_b32 s14, {4<<20}
  s_mov_b32 s15, 0x20000
  s_mul_i32 s19, s28, {REG}
  s_add_u32 s19, s19, {UTOT}
  v_lshl_add_u32 v7, v2, 3, s19
  v_mov_b32 v20, 0
  v_mov_b32 v21, 0
  v_mov_b32 v22, 0
  v_mov_b32 v23, 0
  v_bfe_u32 v14, v0, 3, 4
  v_mul_u32_u24 v14, 1216, v14
  v_and_b32 v15, 7, v0
  v_lshl_add_u32 v14, v15, 4, v14
  ds_write_b128 v14, v[20:23]
  v_mul_u32_u24 v30, 1216, v5
  v_lshl_add_u32 v30, v4, 4, v30
  v_lshlrev_b32 v31, 2, v0
  v_add_u32 v31, {UTOT+YOFF}, v31
  v_mov_b32 v24, 0
  v_mov_b32 v25, 0
  v_mov_b32 v26, 0
  v_mov_b32 v27, 0
  s_mov_b32 s22, 0x3f803f80
  s_lshl_b32 s20, s2, 6
  s_lshl_b32 s21, s28, 4
  s_add_u32 s20, s20, s21
  s_waitcnt vmcnt({8+NB1})""")
    for row in range(2):
        if row: a(f"  s_waitcnt vmcnt({6+NB1})")
        for i in range(8):
            r = RW+8*row+i
            a(f"  v_dot2c_f32_bf16 v{24+row}, s22, v{r}\n  v_dot2c_f32_bf16 v{26+row}, v{r}, v{r}")
    if diag: a("  s_memtime s[32:33]")
    a("  s_nop 1")
    wave_allsum(a, [24, 25, 26, 27], [16, 17, 18, 19])
    ln_pack(a, 24, 26, 16, 28)
    ln_pack(a, 25, 27, 18, 28)
    a(f"""  s_waitcnt lgkmcnt(0)
  s_add_u32 s70, s70, 1
  v_mov_b32 v17, s70
  v_mov_b32 v19, s70
  s_mov_b64 exec, 1
  buffer_store_dwordx4 v[16:19], v20, s[8:11], s20 offen sc1
  s_mov_b64 exec, -1
  s_add_u32 s84, s24, {ZERO_OFF}
  s_addc_u32 s85, s25, 0
  s_mov_b32 s86, {ZERO_SIZE}
  s_mov_b32 s87, 0x20000
  s_mul_i32 s20, s2, 320
  v_min_u32 v14, 79, v0
  v_lshlrev_b32 v14, 2, v14
  buffer_store_dword v20, v14, s[84:87], s20 offen
  s_and_b32 s29, s28, 1
  s_lshl_b32 s29, s29, 4
  s_lshr_b32 s16, s16, s29
  s_lshl_b32 s16, s16, 16           ; log_dt
  s_lshr_b32 s17, s17, s29
  s_lshl_b32 s17, s17, 16           ; Dskip
  v_mov_b32 v14, 0x3fb8aa3b
  v_mul_f32 v14, s16, v14
  v_exp_f32 v14, v14
  s_nop 0
  v_cvt_pk_bf16_f32 v14, v14, v14
  v_lshlrev_b32 v14, 16, v14        ; dt
  v_mul_f32 v15, 0x3fb8aa3b, v14    ; dt*log2e
  v_mul_f32 v16, 0.15915494, v14    ; dt/2pi
  s_waitcnt vmcnt({2+NB1})""")
    def unp(dst, src, n):
        a(f"  v_lshlrev_b32 v{dst}, 16, v{src}" if n == 0 else f"  v_and_b32 v{dst}, 0xffff0000, v{src}")
    for n in range(2):
        unp(32+n, 8, n); unp(34+n, 9, n); unp(36+2*n, 10, n); unp(37+2*n, 11, n); unp(40+2*n, 12, n); unp(41+2*n, 13, n)
    a("""  v_mul_f32 v32, v32, v15
  v_mul_f32 v33, v33, v15
  v_mul_f32 v34, v34, v16
  v_mul_f32 v35, v35, v16
  v_pk_mul_f32 v[36:37], v[36:37], v[14:15] op_sel:[0,0] op_sel_hi:[1,0]
  v_pk_mul_f32 v[38:39], v[38:39], v[14:15] op_sel:[0,0] op_sel_hi:[1,0]""")
    T = 16
    def cmul(dst, x, w):
        for n in range(2):
            a(f"  v_pk_mul_f32 {vr(T+2*n,2)}, {vr(x+2*n,2)}, {vr(w+2*n,2)} op_sel:[0,0] op_sel_hi:[1,0]")
        for n in range(2):
            a(f"  v_pk_fma_f32 {vr(dst+2*n,2)}, {vr(x+2*n,2)}, {vr(w+2*n,2)}, {vr(T+2*n,2)} op_sel:[1,1,0] op_sel_hi:[0,1,1] neg_lo:[1,0,0]")
    def cexp(dst, l):
        lit = {1: "1.0", 8: "0x41000000", 256: "0x43800000"}[l]
        for n in range(2):
            a(f"  v_mul_f32 v{T+n}, {lit}, v{32+n}\n  v_mul_f32 v{T+2+n}, {lit}, v{34+n}")
        for n in range(2):
            a(f"  v_exp_f32 v{T+n}, v{T+n}\n  v_fract_f32 v{T+2+n}, v{T+2+n}")
        for n in range(2):
            a(f"  v_cos_f32 v{dst+2*n}, v{T+2+n}\n  v_sin_f32 v{dst+2*n+1}, v{T+2+n}")
        a("  s_nop 0")
        for n in range(2):
            a(f"  v_pk_mul_f32 {vr(dst+2*n,2)}, {vr(dst+2*n,2)}, {vr(T,2)} op_sel:[0,{n}] op_sel_hi:[1,{n}]")
    tog = [0]; cnt = [0]
    def emitrow(x, rows, neg):
        t = 20 + 2*tog[0]; tog[0] ^= 1
        s = "-" if neg else ""
        a(f"  v_cvt_pk_bf16_f32 v{t}, v{x}, {s}v{x+1}\n  v_cvt_pk_bf16_f32 v{t+1}, v{x+2}, {s}v{x+3}")
        for r in rows: a(f"  ds_write_b64 v7, {vr(t,2)} offset:{r*TROW}")
        cnt[0] += 1
        if xl and cnt[0] % XSP == 1: xstr()
    C, E1, E8, E256, Z, W, E2 = 36, 44, 48, 52, 56, 60, 40
    cmul(C, 36, 40)
    cexp(E1, 1); cexp(E8, 8); cexp(E256, 256)
    rowmap = {}
    for h, lst in enumerate([[0,1,2,3,256,258,260,None,512,516,768,772,1024,1032,1280,1288],
                             [4,5,6,7,260,262,264,None,516,520,772,776,1536,1544,1792,1800]]):
        for k, v in enumerate(lst):
            if v is not None: rowmap.setdefault(v, []).append(8*(k//4) + 4*h + (k % 4))
    emitrow(C, rowmap[0], True)
    cmul(W, C, E1); emitrow(W, rowmap[1], True)
    for l in range(2, 8):
        cmul(W, W, E1); emitrow(W, rowmap[l], True)
    cmul(E2, E1, E1)
    cmul(E1, E2, E2)
    E4 = E1
    cmul(Z, C, E256); emitrow(Z, rowmap[256], True)
    cmul(W, Z, E2); emitrow(W, rowmap[258], True)
    for l in (260, 262, 264):
        cmul(W, W, E2); emitrow(W, rowmap[l], True)
    for b in (512, 768):
        cmul(Z, Z, E256); emitrow(Z, rowmap[b], True)
        cmul(W, Z, E4); emitrow(W, rowmap[b+4], True)
        cmul(W, W, E4); emitrow(W, rowmap[b+8], True)
    for b in (1024, 1280, 1536, 1792):
        cmul(Z, Z, E256); emitrow(Z, rowmap[b], True)
        cmul(W, Z, E8); emitrow(W, rowmap[b+8], True)
    a(f"""  v_mov_b32 v20, 0x3f80
  v_mov_b32 v21, 0x3f80
  ds_write_b64 v7, v[20:21] offset:{32*TROW}""")
    tog[0] = 1
    emitrow(E8, [33], False)
    cmul(W, E8, E8); emitrow(W, [34], False)
    for j in range(3, 32):
        cmul(W, W, E8); emitrow(W, [32+j], False)
    while xl: xstr()
    a("  v_lshlrev_b32 v3, 6, v0")
    def granloads():
        for i in range(4):
            a(f"  buffer_load_dwordx4 {vr(ST+4*i,4)}, v3, s[8:11], 0 offen offset:{16*i} sc1")
    granloads()
    a(f"""  v_and_b32 v24, 31, v2
  v_mul_u32_u24 v24, {TROW}, v24
  v_lshrrev_b32 v25, 5, v2          ; h / kg
  v_lshl_add_u32 v24, v25, 4, v24
  v_add_u32 v24, s19, v24""")
    S = Stream()
    for s in range(16):
        S.add(f"  ds_read_b128 {ar(8*s,4)}, v24 offset:{32*s}", 'lg', ('a', s))
        S.add(f"  ds_read_b128 {ar(8*s+4,4)}, v24 offset:{32*TROW+32*s}", 'lg', ('b', s))
        if s >= 6:
            q = s-6
            S.wait(lg=('b', q))
            S.add(f"  v_mfma_f32_32x32x16_bf16 {vr(ACC[0],16)}, {ar(8*q,4)}, {ar(8*q+4,4)}, {vr(ACC[0],16) if q else 0}")
    for q in range(10, 16):
        S.wait(lg=('b', q))
        S.add(f"  v_mfma_f32_32x32x16_bf16 {vr(ACC[0],16)}, {ar(8*q,4)}, {ar(8*q+4,4)}, {vr(ACC[0],16)}")
    emit(a, S.resolve())
    if diag: a("  s_memtime s[34:35]")
    D = ACC[0]
    a(f"""  v_mov_b32 v20, 0
  v_min_u32 v27, 15, v2
  v_lshl_add_u32 v27, v27, 2, s19
  ds_write_b32 v27, v20
  ds_write_b32 v27, v20 offset:{HHOFF}
  v_and_b32 v26, 31, v2
  v_lshlrev_b32 v26, 4, v26
  v_add_u32 v26, s19, v26
  v_lshl_add_u32 v27, v25, 3, v26   ; + 8h
  v_lshl_add_u32 v26, v25, 10, v26  ; + 1024 h
  v_cmp_eq_u32 vcc, 0, v2
  v_mov_b32 v28, s17
  v_and_b32 v29, 1, v2
  v_cndmask_b32 v28, 0, v28, vcc
  v_cmp_eq_u32 s[20:21], 1, v25
  v_cmp_eq_u32 s[22:23], 1, v29
  v_add_f32 v{D}, v{D}, v28
  v_cvt_pk_bf16_f32 v8, v{D}, v{D+1}
  v_cvt_pk_bf16_f32 v9, v{D+2}, v{D+3}
  ds_write_b64 v27, v[8:9] offset:64
  v_cvt_pk_bf16_f32 v10, v{D+4}, v{D+4}
  v_cvt_pk_bf16_f32 v11, v{D+5}, v{D+6}
  ds_write_b64 v27, v[10:11] offset:{64+512}""")
    for k in range(2):
        A, B = D+8+2*k, D+9+2*k
        t = 8+2*k
        a(f"""  v_cndmask_b32 v12, v{A}, v{B}, s[20:21]
  v_cvt_pk_bf16_f32 v{t}, v{A}, v{A}
  v_cvt_pk_bf16_f32 v{t+1}, v12, v{B}
  ds_write_b64 v27, {vr(t,2)} offset:{64+1024+512*k}""")
    for k in range(2):
        A, B = D+12+2*k, D+13+2*k
        t = 16+4*k
        a(f"""  v_cndmask_b32 v12, v{A}, v{B}, s[22:23]
  v_cvt_pk_bf16_f32 v{t}, v{A}, v{A}
  v_cvt_pk_bf16_f32 v{t+1}, v{A}, v{A}
  v_cvt_pk_bf16_f32 v{t+2}, v12, v{B}
  v_cvt_pk_bf16_f32 v{t+3}, v{B}, v{B}
  ds_write_b128 v26, {vr(t,4)} offset:{64+2048+512*k}""")
    a(f"""  v_bfe_u32 v8, v2, 4, 1            ; gamma&1
  v_and_b32 v9, 3, v2               ; c4 / rho
  v_and_b32 v10, 1, v2
  v_lshlrev_b32 v10, 4, v10
  v_lshl_add_u32 v10, v8, 3, v10
  v_and_b32 v8, 2, v2
  v_lshl_add_u32 v10, v8, 1, v10    ; q0 = 16(c4&1) + 8(gamma&1) + 4(c4>>1)
  v_lshrrev_b32 v11, 5, v2          ; kg / h
  v_lshlrev_b32 v12, 5, v11
  v_sub_u32 v10, v10, v12
  v_bfe_u32 v12, v2, 2, 2
  v_lshlrev_b32 v12, 2, v12
  v_sub_u32 v10, v10, v12
  v_add_u32 v10, 48, v10
  v_lshl_add_u32 v24, v10, 1, s19
  v_bfe_u32 v12, v2, 2, 3           ; p
  v_add_u32 v13, v12, v11
  v_mul_u32_u24 v14, 1216, v9
  v_lshl_add_u32 v13, v13, 4, v14
  s_mul_i32 s20, s28, {USZ}
  v_add_u32 v25, s20, v13
  v_and_b32 v12, 31, v2
  v_lshlrev_b32 v12, 2, v12
  s_add_u32 s20, s19, {YOFF}
  v_lshl_add_u32 v26, v11, 12, v12
  v_add_u32 v26, s20, v26
  v_mul_u32_u24 v13, 1024, v11
  v_sub_u32 v27, v12, v13
  s_add_u32 s20, s19, {HHOFF+1040}
  v_add_u32 v27, s20, v27""")
    for dl in range(1, 4):
        a(f"""  v_cmp_le_u32 vcc, {dl}, v9
  s_nop 1
  v_cndmask_b32 v{15+dl}, 0, 1.0, vcc
  v_cndmask_b32 v{18+dl}, 1.0, 0, vcc""")
    a(f"""  s_mul_i32 s20, s2, 1171
  s_lshr_b32 s20, s20, 16
  s_mul_i32 s21, s20, 56
  s_sub_u32 s21, s2, s21            ; blk
  s_cmp_ge_u32 s21, 28
  s_cselect_b32 s80, s74, s72
  s_cselect_b32 s81, s75, s73
  s_cselect_b32 s22, 28, 0
  s_sub_u32 s22, s21, s22           ; cb
  s_cmp_lt_u32 s2, 224
  s_cselect_b32 s82, {1024*7168}, 0
  s_mov_b32 s83, 0x20000
  s_lshl_b32 s23, s20, 2
  s_add_u32 s23, s23, s28
  s_mul_i32 s23, s23, {64*7168}
  s_lshl_b32 s22, s22, 8
  s_add_u32 s78, s23, s22
  s_mul_i32 s20, s20, {7168*4}
  s_lshl_b32 s21, s21, 9
  s_add_u32 s79, s20, s21
  v_lshrrev_b32 v12, 4, v2
  v_mul_u32_u24 v12, 7168, v12
  v_and_b32 v13, 15, v2
  v_lshl_add_u32 v28, v13, 4, v12""")
    a("  s_waitcnt vmcnt(4)")
    for e in range(8):
        for ch in range(4):
            unp(XF+8*ch+e, XP+2*e+(ch >> 1), ch & 1)
    a(f"""  s_mov_b32 s20, 0
L_{name}_poll:
  s_waitcnt vmcnt(0)
  v_cmp_ne_u32 vcc, s70, v{ST+1}""")
    for i in range(1, 8):
        a(f"  v_cmp_ne_u32 s[22:23], s70, v{ST+2*i+1}\n  s_or_b64 vcc, vcc, s[22:23]")
    a(f"""  s_cbranch_vccz L_{name}_go
  s_add_u32 s20, s20, 1
  s_cmp_gt_u32 s20, 0x100000
  s_cbranch_scc1 L_{name}_go
  s_sleep {sleep}""")
    granloads()
    a(f"""  s_branch L_{name}_poll
L_{name}_go:""")
    if diag: a("  s_memtime s[90:91]")
    cl = list(range(16))
    def csld():
        n = cl.pop(0)
        t = f"  buffer_load_dwordx4 {vr(RW+4*n,4)}, v28, s[80:83], s78 offen"
        if n < 15: t += f"\n  s_add_u32 s78, s78, {4*7168}"
        return t
    for _ in range(CS0): a(csld())
    for lab in pfnext:
        a(f"""  s_getpc_b64 s[76:77]
L_{name}_pc_{lab}:
  s_add_u32 s76, s76, {lab}-L_{name}_pc_{lab}
  s_addc_u32 s77, s77, 0
  global_load_dword v240, v3, s[76:77]""")
    for p in range(4):
        g0, g1 = ST+4*p, ST+4*p+2
        a(f"""  v_and_b32 v8, 0xffff0000, v{g0}
  v_and_b32 v9, 0xffff0000, v{g1}
  v_lshlrev_b32 v10, 16, v{g0}
  v_lshlrev_b32 v11, 16, v{g1}
  v_rcp_f32 v{g0}, v8
  v_rcp_f32 v{g0+1}, v9
  s_nop 0
  v_pk_mul_f32 {vr(g1,2)}, v[10:11], {vr(g0,2)} neg_lo:[1,0] neg_hi:[1,0]""")
    for ch in range(4):
        t = 8 + 4*(ch % 2)
        for p in range(4):
            a(f"  v_pk_fma_f32 v[22:23], {vr(XF+8*ch+2*p,2)}, {vr(ST+4*p,2)}, {vr(ST+4*p+2,2)}")
            a(f"  v_cvt_pk_bf16_f32 v{t+p}, v22, v23")
        a(f"  ds_write_b128 v30, {vr(t,4)} offset:{ch*USZ+128}")
    a("  s_waitcnt lgkmcnt(0)\n  s_barrier")
    if diag: a("  s_memtime s[36:37]\n  s_waitcnt lgkmcnt(0)")
    S = Stream()
    def AF(c): return 4*c
    def BF(b): return 128 + 4*(b+3)
    def rd(i):
        ops = []
        for k in range(4):
            c = 4*i+k; b = 4*i-k
            ops.append((f"  ds_read_b128 {ar(BF(b),4)}, v25 offset:{(7+2*b)*16}", ('B', b)))
            ops.append((f"  ds_read_b64_tr_b16 {ar(AF(c),2)}, v24 offset:{128*c+32}", ('A0', c)))
            ops.append((f"  ds_read_b64_tr_b16 {ar(AF(c)+2,2)}, v24 offset:{128*c}", ('A', c)))
        return ops
    QP = {1: "[3,0,1,2]", 2: "[2,3,0,1]", 3: "[1,2,3,0]"}
    def adds(i):
        ops = []
        D = ACC[i % 2]; H = 22 + (i % 2)
        def dpp(op, dst, src, msk, dl):
            ops.append((f"  {op} v{dst}, v{src}, v{msk} quad_perm:{QP[dl]} row_mask:0xf bank_mask:0xf", 'v'))
        for ip in range(4):
            for dl in range(1, 4):
                dpp("v_fmac_f32_dpp", D+4*ip, D+4*ip+dl, 15+dl, dl)
                if ip < 3: dpp("v_fmac_f32_dpp", D+4*ip+4, D+4*ip+dl, 18+dl, dl)
                else: dpp("v_mul_f32_dpp" if dl == 1 else "v_fmac_f32_dpp", H, D+4*ip+dl, 18+dl, dl)
            if ip % 2 == 1:
                ops.append((f"  ds_write2st64_b32 v26, v{D+4*ip-4}, v{D+4*ip} offset0:{4*ip-4} offset1:{4*ip}", 'w'))
        ops.append((f"  ds_write_b32 v27, v{H} offset:{128*i}", 'w'))
        ops.append((f"  v_add_u32 v26, 128, v26", 'v'))
        return ops
    nm = [0]
    for t, tag in rd(0): S.add(t, 'lg', tag)
    for i in range(8):
        order = list(range(4, 4*i)) + list(range(0, min(4, 4*i))) + list(range(4*i, 4*i+4))
        fill = (rd(i+1) if i < 7 else [])
        if i > 0: fill = fill + adds(i-1)
        n = len(order)
        per = min(-(-len(fill)//n), 5) if i > 1 else -(-len(fill)//n)
        issued = 0
        for k, c in enumerate(order):
            b = 4*i-c
            S.wait(lg=[('A', c), ('B', b)])
            S.add(f"  v_mfma_f32_32x32x16_bf16 {vr(ACC[i%2],16)}, {ar(AF(c),4)}, {ar(BF(b),4)}, {vr(ACC[i%2],16) if k else 0}")
            issued += 1
            nm[0] += 1
            if cl and nm[0] % CSP == 0: S.add(csld())
            cnt = 0
            while fill and cnt < per:
                t, tag = fill[0]
                if tag in ('v', 'w') and issued < 13: break
                fill.pop(0); S.add(t, None if tag == 'v' else 'lg', None if tag == 'w' else tag); cnt += 1; issued += 1
        for t, tag in fill: S.add(t, None if tag == 'v' else 'lg', None if tag == 'w' else tag)
    S.add(f"""  v_add_u32 v8, {REG}, v31
  v_add_u32 v9, {2*REG}, v31
  v_add_u32 v10, {3*REG}, v31
  s_lshl_b32 s20, s28, 13
  v_lshl_add_u32 v11, v2, 4, s20
  s_and_b32 s20, s26, 1
  s_lshl_b32 s20, s20, 3
  v_add_u32 v11, s20, v11
  s_lshr_b32 s20, s26, 1
  s_lshl_b32 s20, s20, 15
  s_add_u32 s21, s20, 4096
  s_nop 1""")
    for t, tag in adds(7): S.add(t, None if tag == 'v' else 'lg', None)
    emit(a, S.resolve())
    a("  s_waitcnt lgkmcnt(0)\n  s_barrier")
    if diag: a("  s_memtime s[38:39]\n  s_waitcnt lgkmcnt(0)")
    YR = 32
    for ch in range(4):
        a(f"  ds_read_b32 v{64+2*ch}, v{[31,8,9,10][ch]} offset:8192")
        a(f"  ds_read_b32 v{65+2*ch}, v{[31,8,9,10][ch]} offset:{8192+1040}")
    for p in range(4):
        for ch in range(4):
            ad = [31, 8, 9, 10][ch]
            a(f"  ds_read2st64_b32 {vr(YR+8*ch+2*p,2)}, v{ad} offset0:{8*p} offset1:{8*p+4}")
        if p == 0:
            a("  s_waitcnt lgkmcnt(4)")
            for ch in range(4):
                a(f"  v_add_f32 v{XF+8*ch}, v{XF+8*ch}, v{64+2*ch}\n  v_add_f32 v{XF+8*ch+4}, v{XF+8*ch+4}, v{65+2*ch}")
    for p in range(4):
        a(f"  s_waitcnt lgkmcnt({12-4*p})")
        for ch in range(4):
            a(f"  v_pk_add_f32 {vr(YR+8*ch+2*p,2)}, {vr(YR+8*ch+2*p,2)}, {vr(XF+8*ch+2*p,2)}")
        for k in range(2):
            e = 2*p+k; t = 12+2*(e % 4)
            a(f"""  v_cvt_pk_bf16_f32 v{t}, v{YR+e}, v{YR+8+e}
  v_cvt_pk_bf16_f32 v{t+1}, v{YR+16+e}, v{YR+24+e}
  buffer_store_dwordx2 {vr(t,2)}, v11, s[12:15], s{20+e//4} offen offset:{1024*(e%4)}""")
    nlate = len(cl)
    while cl: a(csld())
    a(f"""  s_cmp_lg_u32 s2, 0
  s_cbranch_scc1 L_{name}_noep
  v_mov_b32 v8, {NONCE_OFF}
  v_mov_b32 v9, s70
  global_store_dword v8, v9, s[24:25]
L_{name}_noep:""")
    a(f"""  v_and_b32 v8, 15, v2
  v_and_b32 v9, 1, v2
  v_lshlrev_b32 v9, 4, v9
  v_mov_b32 v10, 0x3f80
  v_lshlrev_b32 v9, v9, v10
  v_lshrrev_b32 v8, 1, v8""")
    for q in range(4):
        a(f"  v_cmp_eq_u32 vcc, {q}, v8\n  s_nop 1\n  v_cndmask_b32 v{228+q}, 0, v9, vcc")
    a(f"""  v_and_b32 v8, 15, v2
  v_lshlrev_b32 v8, 5, v8
  v_lshrrev_b32 v9, 4, v2
  v_and_b32 v10, 1, v9
  v_lshl_add_u32 v8, v10, 4, v8
  v_lshrrev_b32 v9, 1, v9
  v_lshl_add_u32 v8, v9, 9, v8
  s_add_u32 s20, s19, {CSOFF}
  v_add_u32 v8, s20, v8
  s_add_u32 s84, s24, {CS_OFF}
  s_addc_u32 s85, s25, 0
  s_cmp_lt_u32 s2, 224
  s_cselect_b32 s86, {4*7168*4}, 0
  s_mov_b32 s87, 0x20000
  v_and_b32 v9, 127, v0
  v_lshlrev_b32 v9, 2, v9
  v_add_u32 v10, {UTOT+CSOFF}, v9
  v_add_u32 v12, {2*REG}, v10
  s_waitcnt vmcnt({0 if nlate else 8})""")
    for n in range(16):
        a(f"  v_mfma_f32_16x16x32_bf16 v[232:235], v[228:231], {vr(RW+4*n,4)}, {'v[232:235]' if n else 0}")
    a(f"""  s_nop 7
  ds_write_b128 v8, v[232:235]
  s_waitcnt lgkmcnt(0)
  s_barrier
  ds_read_b32 v14, v10
  ds_read_b32 v15, v10 offset:{REG}
  ds_read_b32 v16, v12
  ds_read_b32 v17, v12 offset:{REG}
  s_waitcnt lgkmcnt(0)
  v_add_f32 v14, v14, v15
  v_add_f32 v16, v16, v17
  v_add_f32 v14, v14, v16
  buffer_store_dword v14, v9, s[84:87], s79 offen""")
    if diag:
        a("  s_waitcnt vmcnt(0)\n  s_memtime s[50:51]")
        diag_store(a, name, dbg_idx, [30, 32, 34, 90, 36, 38, 50], 24)
    a(f"L_{name}_end:\n  s_endpgm")
    return a.text(), kernel_desc(name, 512, 96, 256), f"; @launch kernel={name} grid=(256,1,1) block=(256,1,1) lds={UTOT+4*REG}"
```

```python
from asmgen import *
from sched import *
from layout import *
from g1 import diag_store
from ka import ln_pack

def gen_b(name="b_kernel", diag=False, AHEAD=3, dbg_idx=0, dpos=None, xpos=None, stflags='sc1', pfd=1, stl=False, ZA=60):
    a = Asm()
    NT = 7; ROWB = NT*32; MATB = 64*ROWB; SLOT = 2*MATB; NF = 2*NT
    RING = AHEAD+1
    assert (4*NF) % RING == 0
    ACC = 32
    def acc(j, m, n): return ACC + ((j*2+m)*4+n)*4
    AF = 0
    XR = 4*RING
    def xreg(st2, ks, n): return XR + ((st2*2+ks)*4+n)*4
    DUMMY = XR + 64
    nagpr = DUMMY + 4
    CSL = 4*SLOT
    RED = CSL + 1024
    SR = 32
    a(kernel_head(name))
    a(f"""  s_cmp_ge_u32 s2, 256
  s_cbranch_scc1 L_{name}_end""")
    if diag: a("  s_memrealtime s[40:41]\n  s_memtime s[30:31]")
    a(f"""  s_load_dwordx4 s[20:23], s[0:1], 80
  s_load_dwordx2 s[52:53], s[0:1], 96
  s_load_dwordx2 s[24:25], s[0:1], 120
  v_lshrrev_b32 v10, 6, v0
  v_and_b32 v11, 63, v0
  s_and_b32 s26, s2, 7
  s_lshr_b32 s27, s2, 3
  v_readfirstlane_b32 s28, v10
  s_and_b32 s3, s26, 1
  s_lshl_b32 s3, s3, 2
  s_and_b32 s29, s27, 3
  s_add_u32 s3, s3, s29             ; tt
  s_lshr_b32 s26, s26, 1
  s_lshl_b32 s26, s26, 3
  s_lshr_b32 s27, s27, 2
  s_add_u32 s26, s26, s27           ; ft
  s_lshl_b32 s3, s3, 8              ; t0
  s_lshl_b32 s54, s26, 3
  s_add_u32 s54, s54, s3
  s_lshl_b32 s29, s28, 6
  s_add_u32 s3, s3, s29             ; t0 + 64 w
  s_and_b32 s29, s28, 1
  s_lshl_b32 s29, s29, 5            ; 32*hf
  s_movk_i32 s19, 4682
  s_movk_i32 s18, 7168""")
    for n in range(NT):
        a(f"""  v_add_u32 v12, {64*n}, v11
  v_mul_u32_u24 v13, s19, v12
  v_lshrrev_b32 v13, 16, v13        ; pos_local
  v_mul_u32_u24 v14, 14, v13
  v_sub_u32 v12, v12, v14           ; part
  v_and_b32 v14, 4, v13
  v_and_b32 v15, 8, v13
  v_and_b32 v13, 0x13, v13
  v_lshl_or_b32 v13, v14, 1, v13
  v_lshrrev_b32 v15, 1, v15
  v_or3_b32 v13, v13, v15, s29      ; row
  v_mul_u32_u24 v13, s18, v13
  v_lshl_add_u32 v{1+n}, v12, 4, v13""")
    a(f"""  v_lshrrev_b32 v12, 4, v11         ; g
  v_and_b32 v13, 15, v11
  v_add_u32 v13, s3, v13            ; position
  v_lshlrev_b32 v14, 11, v12
  v_add_lshl_u32 v8, v14, v13, 4    ; X voffset
  v_lshrrev_b32 v16, 3, v0
  v_and_b32 v17, 7, v0
  v_lshlrev_b32 v16, 15, v16
  v_lshl_add_u32 v16, v17, 4, v16
  s_lshl_b32 s55, s54, 4
  s_add_u32 s56, s55, {1<<20}
  s_add_u32 s57, s55, {2<<20}
  s_add_u32 s58, s55, {3<<20}
  s_mul_i32 s18, s28, {MATB//2}
  s_mov_b32 s16, 0                  ; W soffset
  s_mov_b32 s17, 0                  ; X soffset
  s_mov_b32 s7, 0x20000
  s_mov_b32 s10, {4<<20}
  s_mov_b32 s11, 0x20000
  s_mul_i32 s27, s26, {ROWB}
  s_sub_u32 s6, {1024*7168}, s27
  s_cmp_ge_u32 s28, 2
  s_waitcnt lgkmcnt(0)
  s_cselect_b32 s4, s22, s20
  s_cselect_b32 s5, s23, s21
  s_add_u32 s4, s4, s27
  s_addc_u32 s5, s5, 0
  s_add_u32 s8, s24, {HB_OFF}
  s_addc_u32 s9, s25, 0""")
    if diag: a("  s_memtime s[74:75]")
    S = Stream()
    NST = 16
    pend = []
    def dma(st, n):
        S.add(f"  s_add_u32 m0, s18, {(st%2)*SLOT + n*1024}")
        pend.append((f"  buffer_load_dwordx4 v{1+n}, s[4:7], s16 offen lds", ('W', st, n)))
    def xload(st, ks, n):
        S.add(f"  buffer_load_dwordx4 {ar(xreg(st%2,ks,n),4)}, v8, s[8:11], s17 offen offset:{256*n}", 'vm', ('X', st, ks, n))
        if n == 3: S.add(f"  s_add_u32 s17, s17, {4*32768}")
    def flush_pend():
        while pend:
            t, tag = pend.pop(0)
            S.add(t, 'vm', tag)
            if tag[2] == NT-1:
                S.add(f"  s_add_u32 s16, s16, {64*7168}")
                if tag[1] % 2 == 1:
                    S.add(f"  s_add_u32 s18, s18, s22\n  s_sub_u32 s22, 0, s22")
    def trread(st, f):
        ks, rem = divmod(f, NF); j, m = divmod(rem, 2)
        r = AF + 4*(((st%2)*2*NF + f) % RING)
        for jj in range(2):
            off = (st%2)*SLOT + m*MATB + (32*ks+8*jj)*ROWB + 32*j
            S.add(f"  ds_read_b64_tr_b16 {ar(r+2*jj,2)}, v9 offset:{off}", 'lg', ('A', st, f, jj))
    for q in range(4):
        S.add(f"  buffer_load_dwordx4 {vr(SR+4*q,4)}, v16, s[8:11], s{55+q} offen", 'vm', ('S', q))
    zr = list(range(ACC+20, 256))
    def zero(k):
        for _ in range(min(k, len(zr))): S.add(f"  v_mov_b32 v{zr.pop(0)}, 0")
    for n in range(NT):
        dma(0, n); zero(2); flush_pend()
    for n in range(4): xload(0, 0, n); zero(2)
    S.add(f"""  s_add_u32 s60, s24, {CS_OFF}
  s_addc_u32 s61, s25, 0
  s_mov_b32 s62, {4*7168*4}
  s_mov_b32 s63, 0x20000
  v_min_u32 v18, 223, v0
  v_cmp_le_u32 vcc, 112, v18
  v_lshlrev_b32 v18, 2, v18
  v_add_u32 v19, {(3584-112)*4}, v18
  s_mul_i32 s59, s26, {112*4}
  v_cndmask_b32 v19, v18, v19, vcc
  v_add_u32 v18, {CSL}, v18""")
    for q in range(4):
        S.add(f"  buffer_load_dword v{SR+16+q}, v19, s[60:63], s59 offen", 'vm', ('C', q))
        if q < 3: S.add(f"  s_add_u32 s59, s59, {7168*4}")
    S.add(f"""  s_mov_b32 s21, {2*SLOT}
  s_mov_b32 s22, {2*SLOT}
  v_lshlrev_b32 v17, 3, v17
  v_add_u32 v17, {RED}, v17
  s_lshl_b32 s29, s28, 6
  v_add_u32 v20, s29, v17
  v_mov_b32 v22, 0
  v_mov_b32 v23, 0
  s_mov_b32 s23, 0x3f803f80""")
    zero(ZA)
    if diag: S.add("  s_memtime s[76:77]")
    S.wait(vm=('S', 3))
    if diag: S.add("  s_memtime s[78:79]")
    for i in range(16):
        S.add(f"  v_dot2c_f32_bf16 v22, s23, v{SR+i}\n  v_dot2c_f32_bf16 v23, v{SR+i}, v{SR+i}")
        if i % 4 == 3: xload(0, 1, i//4)
    for r in range(SR, SR+16): S.add(f"  v_mov_b32 v{r}, 0")
    S.add("""  v_add_f32_dpp v22, v22, v22 row_ror:8 row_mask:0xf bank_mask:0xf
  v_add_f32_dpp v23, v23, v23 row_ror:8 row_mask:0xf bank_mask:0xf""")
    for sw in ["v_permlane16_swap_b32", "v_permlane32_swap_b32"]:
        S.add(f"""  v_mov_b32 v24, v22
  v_mov_b32 v25, v23
  s_nop 0
  {sw} v24, v22
  {sw} v25, v23
  v_pk_add_f32 v[22:23], v[22:23], v[24:25]""")
    S.add(f"  ds_write_b64 v20, v[22:23]", 'lg', ('R', 0))
    for n in range(NT):
        dma(1, n); zero(14); S.add("  s_nop 0"); flush_pend()
    for n in range(4): xload(1, 0, n); zero(10)
    zero(999)
    S.add(f"""  s_add_u32 s12, s24, {ACT_OFF}
  s_addc_u32 s13, s25, 0
  s_mov_b32 s14, {ACT_SIZE}
  s_mov_b32 s15, 0x20000
  s_add_u32 s64, s24, {ST2_OFF}
  s_addc_u32 s65, s25, 0
  s_mov_b32 s66, 8192
  s_mov_b32 s67, 0x20000
  s_mov_b32 s68, s52
  s_mov_b32 s69, s53
  s_mov_b32 s70, {3584*2048}
  s_mov_b32 s71, 0x20000
  v_lshrrev_b32 v14, 1, v12
  v_lshlrev_b32 v14, 11, v14
  v_and_b32 v15, 1, v12
  v_lshl_add_u32 v14, v15, 4, v14
  v_add_lshl_u32 v10, v14, v13, 4
  v_lshrrev_b32 v14, 1, v12
  v_lshlrev_b32 v14, 4, v14
  v_lshl_add_u32 v14, v15, 2, v14
  v_bfe_u32 v15, v11, 2, 2
  v_add_u32 v14, v14, v15
  v_mul_u32_u24 v14, {ROWB}, v14
  v_and_b32 v15, 3, v11
  v_lshl_add_u32 v9, v15, 3, v14
  v_lshlrev_b32 v26, 2, v13
  v_lshlrev_b32 v27, 4, v12
  v_add_u32 v27, {CSL}, v27
  v_min_u32 v11, {6 if pfd == 1 else 55}, v11
  s_mul_i32 s29, s28, {7 if pfd == 1 else 56}
  v_add_lshl_u32 v11, v11, s29, 7
  s_mul_i32 s72, s2, {(28 if pfd == 1 else 224)*128}""")
    if diag: S.add("  s_memtime s[80:81]")
    S.wait(vm=('C', 3))
    S.add(f"""  v_add_f32 v{SR+16}, v{SR+16}, v{SR+17}
  v_add_f32 v{SR+18}, v{SR+18}, v{SR+19}
  v_add_f32 v{SR+16}, v{SR+16}, v{SR+18}""")
    S.add(f"  ds_write_b32 v18, v{SR+16}", 'lg', ('R', 1))
    for r in range(SR+16, SR+20): S.add(f"  v_mov_b32 v{r}, 0")
    S.wait(vm=('W', 0, NT-1), lg=('R', 1))
    S.add("  s_barrier")
    if diag: S.add("  s_memtime s[32:33]\n  s_waitcnt lgkmcnt(0)")
    for q in range(4):
        S.add(f"  ds_read_b64 {vr(12+2*q,2)}, v17 offset:{64*q}", 'lg', ('R2', q))
    for f in range(AHEAD): trread(0, f)
    S.wait(lg=('R2', 3))
    fin = Asm()
    fin("""  v_pk_add_f32 v[12:13], v[12:13], v[14:15]
  v_pk_add_f32 v[16:17], v[16:17], v[18:19]
  v_pk_add_f32 v[12:13], v[12:13], v[16:17]""")
    ln_pack(fin, 12, 13, 14, 15)
    fin(f"""  v_and_b32 v15, 7, v0
  v_add_lshl_u32 v15, v15, s54, 2""")
    S.add(fin.text().rstrip())
    S.add(f"  s_cmp_eq_u32 s28, 0\n  s_cselect_b32 s66, 8192, 0\n  s_mov_b64 exec, 0xff")
    S.add(f"  buffer_store_dword v14, v15, s[64:67], 0 offen sc1", 'vm', ('T', 0))
    S.add(f"  s_mov_b64 exec, -1\n  s_mov_b32 s66, 8192\n  s_mov_b32 s19, 0")
    if dpos is None: dpos = [8, 10, 12, NF, NF+8, NF+10, NF+12]
    if xpos is None: xpos = [1, 3, 5, 7]
    for st in range(NST):
        if st % 2 == 0: S.mark(('body', st//2))
        acts = {}
        for n in range(4):
            acts.setdefault((xpos[n], 1), []).append(('x', st+1, 1, n))
            acts.setdefault((NF+xpos[n], 1), []).append(('x', st+2, 0, n))
        for n in range(NT):
            acts.setdefault((dpos[n], 1), []).append(('d', st+2, n))
        if st % 2 == 0:
            for n in range(4 if stl else 0): acts.setdefault((2+2*n, 2), []).append(('s', n))
            if pfd == 1: acts.setdefault((NF+2, 2), []).append(('p',))
        for f in range(2*NF):
            ks, rem = divmod(f, NF); j, m = divmod(rem, 2)
            fa = f + AHEAD
            ring = AF + 4*(((st%2)*2*NF + f) % RING)
            if fa == 2*NF:
                S.wait(vm=('W', st+1, NT-1))
                S.add("  s_barrier")
                if st % 2 == 1:
                    S.add("  v_add_u32 v9, s21, v9\n  s_sub_u32 s21, 0, s21")
            for n in range(4):
                if n == 0:
                    S.wait(lg=('A', st, f, 1), vm=(('X', st, ks, 3) if rem == 0 else None))
                c = acc(j, m, n)
                S.add(f"  v_mfma_f32_16x16x32_bf16 {vr(c,4)}, {ar(ring,4)}, {ar(xreg(st%2,ks,n),4)}, {vr(c,4)}")
                if n == 0:
                    if fa < 2*NF: trread(st, fa)
                    else: trread(st+1, fa-2*NF)
                flush_pend()
                for act in acts.get((f, n), []):
                    if act[0] == 'x': xload(act[1], act[2], act[3])
                    elif act[0] == 'd': dma(act[1], act[2])
                    elif act[0] == 's':
                        S.add(f"  buffer_load_dword v{28+act[1]}, v26, s[64:67], 0 offen offset:{64*act[1]} sc1", 'vm', ('Q', st, act[1]))
                    else:
                        S.add(f"  buffer_load_dword a{DUMMY}, v11, s[68:71], s72 offen", 'vm', ('P', st))
                        S.add(f"  s_add_u32 s72, s72, {7168*128}")
        assert not pend
        if st % 2 == 1:
            S.add(f"  s_add_u32 s19, s19, 1\n  s_cmp_lt_u32 s19, {NST//2}\n  s_cbranch_scc1 L_{name}_loop")
    S.mark('end')
    segs = split_marks(S.resolve())
    emit(a, segs[0][1])
    a("  .p2align 6")
    a(f"L_{name}_loop:")
    emit(a, merge_iters([s[1] for s in segs[1:1+NST//2]]))
    if diag: a("  s_memtime s[34:35]")
    if not stl:
        for n in range(4):
            a(f"  buffer_load_dword v{28+n}, v26, s[64:67], 0 offen offset:{64*n} sc1")
    a(f"""  s_mov_b32 s20, 0
L_{name}_poll:
  s_waitcnt vmcnt(0) lgkmcnt(0)
  v_min_u32 v1, v28, v29
  v_min3_u32 v1, v1, v30, v31
  v_cmp_eq_u32 vcc, 0, v1
  s_cbranch_vccz L_{name}_go
  s_add_u32 s20, s20, 1
  s_cmp_gt_u32 s20, 0x100000
  s_cbranch_scc1 L_{name}_go
  s_sleep 2""")
    for n in range(4):
        a(f"  buffer_load_dword v{28+n}, v26, s[64:67], 0 offen offset:{64*n} sc1")
    a(f"""  s_branch L_{name}_poll
L_{name}_go:""")
    if pfd == 2: a(f"  buffer_load_dword a{DUMMY}, v11, s[68:71], s72 offen")
    for n in range(4):
        a(f"""  v_and_b32 v1, 0xffff0000, v{28+n}
  v_lshlrev_b32 v{12+n}, 16, v{28+n}
  v_rcp_f32 v{16+n}, v1
  v_mul_f32 v{20+n}, v1, v1""")
    a(f"""  v_mov_b32 v11, v27
  s_mul_i32 s16, s26, {NT*2*32768}
  ds_read_b128 v[24:27], v11
  ds_read_b128 v[28:31], v11 offset:448""")
    for n in range(4): a(f"  v_mul_f32 v{16+n}, 0xbfb8aa3b, v{16+n}")
    def bc(base, n, pos):
        return vr(base + (n & ~1), 2), n & 1
    csG, csU = 24, 28
    for j in range(NT):
        a("  s_waitcnt lgkmcnt(0)")
        for n in range(4):
            G = acc(j, 0, n); U = acc(j, 1, n); h = n & 1
            M, x = bc(12, n, 1); K1, _ = bc(16, n, 1); S2, _ = bc(20, n, 1)
            for (R, cs) in ((G, csG), (U, csU)):
                for q in range(2):
                    a(f"  v_pk_fma_f32 {vr(R+2*q,2)}, {vr(cs+2*q,2)}, {M}, {vr(R+2*q,2)} op_sel:[0,{x},0] op_sel_hi:[1,{x},1] neg_lo:[0,1,0] neg_hi:[0,1,0]")
                if R == G:
                    for q in range(2):
                        a(f"  v_pk_mul_f32 {vr(2+2*q,2)}, {vr(G+2*q,2)}, {K1} op_sel:[0,{x}] op_sel_hi:[1,{x}]")
                    for q in range(4): a(f"  v_exp_f32 v{2+q}, v{2+q}")
            for q in range(2):
                a(f"  v_pk_fma_f32 {vr(2+2*q,2)}, {vr(2+2*q,2)}, {S2}, {S2} op_sel:[0,{x},{x}] op_sel_hi:[1,{x},{x}]")
            for q in range(4): a(f"  v_rcp_f32 v{2+q}, v{2+q}")
            for q in range(2): a(f"  v_pk_mul_f32 {vr(G+2*q,2)}, {vr(G+2*q,2)}, {vr(U+2*q,2)}")
            for q in range(2): a(f"  v_pk_mul_f32 {vr(G+2*q,2)}, {vr(G+2*q,2)}, {vr(2+2*q,2)}")
            a(f"  v_cvt_pk_bf16_f32 v{6+2*h}, v{G}, v{G+1}\n  v_cvt_pk_bf16_f32 v{7+2*h}, v{G+2}, v{G+3}")
            if n == 0 and j < NT-1:
                a(f"  ds_read_b128 {vr(G,4)}, v11 offset:{64*(j+1)}\n  ds_read_b128 {vr(U,4)}, v11 offset:{448+64*(j+1)}")
                nxt = (G, U)
            elif h == 1:
                a("  s_nop 1")
            if h == 1:
                a(f"""  v_permlane16_swap_b32 v6, v8
  v_permlane16_swap_b32 v7, v9
  buffer_store_dwordx4 v[6:9], v10, s[12:15], s16 offen offset:{256*(n-1)} {stflags}""")
        if j < NT-1:
            a(f"  s_add_u32 s16, s16, {2*32768}")
            csG, csU = nxt
    if diag:
        a("  s_memtime s[36:37]\n  s_waitcnt vmcnt(0)\n  s_memtime s[38:39]")
        diag_store(a, name, dbg_idx, [30, 74, 76, 78, 80, 32, 34, 36, 38], 24)
    a(f"L_{name}_end:\n  s_endpgm")
    desc = kernel_desc(name, 256+nagpr, 96, 256)
    return a.text(), desc, f"; @launch kernel={name} grid=(256,1,1) block=(256,1,1) lds={RED+256}"
```

```python
from asmgen import *
from sched import *
from layout import *
from g1 import diag_store

def gen_c(name="c_kernel", diag=False, P=4, AHEAD=3, dbg_idx=0, sleep=1, ramp=True):
    a = Asm()
    SLOT = 16384; NS = 2*P; NST = 28
    assert NST % P == 0
    RING = AHEAD+1
    assert 16 % RING == 0
    ACC = 32
    def acc(j, n): return ACC + (j*2+n)*4
    RX = 96
    AF = 0
    XR = 4*RING
    def xreg(st, ks, n): return XR + (((st % P)*2+ks)*2+n)*4
    nagpr = XR + 16*P
    a(kernel_head(name))
    a(f"""  s_cmp_ge_u32 s2, 256
  s_cbranch_scc1 L_{name}_end""")
    if diag: a("  s_memrealtime s[40:41]\n  s_memtime s[30:31]")
    a(f"""  s_load_dwordx4 s[20:23], s[0:1], 96
  s_load_dwordx2 s[24:25], s[0:1], 120
  v_lshrrev_b32 v10, 6, v0
  v_and_b32 v11, 63, v0
  s_and_b32 s52, s2, 1              ; kh
  s_lshr_b32 s27, s2, 3
  v_readfirstlane_b32 s28, v10
  s_bfe_u32 s3, s2, 0x20001
  s_lshl_b32 s3, s3, 2
  s_and_b32 s29, s27, 3
  s_add_u32 s3, s3, s29             ; tt
  s_lshr_b32 s26, s27, 2            ; ct
  s_lshl_b32 s3, s3, 7              ; t0
  s_lshl_b32 s29, s28, 5
  s_add_u32 s3, s3, s29             ; t0 + 32 w
  v_lshrrev_b32 v12, 4, v11
  s_lshl_b32 s29, s28, 4
  v_add_lshl_u32 v13, v12, s29, 11
  v_and_b32 v14, 1, v12
  v_and_b32 v15, 2, v12
  v_lshl_add_u32 v14, v15, 1, v14   ; q0 + 4 q1
  v_and_b32 v15, 15, v11
  v_xor_b32 v14, v14, v15
  v_lshl_add_u32 v1, v14, 4, v13
  v_add_u32 v2, {4*2048}, v1
  v_xor_b32 v3, 128, v1
  v_add_u32 v3, {8*2048}, v3
  v_add_u32 v4, {4*2048}, v3
  v_add_u32 v13, s3, v15            ; position
  v_lshlrev_b32 v14, 11, v12
  v_add_lshl_u32 v8, v14, v13, 4    ; X voffset
  s_mul_i32 s16, s52, {1792*2048}   ; W soffset
  s_mul_i32 s17, s52, {56*4*32768}  ; X soffset
  s_lshl_b32 s18, s28, 12
  s_lshl_b32 s27, s26, 8
  s_sub_u32 s6, {1792*2048}, s27
  s_add_u32 s6, s6, s16
  s_mov_b32 s7, 0x20000
  s_add_u32 s10, s17, {ACT_SIZE//2}
  s_mov_b32 s11, 0x20000
  s_waitcnt lgkmcnt(0)
  s_add_u32 s4, s20, s27
  s_addc_u32 s5, s21, 0
  s_add_u32 s8, s24, {ACT_OFF}
  s_addc_u32 s9, s25, 0""")
    S = Stream()
    pend = []
    def dma(st, n):
        S.add(f"  s_add_u32 m0, s18, {(st%P)*SLOT + n*1024}")
        pend.append((f"  buffer_load_dwordx4 v{1+n}, s[4:7], s16 offen lds", ('W', st, n)))
    def xload(st, ks, n):
        S.add(f"  buffer_load_dwordx4 {ar(xreg(st,ks,n),4)}, v8, s[8:11], s17 offen offset:{256*n}", 'vm', ('X', st, ks, n))
        if n == 1: S.add(f"  s_add_u32 s17, s17, {4*32768}")
    def flush_pend():
        while pend:
            t, tag = pend.pop(0)
            S.add(t, 'vm', tag)
            if tag[2] == 3:
                S.add(f"  s_add_u32 s16, s16, {64*2048}")
                if tag[1] % P == P-1:
                    S.add(f"  s_xor_b32 s18, s18, {P*SLOT}")
    def trread(st, f):
        ks, j = divmod(f, 8)
        r = AF + 4*(f % RING)
        for jj in range(2):
            off = (st%P)*SLOT + (32*ks+4*jj)*256
            S.add(f"  ds_read_b64_tr_b16 {ar(r+2*jj,2)}, v{16+j} offset:{off}", 'lg', ('A', st, f, jj))
    UB = [0, 1, 4, 5]
    def stage_loads(st):
        for n in range(4):
            dma(st, n); S.add("  s_nop 0"); flush_pend()
        for ks in range(2):
            if st == P-1 and ks == 1: continue
            for n in range(2): xload(st, ks, n)
    stage_loads(0)
    S.add(f"""  s_add_u32 s48, s24, {HB_OFF}
  s_addc_u32 s49, s25, 0
  s_mov_b32 s50, {4<<20}
  s_mov_b32 s51, 0x20000
  s_lshl_b32 s27, s26, 1
  s_add_u32 s27, s27, s52
  s_lshl_b32 s53, s27, 18
  v_lshrrev_b32 v14, 1, v12
  v_lshlrev_b32 v15, 12, v14
  v_add_lshl_u32 v9, v15, v13, 4
  v_and_b32 v15, 1, v12
  v_lshl_add_u32 v9, v15, 3, v9     ; h voffset""")
    for j in range(4):
        S.add(f"  s_add_u32 s29, s53, {UB[j]*32768}")
        for n in range(2):
            S.add(f"  buffer_load_dwordx2 {vr(acc(j,n)+2,2)}, v9, s[48:51], s29 offen offset:{256*n}", 'vm', ('H', j, n))
    stage_loads(1)
    S.add(f"""  v_and_b32 v10, 0x603, v13
  v_bfe_u32 v20, v13, 2, 4
  v_lshl_or_b32 v10, v20, 5, v10
  v_bfe_u32 v20, v13, 6, 3
  v_lshl_or_b32 v10, v20, 2, v10
  v_lshlrev_b32 v10, 11, v10
  v_lshl_add_u32 v10, v12, 4, v10
  s_lshl_b32 s27, s27, 7
  s_add_u32 s12, s22, s27
  s_addc_u32 s13, s23, 0
  s_sub_u32 s14, {4<<20}, s27
  s_mov_b32 s15, 0x20000
  v_bfe_u32 v20, v11, 2, 2          ; r
  v_lshl_add_u32 v21, v12, 3, v20   ; 8g + r
  v_lshlrev_b32 v21, 8, v21
  v_and_b32 v22, 1, v20
  v_and_b32 v20, 2, v20
  v_lshl_add_u32 v22, v20, 1, v22   ; r0 + 4 r1
  v_xor_b32 v15, s52, v15
  v_lshl_add_u32 v22, v15, 3, v22   ; + 8 (g0 ^ kh)
  v_and_b32 v20, 2, v11
  v_or_b32 v22, v22, v20            ; + 2 c1
  v_lshl_add_u32 v21, v22, 4, v21
  v_and_b32 v20, 1, v11
  v_lshl_add_u32 v16, v20, 3, v21""")
    for j in range(1, 8):
        S.add(f"  v_xor_b32 v{16+j}, {16*((j&1)+4*(j>>1))}, v16")
    for r in range(acc(4, 0), acc(7, 1)+4): S.add(f"  v_mov_b32 v{r}, 0")
    for st in range(2, P): stage_loads(st)
    S.add(f"""  s_add_u32 s56, s24, {XB_OFF}
  s_addc_u32 s57, s25, 0
  s_mov_b32 s58, {8<<20}
  s_mov_b32 s59, 0x20000
  s_add_u32 s60, s24, {FLG_OFF}
  s_addc_u32 s61, s25, 0
  s_mov_b32 s62, 65536
  s_mov_b32 s63, 0x20000
  s_lshl_b32 s64, s2, 2
  s_add_u32 s64, s64, s28
  s_xor_b32 s65, s64, 4
  s_lshl_b32 s66, s64, 6
  s_lshl_b32 s67, s65, 6
  s_lshl_b32 s64, s64, 13
  s_lshl_b32 s65, s65, 13
  v_lshlrev_b32 v5, 4, v11""")
    S.wait(vm=('H', 3, 1))
    for j in range(4):
        for n in range(2):
            c = acc(j, n)
            S.add(f"""  v_lshlrev_b32 v{c}, 16, v{c+2}
  v_and_b32 v{c+1}, 0xffff0000, v{c+2}
  v_lshlrev_b32 v{c+2}, 16, v{c+3}
  v_and_b32 v{c+3}, 0xffff0000, v{c+3}""")
    S.add("  s_barrier")
    if diag: S.add("  s_memtime s[32:33]\n  s_waitcnt lgkmcnt(0)")
    for f in range(AHEAD): trread(0, f)
    S.add("  s_mov_b32 s19, 0")
    for st in range(NST):
        if st % P == 0: S.mark(('body', st//P))
        acts = {}
        for ks in range(2):
            s2, k2 = (st+P-1, 1) if ks == 0 else (st+P, 0)
            acts.setdefault((8*ks+0, 1), []).append(('x', s2, k2, 0))
            acts.setdefault((8*ks+2, 1), []).append(('x', s2, k2, 1))
            acts.setdefault((8*ks+4, 0), []).append(('d', st+P, 2*ks))
            acts.setdefault((8*ks+6, 0), []).append(('d', st+P, 2*ks+1))
        for f in range(16):
            ks, j = divmod(f, 8)
            fa = f + AHEAD
            ring = AF + 4*(f % RING)
            if fa == 16:
                S.wait(vm=('W', st+1, 3))
                S.add("  s_barrier")
                if st % P == P-1:
                    for q in range(8): S.add(f"  v_xor_b32 v{16+q}, {P*SLOT}, v{16+q}")
            for n in range(2):
                if n == 0:
                    S.wait(lg=('A', st, f, 1), vm=(('X', st, ks, 1) if j == 0 else None))
                c = acc(j, n)
                S.add(f"  v_mfma_f32_16x16x32_bf16 {vr(c,4)}, {ar(ring,4)}, {ar(xreg(st,ks,n),4)}, {vr(c,4)}")
                if n == 0:
                    if fa < 16: trread(st, fa)
                    else: trread(st+1, fa-16)
                flush_pend()
                for act in acts.get((f, n), []):
                    if act[0] == 'x': xload(act[1], act[2], act[3])
                    else: dma(act[1], act[2])
        assert not pend
        if st % P == P-1:
            S.add(f"  s_add_u32 s19, s19, 1\n  s_cmp_lt_u32 s19, {NST//P}\n  s_cbranch_scc1 L_{name}_loop")
    S.mark('end')
    segs = split_marks(S.resolve())
    emit(a, segs[0][1])
    a("  .p2align 6")
    a(f"L_{name}_loop:")
    emit(a, merge_iters([s[1] for s in segs[1:1+NST//P]]))
    if diag: a("  s_memtime s[34:35]")
    a("  s_add_u32 s68, s64, 4096\n  s_add_u32 s69, s65, 4096\n  v_mov_b32 v6, 0\n  v_mov_b32 v7, 1\n  s_nop 4")
    for q in range(8):
        a(f"  buffer_store_dwordx4 {vr(acc(4,0)+4*q,4)}, v5, s[56:59], s{64 if q < 4 else 68} offen offset:{1024*(q%4)} sc1")
    a(f"""  s_waitcnt vmcnt(0) lgkmcnt(0)
  s_mov_b64 exec, 1
  buffer_store_dword v7, v6, s[60:63], s66 offen sc1""")
    if diag: a("  s_memtime s[36:37]")
    a(f"""  s_mov_b32 s20, 0
L_{name}_poll:
  buffer_load_dword v12, v6, s[60:63], s67 offen sc1
  s_waitcnt vmcnt(0)
  v_cmp_eq_u32 vcc, 0, v12
  s_cbranch_vccz L_{name}_go
  s_add_u32 s20, s20, 1
  s_cmp_gt_u32 s20, 0x100000
  s_cbranch_scc1 L_{name}_go
  s_sleep {sleep}
  s_branch L_{name}_poll
L_{name}_go:
  s_mov_b64 exec, -1""")
    if diag: a("  s_memtime s[38:39]")
    for q in range(8):
        a(f"  buffer_load_dwordx4 {vr(RX+4*q,4)}, v5, s[56:59], s{65 if q < 4 else 69} offen offset:{1024*(q%4)} sc1")
    cnt = 0
    for jp in range(2):
        a(f"  s_waitcnt vmcnt({4-4*jp+2*jp})")
        for q in range(4*jp, 4*jp+4):
            for h in range(2):
                a(f"  v_pk_add_f32 {vr(ACC+4*q+2*h,2)}, {vr(ACC+4*q+2*h,2)}, {vr(RX+4*q+2*h,2)}")
        for n in range(2):
            Pp = 20 + 4*n
            A = acc(2*jp, n); B = acc(2*jp+1, n)
            a(f"""  v_cvt_pk_bf16_f32 v{Pp}, v{A}, v{A+1}
  v_cvt_pk_bf16_f32 v{Pp+1}, v{A+2}, v{A+3}
  v_cvt_pk_bf16_f32 v{Pp+2}, v{B}, v{B+1}
  v_cvt_pk_bf16_f32 v{Pp+3}, v{B+2}, v{B+3}
  s_mov_b32 s16, {n*128*2048}
  s_nop 0
  v_permlane16_swap_b32 v{Pp}, v{Pp+2}
  v_permlane16_swap_b32 v{Pp+1}, v{Pp+3}
  buffer_store_dwordx4 {vr(Pp,4)}, v10, s[12:15], s16 offen offset:{64*jp}""")
    if diag:
        a("  s_memtime s[70:71]\n  s_waitcnt vmcnt(0)\n  s_memtime s[72:73]")
        diag_store(a, name, dbg_idx, [30, 32, 34, 36, 38, 70, 72], 24)
    a(f"L_{name}_end:\n  s_endpgm")
    desc = kernel_desc(name, 128+nagpr, 96, 128)
    return a.text(), desc, f"; @launch kernel={name} grid=(256,1,1) block=(256,1,1) lds={NS*SLOT}"
```

```python
HB_OFF   = 0x0000000
HN_OFF   = 0x0400000
ACT_OFF  = 0x0800000
ACT_SIZE = 448*2048*16
ST1_OFF  = 0x1800000
NONCE_OFF= 0x1808000
ZERO_OFF = 0x1810000
ST2_OFF  = ZERO_OFF
FLG_OFF  = ZERO_OFF + 8192
CNT_OFF  = FLG_OFF + 65536
ZERO_SIZE= 8192 + 65536 + 8192
CS_OFF   = 0x1840000
XB_OFF   = 0x1900000
DBG_OFF  = 0x2600000
```

```python
class Stream:
    def __init__(self):
        self.ops = []
    def add(self, text, kind=None, tag=None):
        self.ops.append([text, kind, tag])
    def wait(self, vm=None, lg=None):
        self.ops.append([None, 'wait', (vm, lg)])
    def mark(self, name):
        self.ops.append([None, 'mark', name])
    def resolve(self):
        vm_idx = {}; lg_idx = {}; nvm = 0; nlg = 0
        vm_done = 0; lg_done = 0
        out = []
        for text, kind, tag in self.ops:
            if kind == 'vm':
                nvm += 1
                if tag is not None: vm_idx[tag] = nvm
                out.append(text)
            elif kind == 'lg':
                nlg += 1
                if tag is not None: lg_idx[tag] = nlg
                out.append(text)
            elif kind == 'wait':
                vm, lg = tag
                cv = cl = None
                if vm is not None:
                    ts = vm if isinstance(vm, list) else [vm]
                    m = max(vm_idx[t] for t in ts)
                    if m > vm_done:
                        cv = min(nvm - m, 63); vm_done = nvm - cv
                if lg is not None:
                    ts = lg if isinstance(lg, list) else [lg]
                    m = max(lg_idx[t] for t in ts)
                    if m > lg_done:
                        cl = min(nlg - m, 15); lg_done = nlg - cl
                out.append(('wait', cv, cl))
            elif kind == 'mark':
                out.append(('mark', tag))
            else:
                out.append(text)
        return out

def wait_text(cv, cl):
    parts = []
    if cv is not None: parts.append(f"vmcnt({min(cv,63)})")
    if cl is not None: parts.append(f"lgkmcnt({min(cl,15)})")
    return "  s_waitcnt " + " ".join(parts)

def split_marks(res):
    segs = []; cur = []; name = None
    for x in res:
        if isinstance(x, tuple) and x[0] == 'mark':
            segs.append((name, cur)); name = x[1]; cur = []
        else:
            cur.append(x)
    segs.append((name, cur))
    return segs

def merge_iters(bodies):
    n = len(bodies[0])
    for b in bodies: assert len(b) == n, (len(b), n)
    out = []
    for i in range(n):
        x = bodies[0][i]
        if isinstance(x, tuple):
            cv = [b[i][1] for b in bodies if b[i][1] is not None]; cl = [b[i][2] for b in bodies if b[i][2] is not None]
            out.append(('wait', min(cv) if cv else None, min(cl) if cl else None))
        else:
            for b in bodies: assert b[i] == x, (b[i], x)
            out.append(x)
    return out

def emit(a, res):
    for x in res:
        if isinstance(x, tuple):
            if x[1] is not None or x[2] is not None: a(wait_text(x[1], x[2]))
        else:
            a(x)
```

```python
import sys
from g2 import gen_g2
from ka import gen_a
from kb import gen_b
from ka8 import gen_a8
try:
    from kc import gen_c
except ImportError:
    gen_c = None
def assemble(parts):
    out = [p[2] for p in parts]
    out.append('.amdgcn_target "amdgcn-amd-amdhsa--gfx950"')
    out += [p[0] for p in parts]
    out.append("  .fill 4096, 4, 0xbf800000")
    out += [p[1] for p in parts]
    return "\n".join(out) + "\n"
if __name__ == "__main__":
    diag = len(sys.argv) > 2 and sys.argv[2] == "diag"
    opts = eval(sys.argv[3]) if len(sys.argv) > 3 else {}
    oldc = opts.get('oldc', False)
    ao = dict(pfnext=('b_kernel','c_kernel')); ao.update(opts.get('a', {}))
    parts = [(gen_a if opts.get('olda') else gen_a8)(diag=diag, dbg_idx=0, **ao), gen_b(diag=diag, dbg_idx=1, **opts.get('b', {})),
             gen_g2(name="c_kernel", diag=diag, dbg_idx=2, perm=True, P=2) if oldc else gen_c(diag=diag, dbg_idx=2, **opts.get('c', {}))]
    open(sys.argv[1], "w").write(assemble(parts))
```

```python
from asmgen import *
from sched import *
from layout import *
from g1 import diag_store
from conv import wave_allsum
from ka import ln_pack, USZ, UTOT, TROW, REG, YOFF, HHOFF, CSOFF

GRL = UTOT+4*REG

def gen_a8(name="a_kernel", diag=False, dbg_idx=0, selfpf=True, pfnext=(), sleep=2, NB1=2, CS1=16, BR=6, prio=True, GB=52, MPF=(), MPFN=32, rowfl='', comb=True, XPF=False, parfl='nt', THR=1):
    csdec = f"""  s_mul_i32 s20, s2, 1171
  s_lshr_b32 s20, s20, 16
  s_mul_i32 s21, s20, 56
  s_sub_u32 s21, s2, s21            ; blk
  s_cmp_ge_u32 s21, 28
  s_cselect_b32 s44, s74, s72
  s_cselect_b32 s45, s75, s73
  s_cselect_b32 s22, 28, 0
  s_sub_u32 s22, s21, s22           ; cb
  s_cmp_lt_u32 s2, 224
  s_cselect_b32 s46, {1024*7168}, 0
  s_mov_b32 s47, 0x20000
  s_lshl_b32 s23, s20, 2
  s_add_u32 s23, s23, s28
  s_mul_i32 s23, s23, {64*7168}
  s_lshl_b32 s22, s22, 8
  s_add_u32 s92, s23, s22
  s_mul_i32 s20, s20, {7168*4}
  s_lshl_b32 s21, s21, 9
  s_add_u32 s93, s20, s21"""
    a = Asm()
    a(kernel_head(name))
    a(f"""  s_cmp_ge_u32 s2, 256
  s_cbranch_scc1 L_{name}_end""")
    if diag: a("  s_memrealtime s[40:41]\n  s_memtime s[30:31]")
    a(f"""  s_load_dwordx16 s[52:67], s[0:1], 0
  s_load_dwordx2 s[68:69], s[0:1], 64
  s_load_dwordx4 s[72:75], s[0:1], 80
  s_load_dwordx2 s[24:25], s[0:1], 120
  v_lshrrev_b32 v1, 6, v0
  v_and_b32 v2, 63, v0
  s_and_b32 s3, s2, 7
  v_readfirstlane_b32 s28, v1       ; wave
  s_lshl_b32 s3, s3, 5
  s_lshr_b32 s26, s2, 3
  s_add_u32 s26, s26, s3            ; cg
  s_cmp_ge_u32 s28, 4
  s_cbranch_scc1 L_{name}_helper""")
    BRG = 64
    RW = 64
    ACC = [96, 112]
    if selfpf:
        a(f"""  s_getpc_b64 s[76:77]
  v_lshlrev_b32 v3, 6, v0
  global_load_dword v127, v3, s[76:77]""")
    a(f"""  s_lshl_b32 s27, s26, 2
  s_add_u32 s27, s27, s28           ; d
  s_lshl_b32 s29, s27, 8
  v_lshl_add_u32 v3, v2, 2, s29
  s_lshr_b32 s29, s27, 1
  s_lshl_b32 s29, s29, 2
  s_mul_i32 s19, s28, {REG}
  s_add_u32 s19, s19, {UTOT}
  v_lshl_add_u32 v7, v2, 3, s19
  s_lshr_b32 s20, s2, 2
  s_lshl_b32 s20, s20, 5
  s_and_b32 s21, s2, 3
  s_add_u32 s20, s20, s21
  s_lshl_b32 s21, s28, 3
  s_add_u32 s20, s20, s21
  s_lshl_b32 s20, s20, 11
  s_add_u32 s21, s20, {4*2048}
  v_lshlrev_b32 v14, 4, v2
  s_mov_b32 s6, {4<<20}
  s_mov_b32 s7, 0x20000
  s_mov_b32 s22, {NONCE_OFF}
  s_waitcnt lgkmcnt(0)
  s_mov_b32 s4, s52
  s_mov_b32 s5, s53
  s_load_dword s70, s[24:25], s22
  buffer_load_dwordx4 {vr(RW,4)}, v14, s[4:7], s20 offen {rowfl}
  buffer_load_dwordx4 {vr(RW+4,4)}, v14, s[4:7], s20 offen offset:1024 {rowfl}
  buffer_load_dwordx4 {vr(RW+8,4)}, v14, s[4:7], s21 offen {rowfl}
  buffer_load_dwordx4 {vr(RW+12,4)}, v14, s[4:7], s21 offen offset:1024 {rowfl}
  s_load_dword s16, s[66:67], s29
  s_load_dword s17, s[68:69], s29
  global_load_dword v8, v3, s[54:55] {parfl}
  global_load_dword v9, v3, s[56:57] {parfl}
  global_load_dword v10, v3, s[58:59] {parfl}
  global_load_dword v11, v3, s[60:61] {parfl}
  global_load_dword v12, v3, s[62:63] {parfl}
  global_load_dword v13, v3, s[64:65] {parfl}""")
    if XPF:
        a(f"""  s_lshr_b32 s20, s2, 3
  s_lshl_b32 s20, s20, 2
  s_add_u32 s20, s20, s28
  s_lshl_b32 s20, s20, 15
  s_and_b32 s21, s2, 7
  s_lshl_b32 s21, s21, 8
  s_add_u32 s20, s20, s21
  v_bfe_u32 v14, v2, 1, 4
  v_and_b32 v15, 1, v2
  v_lshlrev_b32 v14, 11, v14
  v_lshl_add_u32 v14, v15, 7, v14
  v_add_u32 v14, s20, v14
  global_load_dword v126, v14, s[52:53]""")
    a("  s_barrier")
    if prio: a("  s_setprio 1")
    MK = [None, 28, 29, 30]; NK = [None, 31, 62, 63]
    a(f"""  v_and_b32 v24, 31, v2
  v_lshlrev_b32 v5, 4, v24
  v_lshlrev_b32 v14, 2, v24
  v_mul_u32_u24 v24, {TROW}, v24
  v_lshrrev_b32 v15, 5, v2          ; h / kg
  v_lshl_add_u32 v24, v15, 4, v24
  v_add_u32 v24, s19, v24
  v_add_u32 v5, s19, v5
  v_lshl_add_u32 v4, v15, 3, v5
  v_lshl_add_u32 v5, v15, 10, v5
  s_add_u32 s20, s19, {YOFF}
  v_lshl_add_u32 v26, v15, 12, v14
  v_add_u32 v26, s20, v26
  v_lshlrev_b32 v16, 10, v15
  v_sub_u32 v27, v14, v16
  s_add_u32 s20, s19, {HHOFF+1040}
  v_add_u32 v27, s20, v27
  v_cmp_eq_u32 s[78:79], 1, v15
  v_bfe_u32 v16, v2, 4, 1           ; gamma&1
  v_and_b32 v17, 1, v2
  v_cmp_eq_u32 s[80:81], 1, v17
  v_lshlrev_b32 v17, 4, v17
  v_lshl_add_u32 v17, v16, 3, v17
  v_and_b32 v16, 2, v2
  v_lshl_add_u32 v17, v16, 1, v17   ; q0
  v_lshlrev_b32 v16, 5, v15
  v_sub_u32 v17, v17, v16
  v_bfe_u32 v16, v2, 2, 2
  v_lshlrev_b32 v16, 2, v16
  v_sub_u32 v17, v17, v16
  v_add_u32 v17, 48, v17
  v_lshl_add_u32 v6, v17, 1, s19
  v_bfe_u32 v16, v2, 2, 3           ; p
  v_add_u32 v16, v16, v15
  v_and_b32 v17, 3, v2              ; rho
  v_mul_u32_u24 v18, 1216, v17
  v_lshl_add_u32 v16, v16, 4, v18
  s_mul_i32 s20, s28, {USZ}
  v_add_u32 v25, s20, v16""")
    for dl in range(1, 4):
        a(f"""  v_cmp_le_u32 vcc, {dl}, v17
  s_nop 1
  v_cndmask_b32 v{MK[dl]}, 0, 1.0, vcc
  v_cndmask_b32 v{NK[dl]}, 1.0, 0, vcc""")
    a(f"""  s_waitcnt lgkmcnt(0)
  s_and_b32 s29, s28, 1
  s_lshl_b32 s29, s29, 4
  s_lshr_b32 s16, s16, s29
  s_lshl_b32 s16, s16, 16           ; log_dt
  s_lshr_b32 s17, s17, s29
  s_lshl_b32 s17, s17, 16           ; Dskip
  v_mov_b32 v14, 0x3fb8aa3b
  v_mul_f32 v14, s16, v14
  v_exp_f32 v14, v14
  v_cmp_eq_u32 vcc, 0, v2
  v_mov_b32 v3, s17
  v_cvt_pk_bf16_f32 v14, v14, v14
  v_cndmask_b32 v3, 0, v3, vcc
  v_lshlrev_b32 v14, 16, v14        ; dt
  v_mul_f32 v15, 0x3fb8aa3b, v14    ; dt*log2e
  v_mul_f32 v16, 0.15915494, v14    ; dt/2pi
{csdec if MPF else ''}
  v_lshrrev_b32 v60, 1, v2
  v_mul_u32_u24 v60, 7168, v60
  v_and_b32 v61, 1, v2
  v_lshl_add_u32 v60, v61, 7, v60
  s_add_u32 s8, s24, {ST1_OFF}
  s_addc_u32 s9, s25, 0
  s_mov_b32 s10, 16384
  s_mov_b32 s11, 0x20000
  v_mov_b32 v32, 0
  v_mov_b32 v33, 0
  v_mov_b32 v34, 0
  v_mov_b32 v35, 0
  s_mov_b32 s22, 0x3f803f80
  s_add_u32 s70, s70, 1
  s_waitcnt vmcnt({8+(1 if XPF else 0)})""")
    for row in range(2):
        if row: a(f"  s_waitcnt vmcnt({6+(1 if XPF else 0)})")
        for i in range(8):
            r = RW+8*row+i
            a(f"  v_dot2c_f32_bf16 v{32+row}, s22, v{r}\n  v_dot2c_f32_bf16 v{34+row}, v{r}, v{r}")
    if diag: a("  s_memtime s[32:33]")
    a("  s_nop 1")
    wave_allsum(a, [32, 33, 34, 35], [36, 37, 38, 39])
    ln_pack(a, 32, 34, 36, 40)
    ln_pack(a, 33, 35, 38, 40)
    a(f"""  v_mov_b32 v37, s70
  v_mov_b32 v39, s70
  s_lshl_b32 s21, s28, 4
  s_add_u32 s21, s21, {GRL}
  v_mov_b32 v32, s21
  v_mov_b32 v33, {GRL+64}
  v_mov_b32 v34, 1
  s_mov_b64 exec, 1
  ds_write_b128 v32, v[36:39]
  ds_add_rtn_u32 v34, v33, v34
  s_waitcnt lgkmcnt(0)
  v_cmp_eq_u32 vcc, 3, v34
  s_mov_b64 exec, -1
  s_cbranch_vccz L_{name}_nopub
  v_and_b32 v32, 3, v2
  v_lshlrev_b32 v32, 4, v32
  v_add_u32 v33, {GRL}, v32
  ds_read_b128 v[36:39], v33
  s_lshl_b32 s20, s2, 6
  s_mov_b64 exec, 15
  s_waitcnt lgkmcnt(0)
  buffer_store_dwordx4 v[36:39], v32, s[8:11], s20 offen sc1
  s_mov_b64 exec, -1
  s_waitcnt vmcnt({1+(1 if XPF else 0)})
  s_branch L_{name}_pub
L_{name}_nopub:
  s_waitcnt vmcnt({1 if XPF else 0})
L_{name}_pub:""")
    if diag: a("  s_memtime s[88:89]")
    def unp(dst, src, n):
        a(f"  v_lshlrev_b32 v{dst}, 16, v{src}" if n == 0 else f"  v_and_b32 v{dst}, 0xffff0000, v{src}")
    for n in range(2):
        unp(32+n, 8, n); unp(34+n, 9, n); unp(36+2*n, 10, n); unp(37+2*n, 11, n); unp(40+2*n, 12, n); unp(41+2*n, 13, n)
    a("""  v_mul_f32 v32, v32, v15
  v_mul_f32 v33, v33, v15
  v_mul_f32 v34, v34, v16
  v_mul_f32 v35, v35, v16
  v_pk_mul_f32 v[36:37], v[36:37], v[14:15] op_sel:[0,0] op_sel_hi:[1,0]
  v_pk_mul_f32 v[38:39], v[38:39], v[14:15] op_sel:[0,0] op_sel_hi:[1,0]""")
    T = 16
    def cmul(dst, x, w):
        for n in range(2):
            a(f"  v_pk_mul_f32 {vr(T+2*n,2)}, {vr(x+2*n,2)}, {vr(w+2*n,2)} op_sel:[0,0] op_sel_hi:[1,0]")
        for n in range(2):
            a(f"  v_pk_fma_f32 {vr(dst+2*n,2)}, {vr(x+2*n,2)}, {vr(w+2*n,2)}, {vr(T+2*n,2)} op_sel:[1,1,0] op_sel_hi:[0,1,1] neg_lo:[1,0,0]")
    def cexp(dst, l):
        lit = {1: "1.0", 8: "0x41000000", 256: "0x43800000"}[l]
        for n in range(2):
            a(f"  v_mul_f32 v{T+n}, {lit}, v{32+n}\n  v_mul_f32 v{T+2+n}, {lit}, v{34+n}")
        for n in range(2):
            a(f"  v_exp_f32 v{T+n}, v{T+n}\n  v_fract_f32 v{T+2+n}, v{T+2+n}")
        for n in range(2):
            a(f"  v_cos_f32 v{dst+2*n}, v{T+2+n}\n  v_sin_f32 v{dst+2*n+1}, v{T+2+n}")
        a("  s_nop 0")
        for n in range(2):
            a(f"  v_pk_mul_f32 {vr(dst+2*n,2)}, {vr(dst+2*n,2)}, {vr(T,2)} op_sel:[0,{n}] op_sel_hi:[1,{n}]")
    tog = [0]; cnt = [0]
    def mpf():
        return a(mpft())
    def mpft():
        return f"""  s_mov_b64 exec, {'-1' if MPFN == 64 else hex((1 << MPFN)-1)}
  buffer_load_dword v61, v60, s[44:47], s92 offen
  s_mov_b64 exec, -1
  s_add_u32 s92, s92, {(MPFN//2)*7168}"""
    def emitrow(x, rows, neg):
        t = 20 + 2*tog[0]; tog[0] ^= 1
        s = "-" if neg else ""
        a(f"  v_cvt_pk_bf16_f32 v{t}, v{x}, {s}v{x+1}\n  v_cvt_pk_bf16_f32 v{t+1}, v{x+2}, {s}v{x+3}")
        for r in rows: a(f"  ds_write_b64 v7, {vr(t,2)} offset:{r*TROW}")
        cnt[0] += 1
        if cnt[0] == GB: a("  s_barrier")
        if cnt[0] in MPF: mpf()
    C, E1, E8, E256, Z, W, E2 = 36, 44, 48, 52, 56, 8, 40
    cmul(C, 36, 40)
    cexp(E1, 1); cexp(E8, 8); cexp(E256, 256)
    rowmap = {}
    for h, lst in enumerate([[0,1,2,3,256,258,260,None,512,516,768,772,1024,1032,1280,1288],
                             [4,5,6,7,260,262,264,None,516,520,772,776,1536,1544,1792,1800]]):
        for k, v in enumerate(lst):
            if v is not None: rowmap.setdefault(v, []).append(8*(k//4) + 4*h + (k % 4))
    emitrow(C, rowmap[0], True)
    cmul(W, C, E1); emitrow(W, rowmap[1], True)
    for l in range(2, 8):
        cmul(W, W, E1); emitrow(W, rowmap[l], True)
    cmul(E2, E1, E1)
    cmul(E1, E2, E2)
    E4 = E1
    cmul(Z, C, E256); emitrow(Z, rowmap[256], True)
    cmul(W, Z, E2); emitrow(W, rowmap[258], True)
    for l in (260, 262, 264):
        cmul(W, W, E2); emitrow(W, rowmap[l], True)
    for b in (512, 768):
        cmul(Z, Z, E256); emitrow(Z, rowmap[b], True)
        cmul(W, Z, E4); emitrow(W, rowmap[b+4], True)
        cmul(W, W, E4); emitrow(W, rowmap[b+8], True)
    for b in (1024, 1280, 1536, 1792):
        cmul(Z, Z, E256); emitrow(Z, rowmap[b], True)
        cmul(W, Z, E8); emitrow(W, rowmap[b+8], True)
    a(f"""  v_mov_b32 v20, 0x3f80
  v_mov_b32 v21, 0x3f80
  ds_write_b64 v7, v[20:21] offset:{32*TROW}""")
    tog[0] = 1
    emitrow(E8, [33], False)
    cmul(W, E8, E8); emitrow(W, [34], False)
    for j in range(3, 32):
        cmul(W, W, E8); emitrow(W, [32+j], False)
    S = Stream()
    for s in range(16):
        S.add(f"  ds_read_b128 {ar(8*s,4)}, v24 offset:{32*s}", 'lg', ('a', s))
        S.add(f"  ds_read_b128 {ar(8*s+4,4)}, v24 offset:{32*TROW+32*s}", 'lg', ('b', s))
        if s >= 6:
            q = s-6
            S.wait(lg=('b', q))
            S.add(f"  v_mfma_f32_32x32x16_bf16 {vr(ACC[0],16)}, {ar(8*q,4)}, {ar(8*q+4,4)}, {vr(ACC[0],16) if q else 0}")
    for q in range(10, 16):
        S.wait(lg=('b', q))
        S.add(f"  v_mfma_f32_32x32x16_bf16 {vr(ACC[0],16)}, {ar(8*q,4)}, {ar(8*q+4,4)}, {vr(ACC[0],16)}")
    emit(a, S.resolve())
    for _ in range(MPF.count(99)): mpf()
    D = ACC[0]
    a(f"""  v_mov_b32 v20, 0
  v_min_u32 v21, 15, v2
  v_lshl_add_u32 v21, v21, 2, s19
  ds_write_b32 v21, v20
  ds_write_b32 v21, v20 offset:{HHOFF}
  s_nop 6
  v_add_f32 v{D}, v{D}, v3
  v_cvt_pk_bf16_f32 v8, v{D}, v{D+1}
  v_cvt_pk_bf16_f32 v9, v{D+2}, v{D+3}
  ds_write_b64 v4, v[8:9] offset:64
  v_cvt_pk_bf16_f32 v10, v{D+4}, v{D+4}
  v_cvt_pk_bf16_f32 v11, v{D+5}, v{D+6}
  ds_write_b64 v4, v[10:11] offset:{64+512}""")
    for k in range(2):
        A, B = D+8+2*k, D+9+2*k
        t = 8+2*k
        a(f"""  v_cndmask_b32 v12, v{A}, v{B}, s[78:79]
  v_cvt_pk_bf16_f32 v{t}, v{A}, v{A}
  v_cvt_pk_bf16_f32 v{t+1}, v12, v{B}
  ds_write_b64 v4, {vr(t,2)} offset:{64+1024+512*k}""")
    for k in range(2):
        A, B = D+12+2*k, D+13+2*k
        t = 16+4*k
        a(f"""  v_cndmask_b32 v12, v{A}, v{B}, s[80:81]
  v_cvt_pk_bf16_f32 v{t}, v{A}, v{A}
  v_cvt_pk_bf16_f32 v{t+1}, v{A}, v{A}
  v_cvt_pk_bf16_f32 v{t+2}, v12, v{B}
  v_cvt_pk_bf16_f32 v{t+3}, v{B}, v{B}
  ds_write_b128 v5, {vr(t,4)} offset:{64+2048+512*k}""")
    S = Stream()
    def AF(c): return 4*c
    def rdA(c):
        return [(f"  ds_read_b64_tr_b16 {ar(AF(c),2)}, v6 offset:{128*c+32}", ('A0', c)),
                (f"  ds_read_b64_tr_b16 {ar(AF(c)+2,2)}, v6 offset:{128*c}", ('A', c))]
    QP = {1: "[3,0,1,2]", 2: "[2,3,0,1]", 3: "[1,2,3,0]"}
    def adds(i):
        ops = []
        D = ACC[i % 2]; H = 22 + (i % 2)
        def dpp(op, dst, src, msk, dl):
            ops.append((f"  {op} v{dst}, v{src}, v{msk} quad_perm:{QP[dl]} row_mask:0xf bank_mask:0xf", 'v'))
        for ip in range(4):
            for dl in range(1, 4):
                dpp("v_fmac_f32_dpp", D+4*ip, D+4*ip+dl, MK[dl], dl)
                if ip < 3: dpp("v_fmac_f32_dpp", D+4*ip+4, D+4*ip+dl, NK[dl], dl)
                else: dpp("v_mul_f32_dpp" if dl == 1 else "v_fmac_f32_dpp", H, D+4*ip+dl, NK[dl], dl)
            if ip % 2 == 1:
                ops.append((f"  ds_write2st64_b32 v26, v{D+4*ip-4}, v{D+4*ip} offset0:{4*ip-4} offset1:{4*ip}", 'w'))
        ops.append((f"  ds_write_b32 v27, v{H} offset:{128*i}", 'w'))
        ops.append((f"  v_add_u32 v26, 128, v26", 'v'))
        return ops
    for c in range(8):
        for t, tag in rdA(c): S.add(t, 'lg', tag)
    if diag: S.add("  s_memtime s[34:35]")
    S.add("  s_waitcnt lgkmcnt(0)\n  s_barrier")
    if diag: S.add("  s_memtime s[36:37]\n  s_waitcnt lgkmcnt(0)")
    seq = [(i, c) for i in range(8) for c in range(4*i+4)]
    def rdB(m):
        i, c = seq[m]
        S.add(f"  ds_read_b128 {vr(BRG+4*(m%BR),4)}, v25 offset:{(7+2*(4*i-c))*16}", 'lg', ('B', m))
    for m in range(BR-1): rdB(m)
    m = 0
    for i in range(8):
        fill = []
        if 1 <= i < 7:
            for c in range(4*i+4, 4*i+8): fill += rdA(c)
        if i > 0: fill = fill + adds(i-1)
        n = 4*i+4
        per = min(-(-len(fill)//(n-1)), 4) if i > 1 else -(-len(fill)//n)
        issued = 0
        for c in range(n):
            S.wait(lg=[('A', c), ('B', m)])
            S.add(f"  v_mfma_f32_32x32x16_bf16 {vr(ACC[i%2],16)}, {ar(AF(c),4)}, {vr(BRG+4*(m%BR),4)}, {vr(ACC[i%2],16) if c else 0}")
            issued += 1
            if m+BR-1 < len(seq):
                rdB(m+BR-1); issued += 1
            m += 1
            if (100+m) in MPF: S.add(mpft())
            cnt = 0
            while fill and cnt < per:
                t, tag = fill[0]
                if tag in ('v', 'w') and issued < 13: break
                fill.pop(0); S.add(t, None if tag == 'v' else 'lg', None if tag == 'w' else tag); cnt += 1; issued += 1
        for t, tag in fill: S.add(t, None if tag == 'v' else 'lg', None if tag == 'w' else tag)
    S.add("  s_nop 11")
    for t, tag in adds(7): S.add(t, None if tag == 'v' else 'lg', None)
    emit(a, S.resolve())
    if diag: a("  s_memtime s[38:39]")
    a("  s_waitcnt lgkmcnt(0)\n  s_barrier")
    if diag:
        a("  s_memtime s[50:51]")
        diag_store(a, name, dbg_idx, [30, 32, 88, 34, 36, 38, 50], 24)
    a("  s_endpgm")
    XP, ST, XF, YR = 16, 32, 48, 80
    a(f"""L_{name}_helper:
  v_and_b32 v0, 255, v0
  v_mov_b32 v12, 0
  v_mov_b32 v13, {GRL+64}
  ds_write_b32 v13, v12
  s_sub_u32 s28, s28, 4
  v_lshrrev_b32 v4, 2, v0           ; tb
  v_and_b32 v5, 3, v0               ; rho
  v_lshl_add_u32 v6, v4, 5, v5
  v_lshlrev_b32 v6, 11, v6
  s_lshl_b32 s18, s26, 3
  s_mov_b32 s6, {4<<20}
  s_mov_b32 s7, 0x20000
  s_mov_b32 s22, {NONCE_OFF}
  v_mov_b32 v112, 0
  v_mov_b32 v113, 0
  v_mov_b32 v114, 0
  v_mov_b32 v115, 0
  v_bfe_u32 v14, v0, 3, 4
  v_mul_u32_u24 v14, 1216, v14
  v_and_b32 v15, 7, v0
  v_lshl_add_u32 v14, v15, 4, v14
  ds_write_b128 v14, v[112:115]
  s_waitcnt lgkmcnt(0)
  s_mov_b32 s4, s52
  s_mov_b32 s5, s53
  s_load_dword s70, s[24:25], s22
  s_barrier""")
    for e in range(8):
        a(f"  buffer_load_dwordx2 {vr(XP+2*e,2)}, v6, s[4:7], s18 offen")
        if e < 7: a(f"  s_add_u32 s18, s18, 8192")
        if THR is not None and e >= THR:
            a(f"  s_waitcnt vmcnt({THR})")
            for ch in range(4): unp(XF+8*ch+e-THR, XP+2*(e-THR)+(ch >> 1), ch & 1)
    if diag: a("  s_memtime s[32:33]")
    a(f"""  s_add_u32 s8, s24, {ST1_OFF}
  s_addc_u32 s9, s25, 0
  s_mov_b32 s10, 16384
  s_mov_b32 s11, 0x20000
  s_add_u32 s84, s24, {ZERO_OFF}
  s_addc_u32 s85, s25, 0
  s_mov_b32 s86, {ZERO_SIZE}
  s_mov_b32 s87, 0x20000
  s_waitcnt lgkmcnt(0)
  s_add_u32 s70, s70, 1""")
    a("  v_lshlrev_b32 v3, 6, v0")
    def granloads():
        for i in range(4):
            a(f"  buffer_load_dwordx4 {vr(ST+4*i,4)}, v3, s[8:11], 0 offen offset:{16*i} sc1")
    if not GB: granloads()
    a(f"""  s_add_u32 s12, s24, {HB_OFF}
  s_addc_u32 s13, s25, 0
  s_mov_b32 s14, {4<<20}
  s_mov_b32 s15, 0x20000
  v_mul_u32_u24 v7, 1216, v5
  v_lshl_add_u32 v7, v4, 4, v7
{csdec}
  v_lshrrev_b32 v12, 4, v2
  v_mul_u32_u24 v12, 7168, v12
  v_and_b32 v13, 15, v2
  v_lshl_add_u32 v6, v13, 4, v12
  s_waitcnt vmcnt({0 if GB else 4})""")
    for e in range(0 if THR is None else 8-THR, 8):
        for ch in range(4):
            unp(XF+8*ch+e, XP+2*e+(ch >> 1), ch & 1)
    if diag: a("  s_memtime s[34:35]")
    if GB:
        a("  s_barrier")
        granloads()
    a(f"""  s_mov_b32 s20, 0
L_{name}_poll:
  s_waitcnt vmcnt(0)
  v_cmp_ne_u32 vcc, s70, v{ST+1}""")
    for i in range(1, 8):
        a(f"  v_cmp_ne_u32 s[22:23], s70, v{ST+2*i+1}\n  s_or_b64 vcc, vcc, s[22:23]")
    a(f"""  s_cbranch_vccz L_{name}_go
  s_add_u32 s20, s20, 1
  s_cmp_gt_u32 s20, 0x100000
  s_cbranch_scc1 L_{name}_go
  s_sleep {sleep}""")
    granloads()
    a(f"""  s_branch L_{name}_poll
L_{name}_go:""")
    if diag: a("  s_memtime s[36:37]")
    for p in range(4):
        g0, g1 = ST+4*p, ST+4*p+2
        a(f"""  v_and_b32 v8, 0xffff0000, v{g0}
  v_and_b32 v9, 0xffff0000, v{g1}
  v_lshlrev_b32 v10, 16, v{g0}
  v_lshlrev_b32 v11, 16, v{g1}
  v_rcp_f32 v{g0}, v8
  v_rcp_f32 v{g0+1}, v9
  s_nop 0
  v_pk_mul_f32 {vr(g1,2)}, v[10:11], {vr(g0,2)} neg_lo:[1,0] neg_hi:[1,0]""")
    for ch in range(4):
        t = 8 + 4*(ch % 2)
        for p in range(4):
            a(f"  v_pk_fma_f32 v[16:17], {vr(XF+8*ch+2*p,2)}, {vr(ST+4*p,2)}, {vr(ST+4*p+2,2)}")
            a(f"  v_cvt_pk_bf16_f32 v{t+p}, v16, v17")
        a(f"  ds_write_b128 v7, {vr(t,4)} offset:{ch*USZ+128}")
    a("  s_waitcnt lgkmcnt(0)\n  s_barrier")
    if diag: a("  s_memtime s[38:39]")
    cl = list(range(16))
    def csld():
        n = cl.pop(0)
        a(f"  buffer_load_dwordx4 {ar(4*n,4)}, v6, s[44:47], s92 offen")
        if n < 15: a(f"  s_add_u32 s92, s92, {4*7168}")
    a(f"""  ; clear the hand-off area of the later launches
  s_mul_i32 s20, s2, 320
  v_min_u32 v14, 79, v0
  v_lshlrev_b32 v14, 2, v14
  buffer_store_dword v112, v14, s[84:87], s20 offen""")
    for lab in pfnext:
        a(f"""  s_getpc_b64 s[76:77]
L_{name}_pc_{lab}:
  s_add_u32 s76, s76, {lab}-L_{name}_pc_{lab}
  s_addc_u32 s77, s77, 0
  global_load_dword v127, v3, s[76:77]""")
    a(f"""  s_cmp_lg_u32 s2, 0
  s_cbranch_scc1 L_{name}_noep
  v_mov_b32 v8, {NONCE_OFF}
  v_mov_b32 v9, s70
  global_store_dword v8, v9, s[24:25]
L_{name}_noep:
  v_lshlrev_b32 v7, 2, v0
  v_add_u32 v7, {UTOT+YOFF}, v7
  v_add_u32 v8, {REG}, v7
  v_add_u32 v9, {2*REG}, v7
  v_add_u32 v10, {3*REG}, v7
  s_lshl_b32 s20, s28, 13
  v_lshl_add_u32 v11, v2, 4, s20
  s_and_b32 s20, s26, 1
  s_lshl_b32 s20, s20, 3
  v_add_u32 v11, s20, v11
  s_lshr_b32 s20, s26, 1
  s_lshl_b32 s20, s20, 15
  s_add_u32 s21, s20, 4096
  v_and_b32 v12, 15, v2
  v_and_b32 v13, 1, v2
  v_lshlrev_b32 v13, 4, v13
  v_mov_b32 v14, 0x3f80
  v_lshlrev_b32 v13, v13, v14
  v_lshrrev_b32 v14, 1, v12""")
    for q in range(4):
        a(f"  v_cmp_eq_u32 vcc, {q}, v14\n  s_nop 1\n  v_cndmask_b32 v{116+q}, 0, v13, vcc")
    a(f"""  v_lshlrev_b32 v12, 5, v12
  v_lshrrev_b32 v13, 4, v2
  v_and_b32 v14, 1, v13
  v_lshl_add_u32 v12, v14, 4, v12
  v_lshrrev_b32 v13, 1, v13
  v_lshl_add_u32 v12, v13, 9, v12
  s_mul_i32 s19, s28, {REG}
  s_add_u32 s19, s19, {UTOT+CSOFF}
  v_add_u32 v124, s19, v12
  s_add_u32 s84, s24, {CS_OFF}
  s_addc_u32 s85, s25, 0
  s_cmp_lt_u32 s2, 224
  s_cselect_b32 s86, {4*7168*4}, 0
  s_mov_b32 s87, 0x20000
  v_and_b32 v125, 127, v0
  v_lshlrev_b32 v125, 2, v125
  v_add_u32 v126, {UTOT+CSOFF}, v125
  v_add_u32 v3, {2*REG}, v126""")
    for _ in range(CS1): csld()
    if diag: a("  s_memtime s[88:89]")
    a("  s_barrier")
    AD = [7, 8, 9, 10]
    for ch in range(4):
        a(f"  ds_read_b32 v{16+2*ch}, v{AD[ch]} offset:8192")
        a(f"  ds_read_b32 v{17+2*ch}, v{AD[ch]} offset:{8192+1040}")
    for p in range(4):
        for ch in range(4):
            a(f"  ds_read2st64_b32 {vr(YR+8*ch+2*p,2)}, v{AD[ch]} offset0:{8*p} offset1:{8*p+4}")
        if p == 0:
            a("  s_waitcnt lgkmcnt(4)")
            for ch in range(4):
                a(f"  v_add_f32 v{XF+8*ch}, v{XF+8*ch}, v{16+2*ch}\n  v_add_f32 v{XF+8*ch+4}, v{XF+8*ch+4}, v{17+2*ch}")
    for p in range(4):
        a(f"  s_waitcnt lgkmcnt({12-4*p})")
        for ch in range(4):
            a(f"  v_pk_add_f32 {vr(YR+8*ch+2*p,2)}, {vr(YR+8*ch+2*p,2)}, {vr(XF+8*ch+2*p,2)}")
        for k in range(2):
            e = 2*p+k; t = 24+2*(e % 4)
            a(f"""  v_cvt_pk_bf16_f32 v{t}, v{YR+e}, v{YR+8+e}
  v_cvt_pk_bf16_f32 v{t+1}, v{YR+16+e}, v{YR+24+e}
  buffer_store_dwordx2 {vr(t,2)}, v11, s[12:15], s{20+e//4} offen offset:{1024*(e%4)}""")
    if diag: a("  s_memtime s[90:91]")
    nlate = len(cl)
    while cl: csld()
    a(f"  s_waitcnt vmcnt({0 if nlate else 8})")
    for n in range(16):
        a(f"  v_mfma_f32_16x16x32_bf16 v[120:123], v[116:119], {ar(4*n,4)}, {'v[120:123]' if n else 0}")
    a(f"""  s_nop 7
  ds_write_b128 v124, v[120:123]
  s_waitcnt lgkmcnt(0)
  s_barrier
  ds_read_b32 v14, v126
  ds_read_b32 v15, v126 offset:{REG}
  ds_read_b32 v16, v3
  ds_read_b32 v17, v3 offset:{REG}
  s_waitcnt lgkmcnt(0)
  v_add_f32 v14, v14, v15
  v_add_f32 v16, v16, v17
  v_add_f32 v14, v14, v16
  buffer_store_dword v14, v125, s[84:87], s93 offen""")
    if diag:
        a("  s_waitcnt vmcnt(0)\n  s_memtime s[50:51]\n  v_add_u32 v0, 256, v0")
        diag_store(a, name, dbg_idx, [30, 32, 34, 36, 38, 88, 90, 50], 24)
    a(f"L_{name}_end:\n  s_endpgm")
    return a.text(), kernel_desc(name, 256, 96, 128), f"; @launch kernel={name} grid=(256,1,1) block=(512,1,1) lds={UTOT+4*REG+128}"
```

```python
from asmgen import *
from sched import *
from layout import *
from g1 import diag_store
from ka import ln_pack

def gen_b(name="b_kernel", diag=False, AHEAD=3, dbg_idx=0, dpos=None, xpos=None, stflags='sc1', pfd=1, stl=False, ZA=60, pta=False, ptx=0):
    a = Asm()
    NT = 7; ROWB = NT*32; MATB = 64*ROWB; SLOT = 2*MATB; NF = 2*NT
    RING = AHEAD+1
    assert (4*NF) % RING == 0
    ACC = 32
    def acc(j, m, n): return ACC + ((j*2+m)*4+n)*4
    AF = 0
    XR = 4*RING
    def xreg(st2, ks, n): return XR + ((st2*2+ks)*4+n)*4
    DUMMY = XR + 64
    nagpr = DUMMY + 4
    CSL = 4*SLOT
    RED = CSL + 1024
    SR = 32
    a(kernel_head(name))
    a(f"""  s_cmp_ge_u32 s2, 256
  s_cbranch_scc1 L_{name}_end""")
    if diag: a("  s_memrealtime s[40:41]\n  s_memtime s[30:31]")
    a(f"""  s_load_dwordx4 s[20:23], s[0:1], 80
  s_load_dwordx2 s[52:53], s[0:1], 96
  s_load_dwordx2 s[24:25], s[0:1], 120
  v_lshrrev_b32 v10, 6, v0
  v_and_b32 v11, 63, v0
  s_and_b32 s26, s2, 7
  s_lshr_b32 s27, s2, 3
  v_readfirstlane_b32 s28, v10
  s_and_b32 s3, s26, 1
  s_lshl_b32 s3, s3, 2
  s_and_b32 s29, s27, 3
  s_add_u32 s3, s3, s29             ; tt
  s_lshr_b32 s26, s26, 1
  s_lshl_b32 s26, s26, 3
  s_lshr_b32 s27, s27, 2
  s_add_u32 s26, s26, s27           ; ft
  s_lshl_b32 s3, s3, 8              ; t0
  s_lshl_b32 s54, s26, 3
  s_add_u32 s54, s54, s3
  s_lshl_b32 s29, s28, 6
  s_add_u32 s3, s3, s29             ; t0 + 64 w
  s_and_b32 s29, s28, 1
  s_lshl_b32 s29, s29, 5            ; 32*hf
  s_movk_i32 s19, 4682
  s_movk_i32 s18, 7168""")
    for n in range(NT):
        a(f"""  v_add_u32 v12, {64*n}, v11
  v_mul_u32_u24 v13, s19, v12
  v_lshrrev_b32 v13, 16, v13        ; pos_local
  v_mul_u32_u24 v14, 14, v13
  v_sub_u32 v12, v12, v14           ; part
  v_and_b32 v14, 4, v13
  v_and_b32 v15, 8, v13
  v_and_b32 v13, 0x13, v13
  v_lshl_or_b32 v13, v14, 1, v13
  v_lshrrev_b32 v15, 1, v15
  v_or3_b32 v13, v13, v15, s29      ; row
  v_mul_u32_u24 v13, s18, v13
  v_lshl_add_u32 v{1+n}, v12, 4, v13""")
    a(f"""  v_lshrrev_b32 v12, 4, v11         ; g
  v_and_b32 v13, 15, v11
  v_add_u32 v13, s3, v13            ; position
  v_lshlrev_b32 v14, 11, v12
  v_add_lshl_u32 v8, v14, v13, 4    ; X voffset
  v_lshrrev_b32 v16, 3, v0
  v_and_b32 v17, 7, v0
  v_lshlrev_b32 v16, 15, v16
  v_lshl_add_u32 v16, v17, 4, v16
  s_lshl_b32 s55, s54, 4
  s_add_u32 s56, s55, {1<<20}
  s_add_u32 s57, s55, {2<<20}
  s_add_u32 s58, s55, {3<<20}
  s_mul_i32 s18, s28, {MATB//2}
  s_mov_b32 s16, 0                  ; W soffset
  s_mov_b32 s17, 0                  ; X soffset
  s_mov_b32 s7, 0x20000
  s_mov_b32 s10, {4<<20}
  s_mov_b32 s11, 0x20000
  s_mul_i32 s27, s26, {ROWB}
  s_sub_u32 s6, {1024*7168}, s27
  s_cmp_ge_u32 s28, 2
  s_waitcnt lgkmcnt(0)
  s_cselect_b32 s4, s22, s20
  s_cselect_b32 s5, s23, s21
  s_add_u32 s4, s4, s27
  s_addc_u32 s5, s5, 0
  s_add_u32 s8, s24, {HB_OFF}
  s_addc_u32 s9, s25, 0""")
    if diag: a("  s_memtime s[74:75]")
    S = Stream()
    NST = 16
    pend = []
    def dma(st, n):
        S.add(f"  s_add_u32 m0, s18, {(st%2)*SLOT + n*1024}")
        pend.append((f"  buffer_load_dwordx4 v{1+n}, s[4:7], s16 offen lds", ('W', st, n)))
    def xload(st, ks, n):
        S.add(f"  buffer_load_dwordx4 {ar(xreg(st%2,ks,n),4)}, v8, s[8:11], s17 offen offset:{256*n}", 'vm', ('X', st, ks, n))
        if n == 3: S.add(f"  s_add_u32 s17, s17, {4*32768}")
    def flush_pend():
        while pend:
            t, tag = pend.pop(0)
            S.add(t, 'vm', tag)
            if tag[2] == NT-1:
                S.add(f"  s_add_u32 s16, s16, {64*7168}")
                if tag[1] % 2 == 1:
                    S.add(f"  s_add_u32 s18, s18, s22\n  s_sub_u32 s22, 0, s22")
    def trread(st, f):
        ks, rem = divmod(f, NF); j, m = divmod(rem, 2)
        r = AF + 4*(((st%2)*2*NF + f) % RING)
        for jj in range(2):
            off = (st%2)*SLOT + m*MATB + (32*ks+8*jj)*ROWB + 32*j
            S.add(f"  ds_read_b64_tr_b16 {ar(r+2*jj,2)}, v9 offset:{off}", 'lg', ('A', st, f, jj))
    for q in range(4):
        S.add(f"  buffer_load_dwordx4 {vr(SR+4*q,4)}, v16, s[8:11], s{55+q} offen", 'vm', ('S', q))
    zr = list(range(ACC+20, 256))
    def zero(k):
        for _ in range(min(k, len(zr))): S.add(f"  v_mov_b32 v{zr.pop(0)}, 0")
    for n in range(NT):
        dma(0, n); zero(2); flush_pend()
    for n in range(4): xload(0, 0, n); zero(2)
    S.add(f"""  s_add_u32 s60, s24, {CS_OFF}
  s_addc_u32 s61, s25, 0
  s_mov_b32 s62, {4*7168*4}
  s_mov_b32 s63, 0x20000
  v_min_u32 v18, 223, v0
  v_cmp_le_u32 vcc, 112, v18
  v_lshlrev_b32 v18, 2, v18
  v_add_u32 v19, {(3584-112)*4}, v18
  s_mul_i32 s59, s26, {112*4}
  v_cndmask_b32 v19, v18, v19, vcc
  v_add_u32 v18, {CSL}, v18""")
    for q in range(4):
        S.add(f"  buffer_load_dword v{SR+16+q}, v19, s[60:63], s59 offen", 'vm', ('C', q))
        if q < 3: S.add(f"  s_add_u32 s59, s59, {7168*4}")
    S.add(f"""  s_mov_b32 s21, {2*SLOT}
  s_mov_b32 s22, {2*SLOT}
  v_lshlrev_b32 v17, 3, v17
  v_add_u32 v17, {RED}, v17
  s_lshl_b32 s29, s28, 6
  v_add_u32 v20, s29, v17
  v_mov_b32 v22, 0
  v_mov_b32 v23, 0
  s_mov_b32 s23, 0x3f803f80""")
    zero(ZA)
    if diag: S.add("  s_memtime s[76:77]")
    S.wait(vm=('S', 3))
    if diag: S.add("  s_memtime s[78:79]")
    for i in range(16):
        S.add(f"  v_dot2c_f32_bf16 v22, s23, v{SR+i}\n  v_dot2c_f32_bf16 v23, v{SR+i}, v{SR+i}")
        if i % 4 == 3: xload(0, 1, i//4)
    for r in range(SR, SR+16): S.add(f"  v_mov_b32 v{r}, 0")
    S.add("""  v_add_f32_dpp v22, v22, v22 row_ror:8 row_mask:0xf bank_mask:0xf
  v_add_f32_dpp v23, v23, v23 row_ror:8 row_mask:0xf bank_mask:0xf""")
    for sw in ["v_permlane16_swap_b32", "v_permlane32_swap_b32"]:
        S.add(f"""  v_mov_b32 v24, v22
  v_mov_b32 v25, v23
  s_nop 0
  {sw} v24, v22
  {sw} v25, v23
  v_pk_add_f32 v[22:23], v[22:23], v[24:25]""")
    S.add(f"  ds_write_b64 v20, v[22:23]", 'lg', ('R', 0))
    for n in range(NT):
        dma(1, n); zero(14); S.add("  s_nop 0"); flush_pend()
    for n in range(4): xload(1, 0, n); zero(10)
    zero(999)
    S.add(f"""  s_add_u32 s12, s24, {ACT_OFF}
  s_addc_u32 s13, s25, 0
  s_mul_i32 s73, s26, {NT*2*32768}
  s_add_u32 s14, s73, {NT*2*32768}
  s_add_u32 s84, s24, {XB_OFF}
  s_addc_u32 s85, s25, 0
  s_mov_b32 s87, 0x20000
  s_lshl_b32 s82, s2, 2
  s_add_u32 s82, s82, s28
  s_mul_i32 s82, s82, {max(ptx,1)*1024}
  s_add_u32 s86, s82, {ptx*1024}
  v_lshlrev_b32 v21, 4, v11
  s_mov_b32 s15, 0x20000
  s_add_u32 s64, s24, {ST2_OFF}
  s_addc_u32 s65, s25, 0
  s_mov_b32 s66, 8192
  s_mov_b32 s67, 0x20000
  s_mov_b32 s68, s52
  s_mov_b32 s69, s53
  s_mov_b32 s70, {3584*2048}
  s_mov_b32 s71, 0x20000
  v_lshrrev_b32 v14, 1, v12
  v_lshlrev_b32 v14, 11, v14
  v_and_b32 v15, 1, v12
  v_lshl_add_u32 v14, v15, 4, v14
  v_add_lshl_u32 v10, v14, v13, 4
  v_lshrrev_b32 v14, 1, v12
  v_lshlrev_b32 v14, 4, v14
  v_lshl_add_u32 v14, v15, 2, v14
  v_bfe_u32 v15, v11, 2, 2
  v_add_u32 v14, v14, v15
  v_mul_u32_u24 v14, {ROWB}, v14
  v_and_b32 v15, 3, v11
  v_lshl_add_u32 v9, v15, 3, v14
  v_lshlrev_b32 v26, 2, v13
  v_lshlrev_b32 v27, 4, v12
  v_add_u32 v27, {CSL}, v27
  v_min_u32 v11, {6 if pfd == 1 else 55}, v11
  s_mul_i32 s29, s28, {7 if pfd == 1 else 56}
  v_add_lshl_u32 v11, v11, s29, 7
  s_mul_i32 s72, s2, {(28 if pfd == 1 else 224)*128}""")
    if diag: S.add("  s_memtime s[80:81]")
    S.wait(vm=('C', 3))
    S.add(f"""  v_add_f32 v{SR+16}, v{SR+16}, v{SR+17}
  v_add_f32 v{SR+18}, v{SR+18}, v{SR+19}
  v_add_f32 v{SR+16}, v{SR+16}, v{SR+18}""")
    S.add(f"  ds_write_b32 v18, v{SR+16}", 'lg', ('R', 1))
    for r in range(SR+16, SR+20): S.add(f"  v_mov_b32 v{r}, 0")
    S.wait(vm=('W', 0, NT-1), lg=('R', 1))
    S.add("  s_barrier")
    if diag: S.add("  s_memtime s[32:33]\n  s_waitcnt lgkmcnt(0)")
    for q in range(4):
        S.add(f"  ds_read_b64 {vr(12+2*q,2)}, v17 offset:{64*q}", 'lg', ('R2', q))
    for f in range(AHEAD): trread(0, f)
    S.wait(lg=('R2', 3))
    fin = Asm()
    fin("""  v_pk_add_f32 v[12:13], v[12:13], v[14:15]
  v_pk_add_f32 v[16:17], v[16:17], v[18:19]
  v_pk_add_f32 v[12:13], v[12:13], v[16:17]""")
    ln_pack(fin, 12, 13, 14, 15)
    fin(f"""  v_and_b32 v15, 7, v0
  v_add_lshl_u32 v15, v15, s54, 2""")
    S.add(fin.text().rstrip())
    S.add(f"  s_cmp_eq_u32 s28, 0\n  s_cselect_b32 s66, 8192, 0\n  s_mov_b64 exec, 0xff")
    S.add(f"  buffer_store_dword v14, v15, s[64:67], 0 offen sc1", 'vm', ('T', 0))
    S.add(f"  s_mov_b64 exec, -1\n  s_mov_b32 s66, 8192\n  s_mov_b32 s19, 0")
    if dpos is None: dpos = [8, 10, 12, NF, NF+8, NF+10, NF+12]
    if xpos is None: xpos = [1, 3, 5, 7]
    for st in range(NST):
        if st % 2 == 0: S.mark(('body', st//2))
        acts = {}
        for n in range(4):
            acts.setdefault((xpos[n], 1), []).append(('x', st+1, 1, n))
            acts.setdefault((NF+xpos[n], 1), []).append(('x', st+2, 0, n))
        for n in range(NT):
            acts.setdefault((dpos[n], 1), []).append(('d', st+2, n))
        if st % 2 == 0:
            for n in range(4 if stl else 0): acts.setdefault((2+2*n, 2), []).append(('s', n))
            if pta:
                acts.setdefault((NF+4, 2), []).append(('a', 0))
            if ptx: acts.setdefault((4, 2), []).append(('b',))
        else:
            if pta: acts.setdefault((NF+4, 2), []).append(('a', 1))
        if st % 2 == 0:
            if pfd == 1: acts.setdefault((NF+2, 2), []).append(('p',))
        for f in range(2*NF):
            ks, rem = divmod(f, NF); j, m = divmod(rem, 2)
            fa = f + AHEAD
            ring = AF + 4*(((st%2)*2*NF + f) % RING)
            if fa == 2*NF:
                S.wait(vm=('W', st+1, NT-1))
                S.add("  s_barrier")
                if st % 2 == 1:
                    S.add("  v_add_u32 v9, s21, v9\n  s_sub_u32 s21, 0, s21")
            for n in range(4):
                if n == 0:
                    S.wait(lg=('A', st, f, 1), vm=(('X', st, ks, 3) if rem == 0 else None))
                c = acc(j, m, n)
                S.add(f"  v_mfma_f32_16x16x32_bf16 {vr(c,4)}, {ar(ring,4)}, {ar(xreg(st%2,ks,n),4)}, {vr(c,4)}")
                if n == 0:
                    if fa < 2*NF: trread(st, fa)
                    else: trread(st+1, fa-2*NF)
                flush_pend()
                for act in acts.get((f, n), []):
                    if act[0] == 'x': xload(act[1], act[2], act[3])
                    elif act[0] == 'd': dma(act[1], act[2])
                    elif act[0] == 'a':
                        S.add(f"  buffer_store_dwordx4 v[12:15], v10, s[12:15], s73 offen offset:{512*act[1]} sc1", 'vm', ('PA', st))
                        if act[1]: S.add(f"  s_add_u32 s73, s73, {2*32768}")
                    elif act[0] == 'b':
                        S.add(f"  buffer_store_dwordx4 v[12:15], v21, s[84:87], s82 offen sc1", 'vm', ('PB', st))
                        S.add(f"  s_add_u32 s82, s82, 1024")
                    elif act[0] == 's':
                        S.add(f"  buffer_load_dword v{28+act[1]}, v26, s[64:67], 0 offen offset:{64*act[1]} sc1", 'vm', ('Q', st, act[1]))
                    else:
                        S.add(f"  buffer_load_dword a{DUMMY}, v11, s[68:71], s72 offen", 'vm', ('P', st))
                        S.add(f"  s_add_u32 s72, s72, {7168*128}")
        assert not pend
        if st % 2 == 1:
            S.add(f"  s_add_u32 s19, s19, 1\n  s_cmp_lt_u32 s19, {NST//2}\n  s_cbranch_scc1 L_{name}_loop")
    S.mark('end')
    segs = split_marks(S.resolve())
    emit(a, segs[0][1])
    a("  .p2align 6")
    a(f"L_{name}_loop:")
    emit(a, merge_iters([s[1] for s in segs[1:1+NST//2]]))
    if diag: a("  s_memtime s[34:35]")
    if not stl:
        for n in range(4):
            a(f"  buffer_load_dword v{28+n}, v26, s[64:67], 0 offen offset:{64*n} sc1")
    a(f"""  s_mov_b32 s20, 0
L_{name}_poll:
  s_waitcnt vmcnt(0) lgkmcnt(0)
  v_min_u32 v1, v28, v29
  v_min3_u32 v1, v1, v30, v31
  v_cmp_eq_u32 vcc, 0, v1
  s_cbranch_vccz L_{name}_go
  s_add_u32 s20, s20, 1
  s_cmp_gt_u32 s20, 0x100000
  s_cbranch_scc1 L_{name}_go
  s_sleep 2""")
    for n in range(4):
        a(f"  buffer_load_dword v{28+n}, v26, s[64:67], 0 offen offset:{64*n} sc1")
    a(f"""  s_branch L_{name}_poll
L_{name}_go:""")
    if pfd == 2: a(f"  buffer_load_dword a{DUMMY}, v11, s[68:71], s72 offen")
    for n in range(4):
        a(f"""  v_and_b32 v1, 0xffff0000, v{28+n}
  v_lshlrev_b32 v{12+n}, 16, v{28+n}
  v_rcp_f32 v{16+n}, v1
  v_mul_f32 v{20+n}, v1, v1""")
    a(f"""  v_mov_b32 v11, v27
  s_mul_i32 s16, s26, {NT*2*32768}
  ds_read_b128 v[24:27], v11
  ds_read_b128 v[28:31], v11 offset:448""")
    for n in range(4): a(f"  v_mul_f32 v{16+n}, 0xbfb8aa3b, v{16+n}")
    def bc(base, n, pos):
        return vr(base + (n & ~1), 2), n & 1
    csG, csU = 24, 28
    for j in range(NT):
        a("  s_waitcnt lgkmcnt(0)")
        for n in range(4):
            G = acc(j, 0, n); U = acc(j, 1, n); h = n & 1
            M, x = bc(12, n, 1); K1, _ = bc(16, n, 1); S2, _ = bc(20, n, 1)
            for (R, cs) in ((G, csG), (U, csU)):
                for q in range(2):
                    a(f"  v_pk_fma_f32 {vr(R+2*q,2)}, {vr(cs+2*q,2)}, {M}, {vr(R+2*q,2)} op_sel:[0,{x},0] op_sel_hi:[1,{x},1] neg_lo:[0,1,0] neg_hi:[0,1,0]")
                if R == G:
                    for q in range(2):
                        a(f"  v_pk_mul_f32 {vr(2+2*q,2)}, {vr(G+2*q,2)}, {K1} op_sel:[0,{x}] op_sel_hi:[1,{x}]")
                    for q in range(4): a(f"  v_exp_f32 v{2+q}, v{2+q}")
            for q in range(2):
                a(f"  v_pk_fma_f32 {vr(2+2*q,2)}, {vr(2+2*q,2)}, {S2}, {S2} op_sel:[0,{x},{x}] op_sel_hi:[1,{x},{x}]")
            for q in range(4): a(f"  v_rcp_f32 v{2+q}, v{2+q}")
            for q in range(2): a(f"  v_pk_mul_f32 {vr(G+2*q,2)}, {vr(G+2*q,2)}, {vr(U+2*q,2)}")
            for q in range(2): a(f"  v_pk_mul_f32 {vr(G+2*q,2)}, {vr(G+2*q,2)}, {vr(2+2*q,2)}")
            a(f"  v_cvt_pk_bf16_f32 v{6+2*h}, v{G}, v{G+1}\n  v_cvt_pk_bf16_f32 v{7+2*h}, v{G+2}, v{G+3}")
            if n == 0 and j < NT-1:
                a(f"  ds_read_b128 {vr(G,4)}, v11 offset:{64*(j+1)}\n  ds_read_b128 {vr(U,4)}, v11 offset:{448+64*(j+1)}")
                nxt = (G, U)
            elif h == 1:
                a("  s_nop 1")
            if h == 1:
                a(f"""  v_permlane16_swap_b32 v6, v8
  v_permlane16_swap_b32 v7, v9
  buffer_store_dwordx4 v[6:9], v10, s[12:15], s16 offen offset:{256*(n-1)} {stflags}""")
        if j < NT-1:
            a(f"  s_add_u32 s16, s16, {2*32768}")
            csG, csU = nxt
    if diag:
        a("  s_memtime s[36:37]\n  s_waitcnt vmcnt(0)\n  s_memtime s[38:39]")
        diag_store(a, name, dbg_idx, [30, 74, 76, 78, 80, 32, 34, 36, 38], 24)
    a(f"L_{name}_end:\n  s_endpgm")
    desc = kernel_desc(name, 256+nagpr, 96, 256)
    return a.text(), desc, f"; @launch kernel={name} grid=(256,1,1) block=(256,1,1) lds={RED+256}"
```

```python
from asmgen import *
from sched import *
from layout import *
from g1 import diag_store
from conv import wave_allsum
from ka import ln_pack, USZ, UTOT, TROW, REG, YOFF, HHOFF, CSOFF

GRL = UTOT+4*REG

def gen_a8(name="a_kernel", diag=False, dbg_idx=0, selfpf=True, pfnext=(), sleep=4, NB1=2, CS1=16, BR=6, prio=True, GB=0, MPF=(), MPFN=32, rowfl='', comb=True, XPF=False, parfl='', THR=1, GP=5, nolds=False, xfl=''):
    csdec = f"""  s_mul_i32 s20, s2, 1171
  s_lshr_b32 s20, s20, 16
  s_mul_i32 s21, s20, 56
  s_sub_u32 s21, s2, s21            ; blk
  s_cmp_ge_u32 s21, 28
  s_cselect_b32 s44, s74, s72
  s_cselect_b32 s45, s75, s73
  s_cselect_b32 s22, 28, 0
  s_sub_u32 s22, s21, s22           ; cb
  s_cmp_lt_u32 s2, 224
  s_cselect_b32 s46, {1024*7168}, 0
  s_mov_b32 s47, 0x20000
  s_lshl_b32 s23, s20, 2
  s_add_u32 s23, s23, s28
  s_mul_i32 s23, s23, {64*7168}
  s_lshl_b32 s22, s22, 8
  s_add_u32 s92, s23, s22
  s_mul_i32 s20, s20, {7168*4}
  s_lshl_b32 s21, s21, 9
  s_add_u32 s93, s20, s21"""
    a = Asm()
    a(kernel_head(name))
    a(f"""  s_cmp_ge_u32 s2, 256
  s_cbranch_scc1 L_{name}_end""")
    if diag: a("  s_memrealtime s[40:41]\n  s_memtime s[30:31]")
    a(f"""  s_load_dwordx16 s[52:67], s[0:1], 0
  s_load_dwordx2 s[68:69], s[0:1], 64
  s_load_dwordx4 s[72:75], s[0:1], 80
  s_load_dwordx2 s[24:25], s[0:1], 120
  v_lshrrev_b32 v1, 6, v0
  v_and_b32 v2, 63, v0
  s_and_b32 s3, s2, 7
  v_readfirstlane_b32 s28, v1       ; wave
  s_lshl_b32 s3, s3, 5
  s_lshr_b32 s26, s2, 3
  s_add_u32 s26, s26, s3            ; cg
  s_cmp_ge_u32 s28, 4
  s_cbranch_scc1 L_{name}_helper""")
    BRG = 64
    RW = 64
    ACC = [96, 112]
    if selfpf:
        a(f"""  s_getpc_b64 s[76:77]
  v_lshlrev_b32 v3, 6, v0
  global_load_dword v127, v3, s[76:77]""")
    a(f"""  s_lshl_b32 s27, s26, 2
  s_add_u32 s27, s27, s28           ; d
  s_lshl_b32 s29, s27, 8
  v_lshl_add_u32 v3, v2, 2, s29
  s_lshr_b32 s29, s27, 1
  s_lshl_b32 s29, s29, 2
  s_mul_i32 s19, s28, {REG}
  s_add_u32 s19, s19, {UTOT}
  v_lshl_add_u32 v7, v2, 3, s19
  s_lshr_b32 s20, s2, 2
  s_lshl_b32 s20, s20, 5
  s_and_b32 s21, s2, 3
  s_add_u32 s20, s20, s21
  s_lshl_b32 s21, s28, 3
  s_add_u32 s20, s20, s21
  s_lshl_b32 s20, s20, 11
  s_add_u32 s21, s20, {4*2048}
  v_lshlrev_b32 v14, 4, v2
  s_mov_b32 s6, {4<<20}
  s_mov_b32 s7, 0x20000
  s_mov_b32 s22, {NONCE_OFF}
  s_waitcnt lgkmcnt(0)
  s_mov_b32 s4, s52
  s_mov_b32 s5, s53
  s_load_dword s70, s[24:25], s22
  buffer_load_dwordx4 {vr(RW,4)}, v14, s[4:7], s20 offen {rowfl}
  buffer_load_dwordx4 {vr(RW+4,4)}, v14, s[4:7], s20 offen offset:1024 {rowfl}
  buffer_load_dwordx4 {vr(RW+8,4)}, v14, s[4:7], s21 offen {rowfl}
  buffer_load_dwordx4 {vr(RW+12,4)}, v14, s[4:7], s21 offen offset:1024 {rowfl}
  s_load_dword s16, s[66:67], s29
  s_load_dword s17, s[68:69], s29
  global_load_dword v8, v3, s[54:55] {parfl}
  global_load_dword v9, v3, s[56:57] {parfl}
  global_load_dword v10, v3, s[58:59] {parfl}
  global_load_dword v11, v3, s[60:61] {parfl}
  global_load_dword v12, v3, s[62:63] {parfl}
  global_load_dword v13, v3, s[64:65] {parfl}""")
    if XPF:
        a(f"""  s_lshr_b32 s20, s2, 3
  s_lshl_b32 s20, s20, 2
  s_add_u32 s20, s20, s28
  s_lshl_b32 s20, s20, 15
  s_and_b32 s21, s2, 7
  s_lshl_b32 s21, s21, 8
  s_add_u32 s20, s20, s21
  v_bfe_u32 v14, v2, 1, 4
  v_and_b32 v15, 1, v2
  v_lshlrev_b32 v14, 11, v14
  v_lshl_add_u32 v14, v15, 7, v14
  v_add_u32 v14, s20, v14
  global_load_dword v126, v14, s[52:53]""")
    a("  s_barrier")
    if prio: a("  s_setprio 1")
    MK = [None, 28, 29, 30]; NK = [None, 31, 62, 63]
    a(f"""  v_and_b32 v24, 31, v2
  v_lshlrev_b32 v5, 4, v24
  v_lshlrev_b32 v14, 2, v24
  v_mul_u32_u24 v24, {TROW}, v24
  v_lshrrev_b32 v15, 5, v2          ; h / kg
  v_lshl_add_u32 v24, v15, 4, v24
  v_add_u32 v24, s19, v24
  v_add_u32 v5, s19, v5
  v_lshl_add_u32 v4, v15, 3, v5
  v_lshl_add_u32 v5, v15, 10, v5
  s_add_u32 s20, s19, {YOFF}
  v_lshl_add_u32 v26, v15, 12, v14
  v_add_u32 v26, s20, v26
  v_lshlrev_b32 v16, 10, v15
  v_sub_u32 v27, v14, v16
  s_add_u32 s20, s19, {HHOFF+1040}
  v_add_u32 v27, s20, v27
  v_cmp_eq_u32 s[78:79], 1, v15
  v_bfe_u32 v16, v2, 4, 1           ; gamma&1
  v_and_b32 v17, 1, v2
  v_cmp_eq_u32 s[80:81], 1, v17
  v_lshlrev_b32 v17, 4, v17
  v_lshl_add_u32 v17, v16, 3, v17
  v_and_b32 v16, 2, v2
  v_lshl_add_u32 v17, v16, 1, v17   ; q0
  v_lshlrev_b32 v16, 5, v15
  v_sub_u32 v17, v17, v16
  v_bfe_u32 v16, v2, 2, 2
  v_lshlrev_b32 v16, 2, v16
  v_sub_u32 v17, v17, v16
  v_add_u32 v17, 48, v17
  v_lshl_add_u32 v6, v17, 1, s19
  v_bfe_u32 v16, v2, 2, 3           ; p
  v_add_u32 v16, v16, v15
  v_and_b32 v17, 3, v2              ; rho
  v_mul_u32_u24 v18, 1216, v17
  v_lshl_add_u32 v16, v16, 4, v18
  s_mul_i32 s20, s28, {USZ}
  v_add_u32 v25, s20, v16""")
    for dl in range(1, 4):
        a(f"""  v_cmp_le_u32 vcc, {dl}, v17
  s_nop 1
  v_cndmask_b32 v{MK[dl]}, 0, 1.0, vcc
  v_cndmask_b32 v{NK[dl]}, 1.0, 0, vcc""")
    a(f"""  s_waitcnt lgkmcnt(0)
  s_and_b32 s29, s28, 1
  s_lshl_b32 s29, s29, 4
  s_lshr_b32 s16, s16, s29
  s_lshl_b32 s16, s16, 16           ; log_dt
  s_lshr_b32 s17, s17, s29
  s_lshl_b32 s17, s17, 16           ; Dskip
  v_mov_b32 v14, 0x3fb8aa3b
  v_mul_f32 v14, s16, v14
  v_exp_f32 v14, v14
  v_cmp_eq_u32 vcc, 0, v2
  v_mov_b32 v3, s17
  v_cvt_pk_bf16_f32 v14, v14, v14
  v_cndmask_b32 v3, 0, v3, vcc
  v_lshlrev_b32 v14, 16, v14        ; dt
  v_mul_f32 v15, 0x3fb8aa3b, v14    ; dt*log2e
  v_mul_f32 v16, 0.15915494, v14    ; dt/2pi
{csdec if MPF else ''}
  v_lshrrev_b32 v60, 1, v2
  v_mul_u32_u24 v60, 7168, v60
  v_and_b32 v61, 1, v2
  v_lshl_add_u32 v60, v61, 7, v60
  s_add_u32 s8, s24, {ST1_OFF}
  s_addc_u32 s9, s25, 0
  s_mov_b32 s10, 16384
  s_mov_b32 s11, 0x20000
  v_mov_b32 v32, 0
  v_mov_b32 v33, 0
  v_mov_b32 v34, 0
  v_mov_b32 v35, 0
  s_mov_b32 s22, 0x3f803f80
  s_add_u32 s70, s70, 1
  s_waitcnt vmcnt({8+(1 if XPF else 0)})""")
    for row in range(2):
        if row: a(f"  s_waitcnt vmcnt({6+(1 if XPF else 0)})")
        for i in range(8):
            r = RW+8*row+i
            a(f"  v_dot2c_f32_bf16 v{32+row}, s22, v{r}\n  v_dot2c_f32_bf16 v{34+row}, v{r}, v{r}")
    if diag: a("  s_memtime s[32:33]")
    a("  s_nop 1")
    wave_allsum(a, [32, 33, 34, 35], [36, 37, 38, 39])
    ln_pack(a, 32, 34, 36, 40)
    ln_pack(a, 33, 35, 38, 40)
    a(f"""  v_mov_b32 v37, s70
  v_mov_b32 v39, s70
  s_lshl_b32 s21, s28, 4
  s_add_u32 s21, s21, {GRL}
  v_mov_b32 v32, s21
  v_mov_b32 v33, {GRL+64}
  v_mov_b32 v34, 1
  s_mov_b64 exec, 1
  ds_write_b128 v32, v[36:39]
  ds_add_rtn_u32 v34, v33, v34
  s_waitcnt lgkmcnt(0)
  v_cmp_eq_u32 vcc, 3, v34
  s_mov_b64 exec, -1
  s_cbranch_vccz L_{name}_nopub
  v_and_b32 v32, 3, v2
  v_lshlrev_b32 v32, 4, v32
  v_add_u32 v33, {GRL}, v32
  ds_read_b128 v[36:39], v33
  s_lshl_b32 s20, s2, 6
  s_mov_b64 exec, 15
  s_waitcnt lgkmcnt(0)
  buffer_store_dwordx4 v[36:39], v32, s[8:11], s20 offen sc1
  s_mov_b64 exec, -1
  s_waitcnt vmcnt({1+(1 if XPF else 0)})
  s_branch L_{name}_pub
L_{name}_nopub:
  s_waitcnt vmcnt({1 if XPF else 0})
L_{name}_pub:""")
    if diag: a("  s_memtime s[88:89]")
    def unp(dst, src, n):
        a(f"  v_lshlrev_b32 v{dst}, 16, v{src}" if n == 0 else f"  v_and_b32 v{dst}, 0xffff0000, v{src}")
    for n in range(2):
        unp(32+n, 8, n); unp(34+n, 9, n); unp(36+2*n, 10, n); unp(37+2*n, 11, n); unp(40+2*n, 12, n); unp(41+2*n, 13, n)
    a("""  v_mul_f32 v32, v32, v15
  v_mul_f32 v33, v33, v15
  v_mul_f32 v34, v34, v16
  v_mul_f32 v35, v35, v16
  v_pk_mul_f32 v[36:37], v[36:37], v[14:15] op_sel:[0,0] op_sel_hi:[1,0]
  v_pk_mul_f32 v[38:39], v[38:39], v[14:15] op_sel:[0,0] op_sel_hi:[1,0]""")
    T = 16
    def cmul(dst, x, w):
        for n in range(2):
            a(f"  v_pk_mul_f32 {vr(T+2*n,2)}, {vr(x+2*n,2)}, {vr(w+2*n,2)} op_sel:[0,0] op_sel_hi:[1,0]")
        for n in range(2):
            a(f"  v_pk_fma_f32 {vr(dst+2*n,2)}, {vr(x+2*n,2)}, {vr(w+2*n,2)}, {vr(T+2*n,2)} op_sel:[1,1,0] op_sel_hi:[0,1,1] neg_lo:[1,0,0]")
    def cexp(dst, l):
        lit = {1: "1.0", 8: "0x41000000", 256: "0x43800000"}[l]
        for n in range(2):
            a(f"  v_mul_f32 v{T+n}, {lit}, v{32+n}\n  v_mul_f32 v{T+2+n}, {lit}, v{34+n}")
        for n in range(2):
            a(f"  v_exp_f32 v{T+n}, v{T+n}\n  v_fract_f32 v{T+2+n}, v{T+2+n}")
        for n in range(2):
            a(f"  v_cos_f32 v{dst+2*n}, v{T+2+n}\n  v_sin_f32 v{dst+2*n+1}, v{T+2+n}")
        a("  s_nop 0")
        for n in range(2):
            a(f"  v_pk_mul_f32 {vr(dst+2*n,2)}, {vr(dst+2*n,2)}, {vr(T,2)} op_sel:[0,{n}] op_sel_hi:[1,{n}]")
    tog = [0]; cnt = [0]
    def mpf():
        return a(mpft())
    def mpft():
        return f"""  s_mov_b64 exec, {'-1' if MPFN == 64 else hex((1 << MPFN)-1)}
  buffer_load_dword v61, v60, s[44:47], s92 offen
  s_mov_b64 exec, -1
  s_add_u32 s92, s92, {(MPFN//2)*7168}"""
    def emitrow(x, rows, neg):
        t = 20 + 2*tog[0]; tog[0] ^= 1
        s = "-" if neg else ""
        a(f"  v_cvt_pk_bf16_f32 v{t}, v{x}, {s}v{x+1}\n  v_cvt_pk_bf16_f32 v{t+1}, v{x+2}, {s}v{x+3}")
        for r in rows: a(f"  ds_write_b64 v7, {vr(t,2)} offset:{r*TROW}" if not nolds else "  s_nop 0")
        cnt[0] += 1
        if cnt[0] == GB: a("  s_barrier")
        if cnt[0] in MPF: mpf()
    C, E1, E8, E256, Z, W, E2 = 36, 44, 48, 52, 56, 8, 40
    cmul(C, 36, 40)
    cexp(E1, 1); cexp(E8, 8); cexp(E256, 256)
    rowmap = {}
    for h, lst in enumerate([[0,1,2,3,256,258,260,None,512,516,768,772,1024,1032,1280,1288],
                             [4,5,6,7,260,262,264,None,516,520,772,776,1536,1544,1792,1800]]):
        for k, v in enumerate(lst):
            if v is not None: rowmap.setdefault(v, []).append(8*(k//4) + 4*h + (k % 4))
    emitrow(C, rowmap[0], True)
    cmul(W, C, E1); emitrow(W, rowmap[1], True)
    for l in range(2, 8):
        cmul(W, W, E1); emitrow(W, rowmap[l], True)
    cmul(E2, E1, E1)
    cmul(E1, E2, E2)
    E4 = E1
    cmul(Z, C, E256); emitrow(Z, rowmap[256], True)
    cmul(W, Z, E2); emitrow(W, rowmap[258], True)
    for l in (260, 262, 264):
        cmul(W, W, E2); emitrow(W, rowmap[l], True)
    for b in (512, 768):
        cmul(Z, Z, E256); emitrow(Z, rowmap[b], True)
        cmul(W, Z, E4); emitrow(W, rowmap[b+4], True)
        cmul(W, W, E4); emitrow(W, rowmap[b+8], True)
    for b in (1024, 1280, 1536, 1792):
        cmul(Z, Z, E256); emitrow(Z, rowmap[b], True)
        cmul(W, Z, E8); emitrow(W, rowmap[b+8], True)
    a(f"""  v_mov_b32 v20, 0x3f80
  v_mov_b32 v21, 0x3f80
  ds_write_b64 v7, v[20:21] offset:{32*TROW}""")
    tog[0] = 1
    emitrow(E8, [33], False)
    cmul(W, E8, E8); emitrow(W, [34], False)
    for j in range(3, 32):
        cmul(W, W, E8); emitrow(W, [32+j], False)
    S = Stream()
    for s in range(16):
        S.add(f"  ds_read_b128 {ar(8*s,4)}, v24 offset:{32*s}", 'lg', ('a', s))
        S.add(f"  ds_read_b128 {ar(8*s+4,4)}, v24 offset:{32*TROW+32*s}", 'lg', ('b', s))
        if s >= 6:
            q = s-6
            S.wait(lg=('b', q))
            S.add(f"  v_mfma_f32_32x32x16_bf16 {vr(ACC[0],16)}, {ar(8*q,4)}, {ar(8*q+4,4)}, {vr(ACC[0],16) if q else 0}")
    for q in range(10, 16):
        S.wait(lg=('b', q))
        S.add(f"  v_mfma_f32_32x32x16_bf16 {vr(ACC[0],16)}, {ar(8*q,4)}, {ar(8*q+4,4)}, {vr(ACC[0],16)}")
    emit(a, S.resolve())
    for _ in range(MPF.count(99)): mpf()
    D = ACC[0]
    a(f"""  v_mov_b32 v20, 0
  v_min_u32 v21, 15, v2
  v_lshl_add_u32 v21, v21, 2, s19
  ds_write_b32 v21, v20
  ds_write_b32 v21, v20 offset:{HHOFF}
  s_nop 6
  v_add_f32 v{D}, v{D}, v3
  v_cvt_pk_bf16_f32 v8, v{D}, v{D+1}
  v_cvt_pk_bf16_f32 v9, v{D+2}, v{D+3}
  ds_write_b64 v4, v[8:9] offset:64
  v_cvt_pk_bf16_f32 v10, v{D+4}, v{D+4}
  v_cvt_pk_bf16_f32 v11, v{D+5}, v{D+6}
  ds_write_b64 v4, v[10:11] offset:{64+512}""")
    for k in range(2):
        A, B = D+8+2*k, D+9+2*k
        t = 8+2*k
        a(f"""  v_cndmask_b32 v12, v{A}, v{B}, s[78:79]
  v_cvt_pk_bf16_f32 v{t}, v{A}, v{A}
  v_cvt_pk_bf16_f32 v{t+1}, v12, v{B}
  ds_write_b64 v4, {vr(t,2)} offset:{64+1024+512*k}""")
    for k in range(2):
        A, B = D+12+2*k, D+13+2*k
        t = 16+4*k
        a(f"""  v_cndmask_b32 v12, v{A}, v{B}, s[80:81]
  v_cvt_pk_bf16_f32 v{t}, v{A}, v{A}
  v_cvt_pk_bf16_f32 v{t+1}, v{A}, v{A}
  v_cvt_pk_bf16_f32 v{t+2}, v12, v{B}
  v_cvt_pk_bf16_f32 v{t+3}, v{B}, v{B}
  ds_write_b128 v5, {vr(t,4)} offset:{64+2048+512*k}""")
    S = Stream()
    def AF(c): return 4*c
    def rdA(c):
        return [(f"  ds_read_b64_tr_b16 {ar(AF(c),2)}, v6 offset:{128*c+32}", ('A0', c)),
                (f"  ds_read_b64_tr_b16 {ar(AF(c)+2,2)}, v6 offset:{128*c}", ('A', c))]
    QP = {1: "[3,0,1,2]", 2: "[2,3,0,1]", 3: "[1,2,3,0]"}
    def adds(i):
        ops = []
        D = ACC[i % 2]; H = 22 + (i % 2)
        def dpp(op, dst, src, msk, dl):
            ops.append((f"  {op} v{dst}, v{src}, v{msk} quad_perm:{QP[dl]} row_mask:0xf bank_mask:0xf", 'v'))
        for ip in range(4):
            for dl in range(1, 4):
                dpp("v_fmac_f32_dpp", D+4*ip, D+4*ip+dl, MK[dl], dl)
                if ip < 3: dpp("v_fmac_f32_dpp", D+4*ip+4, D+4*ip+dl, NK[dl], dl)
                else: dpp("v_mul_f32_dpp" if dl == 1 else "v_fmac_f32_dpp", H, D+4*ip+dl, NK[dl], dl)
            if ip % 2 == 1:
                ops.append((f"  ds_write2st64_b32 v26, v{D+4*ip-4}, v{D+4*ip} offset0:{4*ip-4} offset1:{4*ip}", 'w'))
        ops.append((f"  ds_write_b32 v27, v{H} offset:{128*i}", 'w'))
        ops.append((f"  v_add_u32 v26, 128, v26", 'v'))
        return ops
    for c in range(8):
        for t, tag in rdA(c): S.add(t, 'lg', tag)
    if diag: S.add("  s_memtime s[34:35]")
    S.add("  s_waitcnt lgkmcnt(0)\n  s_barrier")
    if diag: S.add("  s_memtime s[36:37]\n  s_waitcnt lgkmcnt(0)")
    seq = [(i, c) for i in range(8) for c in range(4*i+4)]
    def rdB(m):
        i, c = seq[m]
        S.add(f"  ds_read_b128 {vr(BRG+4*(m%BR),4)}, v25 offset:{(7+2*(4*i-c))*16}", 'lg', ('B', m))
    for m in range(BR-1): rdB(m)
    m = 0
    for i in range(8):
        fill = []
        if 1 <= i < 7:
            for c in range(4*i+4, 4*i+8): fill += rdA(c)
        if i > 0: fill = fill + adds(i-1)
        n = 4*i+4
        per = min(-(-len(fill)//(n-1)), 4) if i > 1 else -(-len(fill)//n)
        issued = 0
        for c in range(n):
            S.wait(lg=[('A', c), ('B', m)])
            S.add(f"  v_mfma_f32_32x32x16_bf16 {vr(ACC[i%2],16)}, {ar(AF(c),4)}, {vr(BRG+4*(m%BR),4)}, {vr(ACC[i%2],16) if c else 0}")
            issued += 1
            if m+BR-1 < len(seq):
                rdB(m+BR-1); issued += 1
            m += 1
            if (100+m) in MPF: S.add(mpft())
            cnt = 0
            while fill and cnt < per:
                t, tag = fill[0]
                if tag in ('v', 'w') and issued < 13: break
                fill.pop(0); S.add(t, None if tag == 'v' else 'lg', None if tag == 'w' else tag); cnt += 1; issued += 1
        for t, tag in fill: S.add(t, None if tag == 'v' else 'lg', None if tag == 'w' else tag)
    S.add("  s_nop 11")
    for t, tag in adds(7): S.add(t, None if tag == 'v' else 'lg', None)
    emit(a, S.resolve())
    if diag: a("  s_memtime s[38:39]")
    a("  s_waitcnt lgkmcnt(0)\n  s_barrier")
    if diag:
        a("  s_memtime s[50:51]")
        diag_store(a, name, dbg_idx, [30, 32, 88, 34, 36, 38, 50], 24)
    a("  s_endpgm")
    XP, ST, XF, YR = 16, 32, 48, 80
    a(f"""L_{name}_helper:
  v_and_b32 v0, 255, v0
  v_mov_b32 v12, 0
  v_mov_b32 v13, {GRL+64}
  ds_write_b32 v13, v12
  s_sub_u32 s28, s28, 4
  v_lshrrev_b32 v4, 2, v0           ; tb
  v_and_b32 v5, 3, v0               ; rho
  v_lshl_add_u32 v6, v4, 5, v5
  v_lshlrev_b32 v6, 11, v6
  s_lshl_b32 s18, s26, 3
  s_mov_b32 s6, {4<<20}
  s_mov_b32 s7, 0x20000
  s_mov_b32 s22, {NONCE_OFF}
  v_mov_b32 v112, 0
  v_mov_b32 v113, 0
  v_mov_b32 v114, 0
  v_mov_b32 v115, 0
  v_bfe_u32 v14, v0, 3, 4
  v_mul_u32_u24 v14, 1216, v14
  v_and_b32 v15, 7, v0
  v_lshl_add_u32 v14, v15, 4, v14
  ds_write_b128 v14, v[112:115]
  s_waitcnt lgkmcnt(0)
  s_mov_b32 s4, s52
  s_mov_b32 s5, s53
  s_load_dword s70, s[24:25], s22
  s_barrier""")
    a(f"""  s_add_u32 s8, s24, {ST1_OFF}
  s_addc_u32 s9, s25, 0
  s_mov_b32 s10, 16384
  s_mov_b32 s11, 0x20000
  s_lshl_b32 s20, s28, 12
  v_lshl_add_u32 v3, v2, 4, s20""")
    def granloads():
        for i in range(4):
            a(f"  buffer_load_dwordx4 {vr(ST+4*i,4)}, v3, s[8:11], 0 offen offset:{1024*i} sc1")
    setup = f"""  s_add_u32 s84, s24, {ZERO_OFF}
  s_addc_u32 s85, s25, 0
  s_mov_b32 s86, {ZERO_SIZE}
  s_mov_b32 s87, 0x20000
  s_add_u32 s12, s24, {HB_OFF}
  s_addc_u32 s13, s25, 0
  s_mov_b32 s14, {4<<20}
  s_mov_b32 s15, 0x20000
  v_mul_u32_u24 v7, 1216, v5
  v_lshl_add_u32 v7, v4, 4, v7
{csdec}
  v_lshrrev_b32 v12, 4, v2
  v_and_b32 v13, 15, v2
  s_lshl_b32 s20, s28, 8
  s_add_u32 s20, s20, 128
  v_mul_u32_u24 v108, 1216, v12
  v_lshl_add_u32 v108, v13, 4, v108
  v_add_u32 v108, s20, v108
  v_mul_u32_u24 v12, 7168, v12
  v_lshl_add_u32 v110, v13, 4, v12
  v_lshrrev_b32 v12, 2, v2
  v_mul_u32_u24 v109, 1216, v12
  v_lshl_add_u32 v109, v5, 6, v109
  v_add_u32 v109, s20, v109
  s_waitcnt lgkmcnt(0)
  s_add_u32 s70, s70, 1"""
    for e in range(8):
        a(f"  buffer_load_dwordx2 {vr(XP+2*e,2)}, v6, s[4:7], s18 offen {xfl}")
        if e < 7: a(f"  s_add_u32 s18, s18, 8192")
        if e == 1: a(setup)
        if e == GP: granloads()
        if e >= THR and e < 7:
            extra = 4 if e-THR <= GP <= e else 0
            a(f"  s_waitcnt vmcnt({THR+extra})")
            for ch in range(4): unp(XF+8*ch+e-THR, XP+2*(e-THR)+(ch >> 1), ch & 1)
    if diag: a("  s_memtime s[32:33]")
    a(f"""  s_mov_b32 s20, 0
  s_waitcnt vmcnt({7-GP})
L_{name}_poll:
  v_cmp_ne_u32 vcc, s70, v{ST+1}""")
    for i in range(1, 8):
        a(f"  v_cmp_ne_u32 s[22:23], s70, v{ST+2*i+1}\n  s_or_b64 vcc, vcc, s[22:23]")
    a(f"""  s_cbranch_vccz L_{name}_go
  s_add_u32 s20, s20, 1
  s_cmp_gt_u32 s20, 0x100000
  s_cbranch_scc1 L_{name}_go
  s_sleep {sleep}""")
    granloads()
    a(f"""  s_waitcnt vmcnt(0)
  s_branch L_{name}_poll
L_{name}_go:""")
    if diag: a("  s_memtime s[34:35]")
    for p in range(4):
        g0, g1 = ST+4*p, ST+4*p+2
        a(f"""  v_and_b32 v8, 0xffff0000, v{g0}
  v_and_b32 v9, 0xffff0000, v{g1}
  v_lshlrev_b32 v10, 16, v{g0}
  v_lshlrev_b32 v11, 16, v{g1}
  v_rcp_f32 v{g0}, v8
  v_rcp_f32 v{g0+1}, v9
  s_nop 0
  v_pk_mul_f32 {vr(g1,2)}, v[10:11], {vr(g0,2)} neg_lo:[1,0] neg_hi:[1,0]
  ds_write_b128 v108, {vr(g0,4)} offset:{4*1216*p}""")
    for p in range(4):
        a(f"  ds_read_b128 {vr(ST+4*p,4)}, v109 offset:{16*p}")
    a("  s_waitcnt vmcnt(1)")
    for e in range(7-THR, 7):
        for ch in range(4): unp(XF+8*ch+e, XP+2*e+(ch >> 1), ch & 1)
    UP = YR
    for p in range(4):
        if p == 3:
            a("  s_waitcnt vmcnt(0)")
            if diag: a("  s_memtime s[36:37]")
            for ch in range(4): unp(XF+8*ch+7, XP+14+(ch >> 1), ch & 1)
        a(f"  s_waitcnt lgkmcnt({3-p if not diag else 0})")
        for ch in range(4):
            t = 8+2*(ch % 2)
            a(f"  v_pk_fma_f32 {vr(t,2)}, {vr(XF+8*ch+2*p,2)}, {vr(ST+4*p,2)}, {vr(ST+4*p+2,2)}")
            a(f"  v_cvt_pk_bf16_f32 v{UP+4*ch+p}, v{t}, v{t+1}")
            if p == 3: a(f"  ds_write_b128 v7, {vr(UP+4*ch,4)} offset:{ch*USZ+128}")
    a("  s_waitcnt lgkmcnt(0)\n  s_barrier")
    if diag: a("  s_memtime s[38:39]")
    cl = list(range(16))
    def csld():
        n = cl.pop(0)
        a(f"  buffer_load_dwordx4 {ar(4*n,4)}, v110, s[44:47], s92 offen")
        if n < 15: a(f"  s_add_u32 s92, s92, {4*7168}")
    a(f"""  ; clear the hand-off area of the later launches
  s_mul_i32 s20, s2, 320
  v_min_u32 v14, 79, v0
  v_lshlrev_b32 v14, 2, v14
  buffer_store_dword v112, v14, s[84:87], s20 offen""")
    a("  v_lshlrev_b32 v3, 6, v0")
    for lab in pfnext:
        a(f"""  s_getpc_b64 s[76:77]
L_{name}_pc_{lab}:
  s_add_u32 s76, s76, {lab}-L_{name}_pc_{lab}
  s_addc_u32 s77, s77, 0
  global_load_dword v127, v3, s[76:77]""")
    a(f"""  s_cmp_lg_u32 s2, 0
  s_cbranch_scc1 L_{name}_noep
  v_mov_b32 v8, {NONCE_OFF}
  v_mov_b32 v9, s70
  global_store_dword v8, v9, s[24:25]
L_{name}_noep:
  v_lshlrev_b32 v7, 2, v0
  v_add_u32 v7, {UTOT+YOFF}, v7
  v_add_u32 v8, {REG}, v7
  v_add_u32 v9, {2*REG}, v7
  v_add_u32 v10, {3*REG}, v7
  s_lshl_b32 s20, s28, 13
  v_lshl_add_u32 v11, v2, 4, s20
  s_and_b32 s20, s26, 1
  s_lshl_b32 s20, s20, 3
  v_add_u32 v11, s20, v11
  s_lshr_b32 s20, s26, 1
  s_lshl_b32 s20, s20, 15
  s_add_u32 s21, s20, 4096
  v_and_b32 v12, 15, v2
  v_and_b32 v13, 1, v2
  v_lshlrev_b32 v13, 4, v13
  v_mov_b32 v14, 0x3f80
  v_lshlrev_b32 v13, v13, v14
  v_lshrrev_b32 v14, 1, v12""")
    for q in range(4):
        a(f"  v_cmp_eq_u32 vcc, {q}, v14\n  s_nop 1\n  v_cndmask_b32 v{116+q}, 0, v13, vcc")
    a(f"""  v_lshlrev_b32 v12, 5, v12
  v_lshrrev_b32 v13, 4, v2
  v_and_b32 v14, 1, v13
  v_lshl_add_u32 v12, v14, 4, v12
  v_lshrrev_b32 v13, 1, v13
  v_lshl_add_u32 v12, v13, 9, v12
  s_mul_i32 s19, s28, {REG}
  s_add_u32 s19, s19, {UTOT+CSOFF}
  v_add_u32 v124, s19, v12
  s_add_u32 s84, s24, {CS_OFF}
  s_addc_u32 s85, s25, 0
  s_cmp_lt_u32 s2, 224
  s_cselect_b32 s86, {4*7168*4}, 0
  s_mov_b32 s87, 0x20000
  v_and_b32 v125, 127, v0
  v_lshlrev_b32 v125, 2, v125
  v_add_u32 v126, {UTOT+CSOFF}, v125
  v_add_u32 v3, {2*REG}, v126""")
    while cl: csld()
    if diag: a("  s_memtime s[88:89]")
    a("  s_waitcnt vmcnt(0)")
    for n in range(16):
        a(f"  v_mfma_f32_16x16x32_bf16 v[120:123], v[116:119], {ar(4*n,4)}, {'v[120:123]' if n else 0}")
    a(f"""  s_nop 7
  ds_write_b128 v124, v[120:123]
  s_waitcnt lgkmcnt(0)
  s_barrier""")
    AD = [7, 8, 9, 10]
    for ch in range(4):
        a(f"  ds_read_b32 v{16+2*ch}, v{AD[ch]} offset:8192")
        a(f"  ds_read_b32 v{17+2*ch}, v{AD[ch]} offset:{8192+1040}")
    for p in range(4):
        for ch in range(4):
            a(f"  ds_read2st64_b32 {vr(YR+8*ch+2*p,2)}, v{AD[ch]} offset0:{8*p} offset1:{8*p+4}")
        if p == 0:
            a("  s_waitcnt lgkmcnt(4)")
            for ch in range(4):
                a(f"  v_add_f32 v{XF+8*ch}, v{XF+8*ch}, v{16+2*ch}\n  v_add_f32 v{XF+8*ch+4}, v{XF+8*ch+4}, v{17+2*ch}")
    for p in range(4):
        a(f"  s_waitcnt lgkmcnt({12-4*p})")
        for ch in range(4):
            a(f"  v_pk_add_f32 {vr(YR+8*ch+2*p,2)}, {vr(YR+8*ch+2*p,2)}, {vr(XF+8*ch+2*p,2)}")
        for k in range(2):
            e = 2*p+k; t = 24+2*(e % 4)
            a(f"""  v_cvt_pk_bf16_f32 v{t}, v{YR+e}, v{YR+8+e}
  v_cvt_pk_bf16_f32 v{t+1}, v{YR+16+e}, v{YR+24+e}
  buffer_store_dwordx2 {vr(t,2)}, v11, s[12:15], s{20+e//4} offen offset:{1024*(e%4)}""")
    if diag: a("  s_memtime s[90:91]")
    a(f"""  ds_read_b32 v14, v126
  ds_read_b32 v15, v126 offset:{REG}
  ds_read_b32 v16, v3
  ds_read_b32 v17, v3 offset:{REG}
  s_waitcnt lgkmcnt(0)
  v_add_f32 v14, v14, v15
  v_add_f32 v16, v16, v17
  v_add_f32 v14, v14, v16
  buffer_store_dword v14, v125, s[84:87], s93 offen""")
    if diag:
        a("  s_waitcnt vmcnt(0)\n  s_memtime s[50:51]\n  v_add_u32 v0, 256, v0")
        diag_store(a, name, dbg_idx, [30, 32, 34, 36, 38, 88, 90, 50], 24)
    a(f"L_{name}_end:\n  s_endpgm")
    return a.text(), kernel_desc(name, 256, 96, 128), f"; @launch kernel={name} grid=(256,1,1) block=(512,1,1) lds={UTOT+4*REG+128}"
```

```python
from asmgen import *
from sched import *
from layout import *
from g1 import diag_store
from ka import ln_pack

def gen_bc(name="b_kernel", diag=False, dbg_idx=0, AHEAD=3, P=4, sleep=1, xbf=True, outfl='', cpre=3):
    a = Asm()
    NT = 7; ROWB = NT*32; MATB = 64*ROWB; SLOT = 2*MATB; NF = 2*NT
    RING = AHEAD+1
    ACC = 32
    def acc(j, m, n): return ACC + ((j*2+m)*4+n)*4
    AF = 0
    XR = 4*RING
    def xreg(st2, ks, n): return XR + ((st2*2+ks)*4+n)*4
    SA = XR + 64
    DUMMY = SA + 16
    nagpr = DUMMY + 4
    CSL = 131072
    RED = CSL + 1024
    a(kernel_head(name))
    a(f"""  s_cmp_ge_u32 s2, 256
  s_cbranch_scc1 L_{name}_end""")
    if diag: a("  s_memrealtime s[40:41]\n  s_memtime s[30:31]")
    a(f"""  s_load_dwordx8 s[88:95], s[0:1], 80
  s_load_dwordx2 s[24:25], s[0:1], 120
  v_lshrrev_b32 v10, 6, v0
  v_and_b32 v11, 63, v0
  s_and_b32 s26, s2, 7
  s_lshr_b32 s27, s2, 3
  v_readfirstlane_b32 s28, v10
  s_and_b32 s3, s26, 1
  s_lshl_b32 s3, s3, 2
  s_and_b32 s29, s27, 3
  s_add_u32 s3, s3, s29             ; tt
  s_lshr_b32 s26, s26, 1
  s_lshl_b32 s26, s26, 3
  s_lshr_b32 s27, s27, 2
  s_add_u32 s26, s26, s27           ; ft
  s_lshl_b32 s52, s3, 1
  s_lshr_b32 s29, s26, 4
  s_add_u32 s52, s52, s29
  s_lshl_b32 s52, s52, 7
  s_lshl_b32 s3, s3, 8              ; t0
  s_lshl_b32 s54, s26, 3
  s_add_u32 s54, s54, s3
  s_lshl_b32 s29, s28, 6
  s_add_u32 s3, s3, s29             ; t0 + 64 w
  s_and_b32 s29, s28, 1
  s_lshl_b32 s29, s29, 5            ; 32*hf
  s_movk_i32 s19, 4682
  s_movk_i32 s18, 7168""")
    for n in range(NT):
        a(f"""  v_add_u32 v12, {64*n}, v11
  v_mul_u32_u24 v13, s19, v12
  v_lshrrev_b32 v13, 16, v13        ; pos_local
  v_mul_u32_u24 v14, 14, v13
  v_sub_u32 v12, v12, v14           ; part
  v_and_b32 v14, 4, v13
  v_and_b32 v15, 8, v13
  v_and_b32 v13, 0x13, v13
  v_lshl_or_b32 v13, v14, 1, v13
  v_lshrrev_b32 v15, 1, v15
  v_or3_b32 v13, v13, v15, s29      ; row
  v_mul_u32_u24 v13, s18, v13
  v_lshl_add_u32 v{1+n}, v12, 4, v13""")
    a(f"""  v_lshrrev_b32 v12, 4, v11         ; g
  v_and_b32 v13, 15, v11
  v_add_u32 v13, s3, v13            ; position
  v_lshlrev_b32 v14, 11, v12
  v_add_lshl_u32 v8, v14, v13, 4    ; X voffset
  s_mul_i32 s18, s28, {MATB//2}
  s_mov_b32 s16, 0                  ; W soffset
  s_mov_b32 s17, 0                  ; X soffset
  s_mov_b32 s7, 0x20000
  s_mov_b32 s10, {4<<20}
  s_mov_b32 s11, 0x20000
  s_mul_i32 s27, s26, {ROWB}
  s_sub_u32 s6, {1024*7168}, s27
  s_cmp_ge_u32 s28, 2
  s_waitcnt lgkmcnt(0)
  s_cselect_b32 s4, s90, s88
  s_cselect_b32 s5, s91, s89
  s_add_u32 s4, s4, s27
  s_addc_u32 s5, s5, 0
  s_add_u32 s8, s24, {HB_OFF}
  s_addc_u32 s9, s25, 0""")
    if diag: a("  s_memtime s[74:75]")
    S = Stream()
    NST = 16
    pend = []
    def dma(st, n):
        S.add(f"  s_add_u32 m0, s18, {(st%2)*SLOT + n*1024}")
        pend.append((f"  buffer_load_dwordx4 v{1+n}, s[4:7], s16 offen lds", ('W', st, n)))
    def xload(st, ks, n):
        S.add(f"  buffer_load_dwordx4 {ar(xreg(st%2,ks,n),4)}, v8, s[8:11], s17 offen offset:{256*n}", 'vm', ('X', st, ks, n))
        if n == 3: S.add(f"  s_add_u32 s17, s17, {4*32768}")
    def flush_pend():
        while pend:
            t, tag = pend.pop(0)
            S.add(t, 'vm', tag)
            if tag[2] == NT-1:
                S.add(f"  s_add_u32 s16, s16, {64*7168}")
                if tag[1] % 2 == 1:
                    S.add(f"  s_add_u32 s18, s18, s22\n  s_sub_u32 s22, 0, s22")
    def trread(st, f):
        ks, rem = divmod(f, NF); j, m = divmod(rem, 2)
        r = AF + 4*(((st%2)*2*NF + f) % RING)
        for jj in range(2):
            off = (st%2)*SLOT + m*MATB + (32*ks+8*jj)*ROWB + 32*j
            S.add(f"  ds_read_b64_tr_b16 {ar(r+2*jj,2)}, v9 offset:{off}", 'lg', ('A', st, f, jj))
    for n in range(NT):
        dma(0, n); S.add("  s_nop 0"); flush_pend()
    for n in range(4): xload(0, 0, n)
    for n in range(4): xload(0, 1, n)
    S.add(f"""  s_mov_b32 s21, {2*SLOT}
  s_mov_b32 s22, {2*SLOT}
  v_lshrrev_b32 v14, 1, v12
  v_and_b32 v15, 1, v12
  v_lshlrev_b32 v16, 11, v14
  v_lshl_add_u32 v16, v15, 4, v16
  v_add_lshl_u32 v10, v16, v13, 4
  v_lshlrev_b32 v14, 4, v14
  v_lshl_add_u32 v14, v15, 2, v14
  v_bfe_u32 v15, v11, 2, 2
  v_add_u32 v14, v14, v15
  v_mul_u32_u24 v14, {ROWB}, v14
  v_and_b32 v15, 3, v11
  v_lshl_add_u32 v9, v15, 3, v14
  v_lshlrev_b32 v26, 2, v13
  v_lshlrev_b32 v27, 4, v12
  v_add_u32 v27, {CSL}, v27
  v_lshrrev_b32 v16, 3, v0
  v_and_b32 v17, 7, v0
  v_lshlrev_b32 v16, 15, v16
  v_lshl_add_u32 v16, v17, 4, v16
  v_add_lshl_u32 v21, v17, s54, 2
  v_lshlrev_b32 v17, 3, v17
  v_add_u32 v17, {RED}, v17
  s_lshl_b32 s29, s28, 6
  v_add_u32 v20, s29, v17
  s_lshl_b32 s55, s54, 4
  v_min_u32 v18, 223, v0
  v_cmp_le_u32 vcc, 112, v18
  v_lshlrev_b32 v18, 2, v18
  v_add_u32 v19, {(3584-112)*4}, v18
  s_mul_i32 s59, s26, {112*4}
  v_cndmask_b32 v19, v18, v19, vcc
  v_add_u32 v18, {CSL}, v18
  v_min_u32 v11, 6, v11
  s_mul_i32 s29, s28, 7
  v_add_lshl_u32 v11, v11, s29, 7
  s_mul_i32 s72, s2, {28*128}
  s_add_u32 s60, s24, {CS_OFF}
  s_addc_u32 s61, s25, 0
  s_mov_b32 s62, {4*7168*4}
  s_mov_b32 s63, 0x20000
  s_add_u32 s12, s24, {ACT_OFF}
  s_addc_u32 s13, s25, 0
  s_mov_b32 s14, {ACT_SIZE}
  s_mov_b32 s15, 0x20000
  s_add_u32 s64, s24, {ST2_OFF}
  s_addc_u32 s65, s25, 0
  s_mov_b32 s66, {ZERO_SIZE}
  s_mov_b32 s67, 0x20000
  s_mov_b32 s68, s92
  s_mov_b32 s69, s93
  s_mov_b32 s70, {3584*2048}
  s_mov_b32 s71, 0x20000
  v_mov_b32 v22, 0
  v_mov_b32 v23, 0
  s_mov_b32 s23, 0x3f803f80
  s_mov_b32 s19, 1""")
    S.wait(vm=('W', 0, NT-1))
    S.add("  s_barrier")
    if diag: S.add("  s_memtime s[32:33]\n  s_waitcnt lgkmcnt(0)")
    for f in range(AHEAD): trread(0, f)
    dpos = [8, 10, 12, NF, NF+8, NF+10, NF+12]
    xpos = [1, 3, 5, 7]
    for st in range(NST):
        if st % 2 == 0 and st > 0:
            S.mark(('body', st//2))
            S.add(f"  s_cmp_eq_u32 s19, 1\n  s_cbranch_scc1 L_{name}_fin\nL_{name}_finret:")
        acts = {}
        def at(f, n, x): acts.setdefault((f, n), []).append(x)
        if st == 0:
            for n in range(NT): at(n, 1, ('d', 1, n))
            for n in range(4):
                at(7+n, 1, ('x', 1, 0, n)); at(NF-3+n, 2, ('x', 1, 1, n)); at(NF+2+n, 1, ('x', 2, 0, n))
            for n in range(NT): at(NF+6+n, 1, ('d', 2, n))
            for n in range(4): at(NF+6+2*n, 3, ('S', n))
        else:
            for n in range(4):
                at(xpos[n], 1, ('x', st+1, 1, n)); at(NF+xpos[n], 1, ('x', st+2, 0, n))
            for n in range(NT): at(dpos[n], 1, ('d', st+2, n))
        if st % 2 == 0 and st > 0: at(NF+2, 2, ('p',))
        if st == 1:
            at(NF+2, 2, ('p',))
            for q in range(4): at(2*q, 3, ('C', q))
            ops = []
            for i in range(16):
                ops.append(('w', ('S', i//4)) if i % 4 == 0 else None)
                ops.append(f"  v_accvgpr_read_b32 v{12+(i%2)}, a{SA+i}")
                ops.append(f"  v_dot2c_f32_bf16 v22, s23, v{12+(i%2)}")
                ops.append(f"  v_dot2c_f32_bf16 v23, v{12+(i%2)}, v{12+(i%2)}")
            ops += [('w', ('C', 3)), "  v_add_f32 v28, v28, v29", "  v_add_f32 v30, v30, v31", "  v_add_f32 v28, v28, v30", ('l', "  ds_write_b32 v18, v28"),
                    "  v_add_f32_dpp v22, v22, v22 row_ror:8 row_mask:0xf bank_mask:0xf",
                    "  v_add_f32_dpp v23, v23, v23 row_ror:8 row_mask:0xf bank_mask:0xf"]
            for sw in ["v_permlane16_swap_b32", "v_permlane32_swap_b32"]:
                ops += ["  v_mov_b32 v24, v22", "  v_mov_b32 v25, v23", "  s_nop 0", f"  {sw} v24, v22", f"  {sw} v25, v23",
                        "  v_add_f32 v22, v22, v24", "  v_add_f32 v23, v23, v25"]
            ops += [('l', "  ds_write_b64 v20, v[22:23]")]
            ops = [o for o in ops if o is not None]
            slots = [(f, n) for f in range(6, 2*NF-AHEAD-1) for n in (1, 2, 3, 3)]
            i = 0
            for o in ops:
                at(*slots[i], ('o', o))
                if not (isinstance(o, tuple) and o[0] == 'w'): i += 1
        for f in range(2*NF):
            ks, rem = divmod(f, NF); j, m = divmod(rem, 2)
            fa = f + AHEAD
            ring = AF + 4*(((st%2)*2*NF + f) % RING)
            if fa == 2*NF:
                S.wait(vm=('W', st+1, NT-1), lg=(('R',) if st == 1 else None))
                S.add("  s_barrier")
                if st % 2 == 1:
                    S.add("  v_add_u32 v9, s21, v9\n  s_sub_u32 s21, 0, s21")
            for n in range(4):
                if n == 0:
                    S.wait(lg=('A', st, f, 1), vm=(('X', st, ks, 3) if rem == 0 else None))
                c = acc(j, m, n)
                src = vr(c, 4) if (st or ks) else "0"
                S.add(f"  v_mfma_f32_16x16x32_bf16 {vr(c,4)}, {ar(ring,4)}, {ar(xreg(st%2,ks,n),4)}, {src}")
                if n == 0:
                    if fa < 2*NF: trread(st, fa)
                    else: trread(st+1, fa-2*NF)
                flush_pend()
                for act in acts.get((f, n), []):
                    if act[0] == 'x': xload(act[1], act[2], act[3])
                    elif act[0] == 'd': dma(act[1], act[2])
                    elif act[0] == 'S':
                        S.add(f"  buffer_load_dwordx4 {ar(SA+4*act[1],4)}, v16, s[8:11], s55 offen", 'vm', ('S', act[1]))
                        S.add(f"  s_add_u32 s55, s55, {1<<20}")
                    elif act[0] == 'C':
                        S.add(f"  buffer_load_dword v{28+act[1]}, v19, s[60:63], s59 offen", 'vm', ('C', act[1]))
                        S.add(f"  s_add_u32 s59, s59, {7168*4}")
                    elif act[0] == 'o':
                        o = act[1]
                        if isinstance(o, tuple):
                            if o[0] == 'w': S.wait(vm=o[1])
                            else: S.add(o[1], 'lg', ('R',))
                        else: S.add(o)
                    else:
                        S.add(f"  buffer_load_dword a{DUMMY}, v11, s[68:71], s72 offen", 'vm', ('P', st))
                        S.add(f"  s_add_u32 s72, s72, {7168*128}")
        assert not pend
        if st % 2 == 1 and st > 1:
            S.add(f"  s_add_u32 s19, s19, 1\n  s_cmp_lt_u32 s19, {NST//2}\n  s_cbranch_scc1 L_{name}_loop")
    S.mark('end')
    segs = split_marks(S.resolve())
    emit(a, segs[0][1])
    a("  .p2align 6")
    a(f"L_{name}_loop:")
    emit(a, merge_iters([s[1] for s in segs[1:NST//2]]))
    if diag: a("  s_memtime s[34:35]")
    for n in range(4):
        a(f"  buffer_load_dword v{28+n}, v26, s[64:67], 0 offen offset:{64*n} sc1")
    CSLOT = 16384; CNST = 28
    a(f"""  s_and_b32 s53, s2, 1              ; kh
  s_bfe_u32 s3, s2, 0x20001
  s_lshl_b32 s3, s3, 2
  s_bfe_u32 s29, s2, 0x20003
  s_add_u32 s3, s3, s29             ; tt
  s_lshr_b32 s27, s2, 5             ; ct
  s_and_b32 s56, s3, 14
  s_add_u32 s56, s56, s53
  s_lshl_b32 s56, s56, 7
  s_lshl_b32 s3, s3, 7
  s_lshl_b32 s29, s28, 5
  s_add_u32 s3, s3, s29             ; t0 + 32 w
  s_mul_i32 s16, s53, {1792*2048}   ; W soffset
  s_mul_i32 s17, s53, {56*4*32768}  ; X soffset
  s_lshl_b32 s18, s28, 12
  s_lshl_b32 s29, s27, 8
  s_add_u32 s4, s92, s29
  s_addc_u32 s5, s93, 0
  s_sub_u32 s6, {1792*2048}, s29
  s_add_u32 s6, s6, s16
  s_mov_b32 s7, 0x20000
  s_lshl_b32 s27, s27, 1
  s_add_u32 s27, s27, s53
  s_mul_i32 s73, s26, {NT*2*32768}
  s_mov_b32 s20, 0
L_{name}_poll:
  s_waitcnt vmcnt(0) lgkmcnt(0)
  v_min_u32 v1, v28, v29
  v_min3_u32 v1, v1, v30, v31
  v_cmp_eq_u32 vcc, 0, v1
  s_cbranch_vccz L_{name}_go
  s_add_u32 s20, s20, 1
  s_cmp_gt_u32 s20, 0x100000
  s_cbranch_scc1 L_{name}_go
  s_sleep 2""")
    for n in range(4):
        a(f"  buffer_load_dword v{28+n}, v26, s[64:67], 0 offen offset:{64*n} sc1")
    a(f"""  s_branch L_{name}_poll
L_{name}_go:
  s_barrier""")
    for n in range(4):
        a(f"""  v_and_b32 v1, 0xffff0000, v{28+n}
  v_lshlrev_b32 v{12+n}, 16, v{28+n}
  v_rcp_f32 v{16+n}, v1
  v_mul_f32 v{20+n}, v1, v1""")
    a(f"""  v_mov_b32 v11, v27
  ds_read_b128 v[24:27], v11
  ds_read_b128 v[28:31], v11 offset:448""")
    for n in range(4): a(f"  v_mul_f32 v{16+n}, 0xbfb8aa3b, v{16+n}")
    CW = 36
    CX, CH, CO, CE = 40, 41, 42, 43
    CT = 52
    CACC = 96
    RX = 160
    HR = 192
    def cacc(j, n): return CACC + (j*2+n)*4
    C = Stream()
    cpend = []
    def cxreg(st, ks, n): return XR + (((st % P)*2+ks)*2+n)*4
    def cdma(st, n):
        C.add(f"  s_add_u32 m0, s18, {(st%P)*CSLOT + n*1024}")
        cpend.append((f"  buffer_load_dwordx4 v{CW+n}, s[4:7], s16 offen lds", ('W', st, n)))
    def cxload(st, ks, n):
        C.add(f"  buffer_load_dwordx4 {ar(cxreg(st,ks,n),4)}, v{CX}, s[12:15], s17 offen offset:{256*n} sc1", 'vm', ('X', st, ks, n))
        if n == 1: C.add(f"  s_add_u32 s17, s17, {4*32768}")
    def cflush():
        while cpend:
            t, tag = cpend.pop(0)
            C.add(t, 'vm', tag)
            if tag[2] == 3:
                C.add(f"  s_add_u32 s16, s16, {64*2048}")
                if tag[1] % P == P-1:
                    C.add(f"  s_xor_b32 s18, s18, {P*CSLOT}")
    def ctr(st, f):
        ks, j = divmod(f, 8)
        r = AF + 4*(f % RING)
        for jj in range(2):
            off = (st%P)*CSLOT + (32*ks+4*jj)*256
            C.add(f"  ds_read_b64_tr_b16 {ar(r+2*jj,2)}, v{CT+j} offset:{off}", 'lg', ('A', st, f, jj))
    csetup = f"""  v_and_b32 v60, 63, v0
  v_lshrrev_b32 v61, 4, v60         ; g
  s_lshl_b32 s29, s28, 4
  v_add_lshl_u32 v62, v61, s29, 11
  v_and_b32 v44, 1, v61
  v_and_b32 v45, 2, v61
  v_lshl_add_u32 v45, v45, 1, v44   ; q0 + 4 q1
  v_and_b32 v63, 15, v60
  v_xor_b32 v45, v45, v63
  v_lshl_add_u32 v{CW}, v45, 4, v62
  v_add_u32 v{CW+1}, {4*2048}, v{CW}
  v_xor_b32 v{CW+2}, 128, v{CW}
  v_add_u32 v{CW+2}, {8*2048}, v{CW+2}
  v_add_u32 v{CW+3}, {4*2048}, v{CW+2}
  v_add_u32 v63, s3, v63            ; position
  v_lshlrev_b32 v45, 11, v61
  v_add_lshl_u32 v{CX}, v45, v63, 4
  v_lshrrev_b32 v45, 1, v61
  v_lshlrev_b32 v45, 12, v45
  v_add_lshl_u32 v{CH}, v45, v63, 4
  v_lshl_add_u32 v{CH}, v44, 3, v{CH}
  v_and_b32 v{CO}, 0x603, v63
  v_bfe_u32 v45, v63, 2, 4
  v_lshl_or_b32 v{CO}, v45, 5, v{CO}
  v_bfe_u32 v45, v63, 6, 3
  v_lshl_or_b32 v{CO}, v45, 2, v{CO}
  v_lshlrev_b32 v{CO}, 11, v{CO}
  v_lshl_add_u32 v{CO}, v61, 4, v{CO}
  v_lshlrev_b32 v{CE}, 4, v60
  v_bfe_u32 v45, v60, 2, 2          ; r
  v_lshl_add_u32 v46, v61, 3, v45   ; 8g + r
  v_lshlrev_b32 v46, 8, v46
  v_and_b32 v47, 1, v45
  v_and_b32 v45, 2, v45
  v_lshl_add_u32 v47, v45, 1, v47   ; r0 + 4 r1
  v_xor_b32 v44, s53, v44
  v_lshl_add_u32 v47, v44, 3, v47   ; + 8 (g0 ^ kh)
  v_and_b32 v45, 2, v60
  v_or_b32 v47, v47, v45            ; + 2 c1
  v_lshl_add_u32 v46, v47, 4, v46
  v_and_b32 v45, 1, v60
  v_lshl_add_u32 v{CT}, v45, 3, v46"""
    for j in range(1, 8):
        csetup += f"\n  v_xor_b32 v{CT+j}, {16*((j&1)+4*(j>>1))}, v{CT}"
    def bc(base, n): return vr(base + (n & ~1), 2), n & 1
    csG, csU = 24, 28
    early = [(st, n) for st in range(P) for n in range(4)]
    for j in range(NT):
        C.add("  s_waitcnt lgkmcnt(0)")
        if j == 1: C.add(csetup)
        for n in range(4):
            G = acc(j, 0, n); U = acc(j, 1, n); h = n & 1
            M, x = bc(12, n); K1, _ = bc(16, n); S2, _ = bc(20, n)
            if j >= cpre and early: cdma(*early.pop(0))
            for (R, cs) in ((G, csG), (U, csU)):
                for q in range(2):
                    C.add(f"  v_pk_fma_f32 {vr(R+2*q,2)}, {vr(cs+2*q,2)}, {M}, {vr(R+2*q,2)} op_sel:[0,{x},0] op_sel_hi:[1,{x},1] neg_lo:[0,1,0] neg_hi:[0,1,0]")
                if R == G:
                    cflush()
                    for q in range(2):
                        C.add(f"  v_pk_mul_f32 {vr(2+2*q,2)}, {vr(G+2*q,2)}, {K1} op_sel:[0,{x}] op_sel_hi:[1,{x}]")
                    for q in range(4): C.add(f"  v_exp_f32 v{2+q}, v{2+q}")
            for q in range(2):
                C.add(f"  v_pk_fma_f32 {vr(2+2*q,2)}, {vr(2+2*q,2)}, {S2}, {S2} op_sel:[0,{x},{x}] op_sel_hi:[1,{x},{x}]")
            for q in range(4): C.add(f"  v_rcp_f32 v{2+q}, v{2+q}")
            for q in range(2): C.add(f"  v_pk_mul_f32 {vr(G+2*q,2)}, {vr(G+2*q,2)}, {vr(U+2*q,2)}")
            for q in range(2): C.add(f"  v_pk_mul_f32 {vr(G+2*q,2)}, {vr(G+2*q,2)}, {vr(2+2*q,2)}")
            C.add(f"  v_cvt_pk_bf16_f32 v{6+2*h}, v{G}, v{G+1}\n  v_cvt_pk_bf16_f32 v{7+2*h}, v{G+2}, v{G+3}")
            if n == 0 and j < NT-1:
                C.add(f"  ds_read_b128 {vr(G,4)}, v11 offset:{64*(j+1)}\n  ds_read_b128 {vr(U,4)}, v11 offset:{448+64*(j+1)}")
                nxt = (G, U)
            elif h == 1:
                C.add("  s_nop 1")
            if h == 1:
                C.add(f"  v_permlane16_swap_b32 v6, v8\n  v_permlane16_swap_b32 v7, v9")
                C.add(f"  buffer_store_dwordx4 v[6:9], v10, s[12:15], s73 offen offset:{256*(n-1)} sc1", 'vm', ('ST', j, n))
        if j < NT-1:
            C.add(f"  s_add_u32 s73, s73, {2*32768}")
            csG, csU = nxt
    while early:
        cdma(*early.pop(0)); C.add("  s_nop 0"); cflush()
    if diag: C.add("  s_memtime s[36:37]")
    for r in range(CACC, CACC+64): C.add(f"  v_mov_b32 v{r}, 0")
    XBW = 4096 if xbf else 8192
    C.add(f"""  s_add_u32 s14, s17, {ACT_SIZE//2}
  s_add_u32 s76, s24, {XB_OFF}
  s_addc_u32 s77, s25, 0
  s_mov_b32 s78, {8<<20}
  s_mov_b32 s79, 0x20000
  s_lshl_b32 s80, s2, 2
  s_add_u32 s80, s80, s28
  s_xor_b32 s81, s80, 4
  s_lshl_b32 s82, s80, 6
  s_add_u32 s82, s82, {FLG_OFF-ZERO_OFF}
  s_lshl_b32 s83, s81, 6
  s_add_u32 s83, s83, {FLG_OFF-ZERO_OFF}
  s_mul_i32 s80, s80, {XBW}
  s_mul_i32 s81, s81, {XBW}
  s_add_u32 s52, s52, {CNT_OFF-ZERO_OFF}
  s_add_u32 s56, s56, {CNT_OFF-ZERO_OFF}
  s_lshl_b32 s57, s27, 18
  s_lshl_b32 s27, s27, 7
  s_add_u32 s84, s94, s27
  s_addc_u32 s85, s95, 0
  s_sub_u32 s86, {4<<20}, s27
  s_mov_b32 s87, 0x20000
  v_mov_b32 v6, 0
  v_mov_b32 v7, 1
  s_mov_b32 s20, 0
  s_waitcnt vmcnt(0)
  s_barrier""")
    if diag: C.add("  s_memtime s[38:39]")
    C.add(f"""  s_cmp_lg_u32 s28, 0
  s_cbranch_scc1 L_{name}_arrived
  s_mov_b64 exec, 1
  buffer_atomic_add v7, v6, s[64:67], s52 offen sc1
L_{name}_poll2:
  s_sleep {sleep}
  buffer_load_dword v12, v6, s[64:67], s56 offen sc1
  s_waitcnt vmcnt(0)
  v_cmp_gt_u32 vcc, 16, v12
  s_cbranch_vccz L_{name}_go2
  s_add_u32 s20, s20, 1
  s_cmp_gt_u32 s20, 0x100000
  s_cbranch_scc0 L_{name}_poll2
L_{name}_go2:
  s_mov_b64 exec, -1
L_{name}_arrived:
  s_barrier""")
    if diag: C.add("  s_memtime s[48:49]\n  s_waitcnt lgkmcnt(0)\n  s_mov_b32 s96, s48")
    for st in range(P):
        for ks in range(2):
            if st == P-1 and ks == 1: continue
            for n in range(2): cxload(st, ks, n)
    for f in range(AHEAD): ctr(0, f)
    C.add("  s_mov_b32 s19, 0")
    for st in range(CNST):
        if st % P == 0: C.mark(('body', st//P))
        acts = {}
        for ks in range(2):
            s2, k2 = (st+P-1, 1) if ks == 0 else (st+P, 0)
            acts.setdefault((8*ks+0, 1), []).append(('x', s2, k2, 0))
            acts.setdefault((8*ks+2, 1), []).append(('x', s2, k2, 1))
            acts.setdefault((8*ks+4, 0), []).append(('d', st+P, 2*ks))
            acts.setdefault((8*ks+6, 0), []).append(('d', st+P, 2*ks+1))
        for f in range(16):
            ks, j = divmod(f, 8)
            fa = f + AHEAD
            ring = AF + 4*(f % RING)
            if fa == 16:
                C.wait(vm=('W', st+1, 3))
                C.add("  s_barrier")
                if st % P == P-1:
                    for q in range(8): C.add(f"  v_xor_b32 v{CT+q}, {P*CSLOT}, v{CT+q}")
            for n in range(2):
                if n == 0:
                    C.wait(lg=('A', st, f, 1), vm=(('X', st, ks, 1) if j == 0 else None))
                c = cacc(j, n)
                C.add(f"  v_mfma_f32_16x16x32_bf16 {vr(c,4)}, {ar(ring,4)}, {ar(cxreg(st,ks,n),4)}, {vr(c,4)}")
                if n == 0:
                    if fa < 16: ctr(st, fa)
                    else: ctr(st+1, fa-16)
                cflush()
                for act in acts.get((f, n), []):
                    if act[0] == 'x': cxload(act[1], act[2], act[3])
                    else: cdma(act[1], act[2])
        assert not cpend
        if st % P == P-1:
            C.add(f"  s_add_u32 s19, s19, 1\n  s_cmp_lt_u32 s19, {CNST//P}\n  s_cbranch_scc1 L_{name}_cloop")
    C.mark('end')
    segs = split_marks(C.resolve())
    emit(a, segs[0][1])
    a("  .p2align 6")
    a(f"L_{name}_cloop:")
    emit(a, merge_iters([s[1] for s in segs[1:1+CNST//P]]))
    if diag: a("  s_memtime s[50:51]")
    SND = cacc(4, 0)
    if xbf:
        a("  s_nop 7")
        for q in range(4):
            for k in range(4): a(f"  v_cvt_pk_bf16_f32 v{SND+4*q+k}, v{SND+8*q+2*k}, v{SND+8*q+2*k+1}")
            a(f"  buffer_store_dwordx4 {vr(SND+4*q,4)}, v{CE}, s[76:79], s80 offen offset:{1024*q} sc1")
        nx = 4
    else:
        a("  s_add_u32 s58, s80, 4096\n  s_add_u32 s59, s81, 4096\n  s_nop 5")
        for q in range(8):
            a(f"  buffer_store_dwordx4 {vr(SND+4*q,4)}, v{CE}, s[76:79], s{80 if q < 4 else 58} offen offset:{1024*(q%4)} sc1")
        nx = 8
    UB = [0, 1, 4, 5]
    for j in range(4):
        a(f"  s_add_u32 s29, s57, {UB[j]*32768}")
        for n in range(2):
            a(f"  buffer_load_dwordx2 {vr(HR+2*(2*j+n),2)}, v{CH}, s[8:11], s29 offen offset:{256*n}")
    a(f"""  s_waitcnt vmcnt(8) lgkmcnt(0)
  s_mov_b64 exec, 1
  buffer_store_dword v7, v6, s[64:67], s82 offen sc1
  buffer_load_dword v12, v6, s[64:67], s83 offen sc1
  s_mov_b64 exec, -1
  s_waitcnt vmcnt(2)""")
    for q in range(8):
        c = CACC+4*q; h = HR+2*q
        a(f"""  v_lshlrev_b32 v14, 16, v{h}
  v_and_b32 v15, 0xffff0000, v{h}
  v_lshlrev_b32 v16, 16, v{h+1}
  v_and_b32 v17, 0xffff0000, v{h+1}
  v_pk_add_f32 {vr(c,2)}, {vr(c,2)}, v[14:15]
  v_pk_add_f32 {vr(c+2,2)}, {vr(c+2,2)}, v[16:17]""")
    a(f"""  s_mov_b32 s20, 0
  s_mov_b64 exec, 1
L_{name}_poll3:
  s_waitcnt vmcnt(0)
  v_cmp_eq_u32 vcc, 0, v12
  s_cbranch_vccz L_{name}_go3
  s_add_u32 s20, s20, 1
  s_cmp_gt_u32 s20, 0x100000
  s_cbranch_scc1 L_{name}_go3
  s_sleep {sleep}
  buffer_load_dword v12, v6, s[64:67], s83 offen sc1
  s_branch L_{name}_poll3
L_{name}_go3:
  s_mov_b64 exec, -1""")
    if diag: a("  s_memtime s[98:99]")
    for q in range(nx):
        so = 81 if (xbf or q < 4) else 59
        a(f"  buffer_load_dwordx4 {vr(RX+4*q,4)}, v{CE}, s[76:79], s{so} offen offset:{1024*(q%4)} sc1")
    for jp in range(2):
        a(f"  s_waitcnt vmcnt({(nx//2)*(1-jp)+2*jp})")
        for q in range(4*jp, 4*jp+4):
            c = CACC+4*q
            if xbf:
                r = RX+2*q
                a(f"""  v_lshlrev_b32 v14, 16, v{r}
  v_and_b32 v15, 0xffff0000, v{r}
  v_lshlrev_b32 v16, 16, v{r+1}
  v_and_b32 v17, 0xffff0000, v{r+1}
  v_pk_add_f32 {vr(c,2)}, {vr(c,2)}, v[14:15]
  v_pk_add_f32 {vr(c+2,2)}, {vr(c+2,2)}, v[16:17]""")
            else:
                for h in range(2):
                    a(f"  v_pk_add_f32 {vr(c+2*h,2)}, {vr(c+2*h,2)}, {vr(RX+4*q+2*h,2)}")
        for n in range(2):
            Pp = 20 + 4*n
            A = cacc(2*jp, n); B = cacc(2*jp+1, n)
            a(f"""  v_cvt_pk_bf16_f32 v{Pp}, v{A}, v{A+1}
  v_cvt_pk_bf16_f32 v{Pp+1}, v{A+2}, v{A+3}
  v_cvt_pk_bf16_f32 v{Pp+2}, v{B}, v{B+1}
  v_cvt_pk_bf16_f32 v{Pp+3}, v{B+2}, v{B+3}
  s_mov_b32 s16, {n*128*2048}
  s_nop 0
  v_permlane16_swap_b32 v{Pp}, v{Pp+2}
  v_permlane16_swap_b32 v{Pp+1}, v{Pp+3}
  buffer_store_dwordx4 {vr(Pp,4)}, v{CO}, s[84:87], s16 offen offset:{64*jp} {outfl}""")
    if diag:
        a("  s_waitcnt vmcnt(0)\n  s_memtime s[100:101]")
        diag_store(a, name, dbg_idx, [30, 74, 32, 34, 36, 38, 96, 50, 98, 100], 24)
    a(f"L_{name}_end:\n  s_endpgm")
    a(f"L_{name}_fin:")
    for q in range(4): a(f"  ds_read_b64 {vr(12+2*q,2)}, v17 offset:{64*q}" if q < 2 else f"  ds_read_b64 {vr(18+2*q,2)}, v17 offset:{64*q}")
    a("""  s_cmp_eq_u32 s28, 0
  s_cselect_b32 s66, 8192, 0
  s_waitcnt lgkmcnt(0)
  v_pk_add_f32 v[12:13], v[12:13], v[14:15]
  v_pk_add_f32 v[22:23], v[22:23], v[24:25]
  v_pk_add_f32 v[12:13], v[12:13], v[22:23]""")
    ln_pack(a, 12, 13, 14, 15)
    a(f"""  s_mov_b64 exec, 0xff
  buffer_store_dword v14, v21, s[64:67], 0 offen sc1
  s_mov_b64 exec, -1
  s_mov_b32 s66, {ZERO_SIZE}
  s_branch L_{name}_finret""")
    desc = kernel_desc(name, 256+nagpr, 102, 256)
    return a.text(), desc, f"; @launch kernel={name} grid=(256,1,1) block=(256,1,1) lds={RED+256}"
```

```python
import sys
from g2 import gen_g2
from ka import gen_a
from kb import gen_b
from ka8 import gen_a8
from kbc import gen_bc
try:
    from kc import gen_c
except ImportError:
    gen_c = None
def assemble(parts):
    out = [p[2] for p in parts]
    out.append('.amdgcn_target "amdgcn-amd-amdhsa--gfx950"')
    out += [p[0] for p in parts]
    out.append("  .fill 4096, 4, 0xbf800000")
    out += [p[1] for p in parts]
    return "\n".join(out) + "\n"
if __name__ == "__main__":
    diag = len(sys.argv) > 2 and sys.argv[2] == "diag"
    opts = eval(sys.argv[3]) if len(sys.argv) > 3 else {}
    oldc = opts.get('oldc', False)
    ao = dict(pfnext=('b_kernel','c_kernel')); ao.update(opts.get('a', {}))
    parts = [(gen_a if opts.get('olda') else gen_a8)(diag=diag, dbg_idx=0, **ao), gen_b(diag=diag, dbg_idx=1, **opts.get('b', {})),
             gen_g2(name="c_kernel", diag=diag, dbg_idx=2, perm=True, P=2) if oldc else gen_c(diag=diag, dbg_idx=2, **opts.get('c', {}))]
    if 'bc' in opts:
        ao['pfnext'] = opts.get('a', {}).get('pfnext', ('b_kernel', 'L_b_kernel_go'))
        parts = [gen_a8(diag=diag, dbg_idx=0, **ao), gen_bc(diag=diag, dbg_idx=1, **opts['bc'])]
    open(sys.argv[1], "w").write(assemble(parts))
```

```python
from asmgen import *
from sched import *
from layout import *
from g1 import diag_store
from ka import ln_pack

def gen_bc2(name="b_kernel", diag=False, dbg_idx=0, AHEAD=3, P=4, sleep=1, xbf=True, outfl='', JA=1, JB=3, LAG=2, RATE=(0,2,1,2), PPOS=0.5, order=0, NSC=6, D0=16, DS=2):
    a = Asm()
    NT = 7; ROWB = NT*32; MATB = 64*ROWB; SLOT = 2*MATB; NF = 2*NT
    RING = AHEAD+1
    ACC = 32
    def acc(j, m, n): return ACC + ((j*2+m)*4+n)*4
    AF = 0
    XR = 4*RING
    def xreg(st2, ks, n): return XR + ((st2*2+ks)*4+n)*4
    SA = XR + 64
    DUMMY = SA + 16
    CXR = DUMMY + 4
    nagpr = CXR + 16*P
    CSL = 131072
    RED = CSL + 1024
    a(kernel_head(name))
    a(f"""  s_cmp_ge_u32 s2, 256
  s_cbranch_scc1 L_{name}_end""")
    if diag: a("  s_memrealtime s[40:41]\n  s_memtime s[30:31]")
    a(f"""  s_load_dwordx8 s[88:95], s[0:1], 80
  s_load_dwordx2 s[24:25], s[0:1], 120
  v_lshrrev_b32 v10, 6, v0
  v_and_b32 v11, 63, v0
  s_and_b32 s26, s2, 7
  s_lshr_b32 s27, s2, 3
  v_readfirstlane_b32 s28, v10
  s_and_b32 s3, s26, 1
  s_lshl_b32 s3, s3, 2
  s_and_b32 s29, s27, 3
  s_add_u32 s3, s3, s29             ; tt
  s_lshr_b32 s26, s26, 1
  s_lshl_b32 s26, s26, 3
  s_lshr_b32 s27, s27, 2
  s_add_u32 s26, s26, s27           ; ft
  s_lshl_b32 s52, s3, 1
  s_lshr_b32 s29, s26, 4
  s_add_u32 s52, s52, s29
  s_lshl_b32 s52, s52, 7
  s_lshl_b32 s3, s3, 8              ; t0
  s_lshl_b32 s54, s26, 3
  s_add_u32 s54, s54, s3
  s_lshl_b32 s29, s28, 6
  s_add_u32 s3, s3, s29             ; t0 + 64 w
  s_and_b32 s29, s28, 1
  s_lshl_b32 s29, s29, 5            ; 32*hf
  s_movk_i32 s19, 4682
  s_movk_i32 s18, 7168""")
    for n in range(NT):
        a(f"""  v_add_u32 v12, {64*n}, v11
  v_mul_u32_u24 v13, s19, v12
  v_lshrrev_b32 v13, 16, v13        ; pos_local
  v_mul_u32_u24 v14, 14, v13
  v_sub_u32 v12, v12, v14           ; part
  v_and_b32 v14, 4, v13
  v_and_b32 v15, 8, v13
  v_and_b32 v13, 0x13, v13
  v_lshl_or_b32 v13, v14, 1, v13
  v_lshrrev_b32 v15, 1, v15
  v_or3_b32 v13, v13, v15, s29      ; row
  v_mul_u32_u24 v13, s18, v13
  v_lshl_add_u32 v{1+n}, v12, 4, v13""")
    a(f"""  v_lshrrev_b32 v12, 4, v11         ; g
  v_and_b32 v13, 15, v11
  v_add_u32 v13, s3, v13            ; position
  v_lshlrev_b32 v14, 11, v12
  v_add_lshl_u32 v8, v14, v13, 4    ; X voffset
  s_mul_i32 s18, s28, {MATB//2}
  s_add_u32 s18, s18, {2*SLOT}
  s_mov_b32 s16, 0                  ; W soffset
  s_mov_b32 s17, 0                  ; X soffset
  s_mov_b32 s7, 0x20000
  s_mov_b32 s10, {4<<20}
  s_mov_b32 s11, 0x20000
  s_mul_i32 s27, s26, {ROWB}
  s_sub_u32 s6, {1024*7168}, s27
  s_cmp_ge_u32 s28, 2
  s_waitcnt lgkmcnt(0)
  s_cselect_b32 s4, s90, s88
  s_cselect_b32 s5, s91, s89
  s_add_u32 s4, s4, s27
  s_addc_u32 s5, s5, 0
  s_add_u32 s8, s24, {HB_OFF}
  s_addc_u32 s9, s25, 0""")
    if diag: a("  s_memtime s[74:75]")
    S = Stream()
    NST = 16
    pend = []
    def dma(st, n):
        S.add(f"  s_add_u32 m0, s18, {(st%2)*SLOT + n*1024}")
        pend.append((f"  buffer_load_dwordx4 v{1+n}, s[4:7], s16 offen lds", ('W', st, n)))
    def xload(st, ks, n):
        S.add(f"  buffer_load_dwordx4 {ar(xreg(st%2,ks,n),4)}, v8, s[8:11], s17 offen offset:{256*n}", 'vm', ('X', st, ks, n))
        if n == 3: S.add(f"  s_add_u32 s17, s17, {4*32768}")
    def flush_pend():
        while pend:
            t, tag = pend.pop(0)
            S.add(t, 'vm', tag)
            if tag[2] == NT-1:
                S.add(f"  s_add_u32 s16, s16, {64*7168}")
                if tag[1] % 2 == 1:
                    S.add(f"  s_add_u32 s18, s18, s22\n  s_sub_u32 s22, 0, s22")
    def trread(st, f):
        ks, rem = divmod(f, NF); j, m = divmod(rem, 2)
        r = AF + 4*(((st%2)*2*NF + f) % RING)
        for jj in range(2):
            off = (st%2)*SLOT + m*MATB + (32*ks+8*jj)*ROWB + 32*j
            S.add(f"  ds_read_b64_tr_b16 {ar(r+2*jj,2)}, v9 offset:{off}", 'lg', ('A', st, f, jj))
    for n in range(NT):
        dma(0, n); S.add("  s_nop 0"); flush_pend()
    for n in range(4): xload(0, 0, n)
    for n in range(4): xload(0, 1, n)
    S.add(f"""  s_mov_b32 s21, {-2*SLOT}
  s_mov_b32 s22, {-2*SLOT}
  v_lshrrev_b32 v14, 1, v12
  v_and_b32 v15, 1, v12
  v_lshlrev_b32 v16, 11, v14
  v_lshl_add_u32 v16, v15, 4, v16
  v_add_lshl_u32 v10, v16, v13, 4
  v_lshlrev_b32 v14, 4, v14
  v_lshl_add_u32 v14, v15, 2, v14
  v_bfe_u32 v15, v11, 2, 2
  v_add_u32 v14, v14, v15
  v_mul_u32_u24 v14, {ROWB}, v14
  v_and_b32 v15, 3, v11
  v_lshl_add_u32 v9, v15, 3, v14
  v_add_u32 v9, {2*SLOT}, v9
  v_lshlrev_b32 v26, 2, v13
  v_lshlrev_b32 v27, 4, v12
  v_add_u32 v27, {CSL}, v27
  v_lshrrev_b32 v16, 3, v0
  v_and_b32 v17, 7, v0
  v_lshlrev_b32 v16, 15, v16
  v_lshl_add_u32 v16, v17, 4, v16
  v_add_lshl_u32 v21, v17, s54, 2
  v_lshlrev_b32 v17, 3, v17
  v_add_u32 v17, {RED}, v17
  s_lshl_b32 s29, s28, 6
  v_add_u32 v20, s29, v17
  s_lshl_b32 s55, s54, 4
  v_min_u32 v18, 223, v0
  v_cmp_le_u32 vcc, 112, v18
  v_lshlrev_b32 v18, 2, v18
  v_add_u32 v19, {(3584-112)*4}, v18
  s_mul_i32 s59, s26, {112*4}
  v_cndmask_b32 v19, v18, v19, vcc
  v_add_u32 v18, {CSL}, v18
  v_and_b32 v11, 7, v11
  s_mul_i32 s29, s28, 8
  v_add_lshl_u32 v11, v11, s29, 7
  s_mul_i32 s72, s2, {32*128}
  s_add_u32 s60, s24, {CS_OFF}
  s_addc_u32 s61, s25, 0
  s_mov_b32 s62, {4*7168*4}
  s_mov_b32 s63, 0x20000
  s_add_u32 s12, s24, {ACT_OFF}
  s_addc_u32 s13, s25, 0
  s_mov_b32 s14, {ACT_SIZE}
  s_mov_b32 s15, 0x20000
  s_add_u32 s64, s24, {ST2_OFF}
  s_addc_u32 s65, s25, 0
  s_mov_b32 s66, {ZERO_SIZE}
  s_mov_b32 s67, 0x20000
  s_mov_b32 s68, s92
  s_mov_b32 s69, s93
  s_mov_b32 s70, {3584*2048}
  s_mov_b32 s71, 0x20000
  v_mov_b32 v22, 0
  v_mov_b32 v23, 0
  s_mov_b32 s23, 0x3f803f80
  s_mov_b32 s19, 1""")
    S.wait(vm=('W', 0, NT-1))
    S.add("  s_barrier")
    if diag: S.add("  s_memtime s[32:33]\n  s_waitcnt lgkmcnt(0)")
    for f in range(AHEAD): trread(0, f)
    dpos = [8, 10, 12, NF, NF+8, NF+10, NF+12]
    xpos = [1, 3, 5, 7]
    for st in range(NST-2):
        if st % 2 == 0 and st > 0:
            S.mark(('body', st//2))
            S.add(f"  s_cmp_eq_u32 s19, 1\n  s_cbranch_scc1 L_{name}_fin\nL_{name}_finret:")
        acts = {}
        def at(f, n, x): acts.setdefault((f, n), []).append(x)
        if st == 0:
            for n in range(NT): at(n, 1, ('d', 1, n))
            for n in range(4):
                at(7+n, 1, ('x', 1, 0, n)); at(NF-3+n, 2, ('x', 1, 1, n)); at(NF+2+n, 1, ('x', 2, 0, n))
            for n in range(NT): at(NF+6+n, 1, ('d', 2, n))
            for n in range(4): at(NF+6+2*n, 3, ('S', n))
        else:
            for n in range(4):
                at(xpos[n], 1, ('x', st+1, 1, n)); at(NF+xpos[n], 1, ('x', st+2, 0, n))
            for n in range(NT): at(dpos[n], 1, ('d', st+2, n))
        if st % 2 == 0 and st > 0: at(NF+2, 2, ('p',))
        if st == 1:
            at(NF+2, 2, ('p',))
            for q in range(4): at(2*q, 3, ('C', q))
            ops = []
            for i in range(16):
                ops.append(('w', ('S', i//4)) if i % 4 == 0 else None)
                ops.append(f"  v_accvgpr_read_b32 v{12+(i%2)}, a{SA+i}")
                ops.append(f"  v_dot2c_f32_bf16 v22, s23, v{12+(i%2)}")
                ops.append(f"  v_dot2c_f32_bf16 v23, v{12+(i%2)}, v{12+(i%2)}")
            ops += [('w', ('C', 3)), "  v_add_f32 v28, v28, v29", "  v_add_f32 v30, v30, v31", "  v_add_f32 v28, v28, v30", ('l', "  ds_write_b32 v18, v28"),
                    "  v_add_f32_dpp v22, v22, v22 row_ror:8 row_mask:0xf bank_mask:0xf",
                    "  v_add_f32_dpp v23, v23, v23 row_ror:8 row_mask:0xf bank_mask:0xf"]
            for sw in ["v_permlane16_swap_b32", "v_permlane32_swap_b32"]:
                ops += ["  v_mov_b32 v24, v22", "  v_mov_b32 v25, v23", "  s_nop 0", f"  {sw} v24, v22", f"  {sw} v25, v23",
                        "  v_add_f32 v22, v22, v24", "  v_add_f32 v23, v23, v25"]
            ops += [('l', "  ds_write_b64 v20, v[22:23]")]
            ops = [o for o in ops if o is not None]
            slots = [(f, n) for f in range(6, 2*NF-AHEAD-1) for n in (1, 2, 3, 3)]
            i = 0
            for o in ops:
                at(*slots[i], ('o', o))
                if not (isinstance(o, tuple) and o[0] == 'w'): i += 1
        for f in range(2*NF):
            ks, rem = divmod(f, NF); j, m = divmod(rem, 2)
            fa = f + AHEAD
            ring = AF + 4*(((st%2)*2*NF + f) % RING)
            if fa == 2*NF:
                S.wait(vm=('W', st+1, NT-1), lg=(('R',) if st == 1 else None))
                S.add("  s_barrier")
                if st % 2 == 1:
                    S.add("  v_add_u32 v9, s21, v9\n  s_sub_u32 s21, 0, s21")
            for n in range(4):
                if n == 0:
                    S.wait(lg=('A', st, f, 1), vm=(('X', st, ks, 3) if rem == 0 else None))
                c = acc(j, m, n)
                src = vr(c, 4) if (st or ks) else "0"
                S.add(f"  v_mfma_f32_16x16x32_bf16 {vr(c,4)}, {ar(ring,4)}, {ar(xreg(st%2,ks,n),4)}, {src}")
                if n == 0:
                    if fa < 2*NF: trread(st, fa)
                    else: trread(st+1, fa-2*NF)
                flush_pend()
                for act in acts.get((f, n), []):
                    if act[0] == 'x': xload(act[1], act[2], act[3])
                    elif act[0] == 'd': dma(act[1], act[2])
                    elif act[0] == 'S':
                        S.add(f"  buffer_load_dwordx4 {ar(SA+4*act[1],4)}, v16, s[8:11], s55 offen", 'vm', ('S', act[1]))
                        S.add(f"  s_add_u32 s55, s55, {1<<20}")
                    elif act[0] == 'C':
                        S.add(f"  buffer_load_dword v{28+act[1]}, v19, s[60:63], s59 offen", 'vm', ('C', act[1]))
                        S.add(f"  s_add_u32 s59, s59, {7168*4}")
                    elif act[0] == 'o':
                        o = act[1]
                        if isinstance(o, tuple):
                            if o[0] == 'w': S.wait(vm=o[1])
                            else: S.add(o[1], 'lg', ('R',))
                        else: S.add(o)
                    else:
                        S.add(f"  buffer_load_dword a{DUMMY}, v11, s[68:71], s72 offen", 'vm', ('P', st))
                        S.add(f"  s_add_u32 s72, s72, {8192*128}")
        assert not pend
        if st % 2 == 1 and st > 1:
            S.add(f"  s_add_u32 s19, s19, 1\n  s_cmp_lt_u32 s19, {NST//2-1}\n  s_cbranch_scc1 L_{name}_loop")
    S.mark('tail')
    C = S
    CSLOT = 16384; CNST = 28
    if diag: S.add("  s_memtime s[34:35]\n  s_waitcnt lgkmcnt(0)")
    CW = 6
    CX, CH, CO, CE = 24, 25, 26, 27
    CT = 32
    CACC = 96
    RX = 160
    HR = 192
    def cacc(j, n): return CACC + (j*2+n)*4
    cpend = []
    def cxreg(st, ks, n): return CXR + (((st % P)*2+ks)*2+n)*4
    def cdma(st, n):
        C.add(f"  s_add_u32 m0, s18, {(st%P)*CSLOT + n*1024}")
        cpend.append((f"  buffer_load_dwordx4 v{CW+n}, s[4:7], s16 offen lds", ('CW', st, n)))
    def cxload(st, ks, n):
        C.add(f"  buffer_load_dwordx4 {ar(cxreg(st,ks,n),4)}, v{CX}, s[12:15], s17 offen offset:{256*n} sc1", 'vm', ('CX', st, ks, n))
        if n == 1: C.add(f"  s_add_u32 s17, s17, {28*32768 if (2*st+ks) % 8 < 7 else 's58'}")
    def cflush():
        while cpend:
            t, tag = cpend.pop(0)
            C.add(t, 'vm', tag)
            if tag[2] == 3:
                C.add(f"  s_add_u32 s16, s16, {448*2048 if tag[1] % 4 < 3 else 's59'}")
                if tag[1] % P == P-1:
                    C.add(f"  s_xor_b32 s18, s18, {P*CSLOT}")
    def ctr(st, f):
        ks, j = divmod(f, 8)
        r = AF + 4*(f % RING)
        for jj in range(2):
            off = (st%P)*CSLOT + (32*ks+4*jj)*256
            C.add(f"  ds_read_b64_tr_b16 {ar(r+2*jj,2)}, v{CT+j} offset:{off}", 'lg', ('CA', st, f, jj))
    XBW = 4096 if xbf else 8192
    scal = f"""  s_and_b32 s53, s2, 1              ; kh
  s_bfe_u32 s3, s2, 0x20001
  s_lshl_b32 s3, s3, 2
  s_bfe_u32 s29, s2, 0x20003
  s_add_u32 s3, s3, s29             ; tt
  s_lshr_b32 s27, s2, 5             ; ct
  s_and_b32 s56, s3, 14
  s_add_u32 s56, s56, s53
  s_lshl_b32 s56, s56, 7            ; counter this tile waits for
  s_lshl_b32 s3, s3, 7
  s_lshl_b32 s29, s28, 5
  s_add_u32 s3, s3, s29             ; t0 + 32 w
  s_mul_i32 s16, s53, {1792*2048}   ; W soffset
  s_mul_i32 s17, s53, {224*32768}   ; X soffset
  s_lshl_b32 s18, s28, 12
  s_add_u32 s18, s18, {P*CSLOT}     ; LDS dest base of this wave inside a slot
  s_lshl_b32 s29, s27, 8
  s_add_u32 s4, s92, s29
  s_addc_u32 s5, s93, 0
  s_sub_u32 s6, {3584*2048}, s29
  s_mov_b32 s7, 0x20000
  s_lshl_b32 s27, s27, 1
  s_add_u32 s27, s27, s53           ; 64-column block kept by this workgroup
  s_mul_i32 s73, s26, {NT*2*32768}
  s_mov_b32 s58, {(2-196)*32768}
  s_mov_b32 s59, {(16-3*448)*2048}
  s_add_u32 s76, s24, {XB_OFF}
  s_addc_u32 s77, s25, 0
  s_mov_b32 s78, {8<<20}
  s_mov_b32 s79, 0x20000
  s_lshl_b32 s80, s2, 2
  s_add_u32 s80, s80, s28
  s_xor_b32 s81, s80, 4
  s_lshl_b32 s82, s80, 6
  s_add_u32 s82, s82, {FLG_OFF-ZERO_OFF}   ; own flag
  s_lshl_b32 s83, s81, 6
  s_add_u32 s83, s83, {FLG_OFF-ZERO_OFF}   ; partner flag
  s_mul_i32 s80, s80, {XBW}         ; own slab
  s_mul_i32 s81, s81, {XBW}         ; partner slab
  s_add_u32 s52, s52, {CNT_OFF-ZERO_OFF}
  s_add_u32 s56, s56, {CNT_OFF-ZERO_OFF}
  s_lshl_b32 s57, s27, 18
  s_lshl_b32 s27, s27, 7
  s_add_u32 s84, s94, s27
  s_addc_u32 s85, s95, 0
  s_sub_u32 s86, {4<<20}, s27
  s_mov_b32 s87, 0x20000
  s_cmp_eq_u32 s28, 0
  s_cselect_b32 s62, {ZERO_SIZE}, 0
  s_mov_b32 s60, s64
  s_mov_b32 s61, s65
  s_mov_b32 s63, 0x20000""".split("\n")
    cwsetup = f"""  v_and_b32 v2, 63, v0
  v_lshrrev_b32 v3, 4, v2           ; g
  s_mul_i32 s29, s28, 112
  v_add_lshl_u32 v4, v3, s29, 11
  v_and_b32 v5, 1, v3
  v_and_b32 v3, 2, v3
  v_lshl_add_u32 v3, v3, 1, v5      ; q0 + 4 q1
  v_and_b32 v2, 15, v2
  v_xor_b32 v3, v3, v2
  v_lshl_add_u32 v{CW}, v3, 4, v4
  v_add_u32 v{CW+1}, {4*2048}, v{CW}
  v_xor_b32 v{CW+2}, 128, v{CW}
  v_add_u32 v{CW+2}, {8*2048}, v{CW+2}
  v_add_u32 v{CW+3}, {4*2048}, v{CW+2}""".split("\n")
    csetup = f"""  v_and_b32 v60, 63, v0
  v_lshrrev_b32 v61, 4, v60         ; g
  v_and_b32 v56, 1, v61
  v_and_b32 v63, 15, v60
  v_add_u32 v63, s3, v63            ; position
  v_lshrrev_b32 v57, 1, v61
  v_mul_u32_u24 v58, 14, v57
  v_add_lshl_u32 v58, v58, v56, 11
  v_add_lshl_u32 v{CX}, v58, v63, 4
  v_lshlrev_b32 v57, 12, v57
  v_add_lshl_u32 v{CH}, v57, v63, 4
  v_lshl_add_u32 v{CH}, v56, 3, v{CH}
  v_and_b32 v{CO}, 0x603, v63
  v_bfe_u32 v57, v63, 2, 4
  v_lshl_or_b32 v{CO}, v57, 5, v{CO}
  v_bfe_u32 v57, v63, 6, 3
  v_lshl_or_b32 v{CO}, v57, 2, v{CO}
  v_lshlrev_b32 v{CO}, 11, v{CO}
  v_lshl_add_u32 v{CO}, v61, 4, v{CO}
  v_lshlrev_b32 v{CE}, 4, v60
  v_bfe_u32 v57, v60, 2, 2          ; r
  v_lshl_add_u32 v58, v61, 3, v57   ; 8g + r
  v_lshlrev_b32 v58, 8, v58
  v_and_b32 v59, 1, v57
  v_and_b32 v57, 2, v57
  v_lshl_add_u32 v59, v57, 1, v59   ; r0 + 4 r1
  v_xor_b32 v56, s53, v56
  v_lshl_add_u32 v59, v56, 3, v59   ; + 8 (g0 ^ kh)
  v_and_b32 v57, 2, v60
  v_or_b32 v59, v59, v57            ; + 2 c1
  v_lshl_add_u32 v58, v59, 4, v58
  v_and_b32 v57, 1, v60
  v_lshl_add_u32 v{CT}, v57, 3, v58
  v_add_u32 v{CT}, {P*CSLOT}, v{CT}""".split("\n")
    for j in range(1, 8):
        csetup.append(f"  v_xor_b32 v{CT+j}, {16*((j&1)+4*(j>>1))}, v{CT}")
    csetup += ["  v_mov_b32 v60, 0", "  v_mov_b32 v61, 1"]
    def bc(base, n): return vr(base + (n & ~1), 2), n & 1
    pre = [(0, 0, 0), (0, 1, 0), (1, 0, 0)]
    assert AHEAD == 3
    NH = 3 if order == 0 else 2
    seq = [(j, m, 0) for j in range(NH) for m in range(2)] + [(j, m, 1) for j in range(NH) for m in range(2)]
    nfirst = len(seq)
    for j in range(NH): seq += [(j, m, kk) for kk in (2, 3) for m in range(2)]
    for j in range(NH, NT): seq += [(j, m, kk) for kk in range(4) for m in range(2)]
    assert seq[:3] == pre and len(seq) == 56
    def ttr(i):
        j, m, kk = seq[i]
        r = AF + 4*(i % RING)
        for jj in range(2):
            off = (kk >> 1)*SLOT + m*MATB + (32*(kk & 1)+8*jj)*ROWB + 32*j
            S.add(f"  ds_read_b64_tr_b16 {ar(r+2*jj,2)}, v1 offset:{off}", 'lg', ('A', 14, i, jj))
    def epi(j, csG, csU):
        ops = [('lgw', ('CS', j))]
        for n in range(4):
            G = acc(j, 0, n); U = acc(j, 1, n); h = n & 1
            M, x = bc(12, n); K1, _ = bc(16, n); S2, _ = bc(20, n)
            if 4*j+n < NSC:
                for q in range(4): ops.append(f"  v_fmac_f32 v{G+q}, v{csG+q}, v{12+n}")
                for q in range(4): ops.append(f"  v_mul_f32 v{2+q}, v{G+q}, v{16+n}")
                for q in range(4):
                    ops.append(f"  v_exp_f32 v{2+q}, v{2+q}")
                    ops.append(f"  v_fmac_f32 v{U+q}, v{csU+q}, v{12+n}")
                for q in range(4): ops.append(f"  v_fma_f32 v{2+q}, v{2+q}, v{20+n}, v{20+n}")
                for q in range(4):
                    ops.append(f"  v_rcp_f32 v{2+q}, v{2+q}")
                    ops.append(f"  v_mul_f32 v{G+q}, v{G+q}, v{U+q}")
                for q in range(4): ops.append(f"  v_mul_f32 v{G+q}, v{G+q}, v{2+q}")
            else:
                for (R, cs) in ((G, csG), (U, csU)):
                    for q in range(2):
                        ops.append(f"  v_pk_fma_f32 {vr(R+2*q,2)}, {vr(cs+2*q,2)}, {M}, {vr(R+2*q,2)} op_sel:[0,{x},0] op_sel_hi:[1,{x},1]")
                    if R == G:
                        for q in range(2):
                            ops.append(f"  v_pk_mul_f32 {vr(2+2*q,2)}, {vr(G+2*q,2)}, {K1} op_sel:[0,{x}] op_sel_hi:[1,{x}]")
                        for q in range(4): ops.append(f"  v_exp_f32 v{2+q}, v{2+q}")
                for q in range(2):
                    ops.append(f"  v_pk_fma_f32 {vr(2+2*q,2)}, {vr(2+2*q,2)}, {S2}, {S2} op_sel:[0,{x},{x}] op_sel_hi:[1,{x},{x}]")
                for q in range(4): ops.append(f"  v_rcp_f32 v{2+q}, v{2+q}")
                for q in range(2): ops.append(f"  v_pk_mul_f32 {vr(G+2*q,2)}, {vr(G+2*q,2)}, {vr(U+2*q,2)}")
                for q in range(2): ops.append(f"  v_pk_mul_f32 {vr(G+2*q,2)}, {vr(G+2*q,2)}, {vr(2+2*q,2)}")
            if h == 0:
                ops.append(f"  v_cvt_pk_bf16_f32 v{G+3}, v{G+2}, v{G+3}")
                ops.append(f"  v_cvt_pk_bf16_f32 v{G+2}, v{G}, v{G+1}")
            else:
                ops.append(f"  v_cvt_pk_bf16_f32 v{G}, v{G}, v{G+1}")
                ops.append(f"  v_cvt_pk_bf16_f32 v{G+1}, v{G+2}, v{G+3}")
            if n < 2 and j < NT-1:
                ops.append(('lg', f"  ds_read_b128 {vr(U,4)}, v11 offset:{448*n+64*(j+1)}", ('CS', j+1) if n else None))
            if h == 1:
                ops.append(f"  s_nop 1\n  v_permlane16_swap_b32 v{G-2}, v{G}")
                ops.append(f"  v_permlane16_swap_b32 v{G-1}, v{G+1}")
                ops.append(('vm', f"  buffer_store_dwordx4 {vr(G-2,4)}, v10, s[12:15], s73 offen offset:{256*(n-1)} sc1", ('ST', j, n)))
        if j < NT-1: ops.append(f"  s_add_u32 s73, s73, {2*32768}")
        if j == 0: ops += csetup
        for JJ, off in ((JA, 0), (JB, 2048)):
            if j == JJ+LAG:
                ops += [('vmw', ('ST', JJ, 3)), "  s_barrier",
                        ('vm', f"  s_mov_b64 exec, 1\n  buffer_atomic_add v61, v60, s[60:63], s52 offen offset:{off} sc1\n  s_mov_b64 exec, -1", None)]
        if j == NT-1:
            ops.insert(1, ('vm', "  s_mov_b64 exec, 1\n  buffer_load_dword v62, v60, s[64:67], s56 offen sc1\n  s_mov_b64 exec, -1", ('PL',)))
            k = int(len(ops)*PPOS)
            while isinstance(ops[k], tuple) or not ops[k].startswith("  v_pk_fma_f32"): k += 1
            chk = [('vmw', ('PL',)), ("  s_memtime s[48:49]\n  s_waitcnt lgkmcnt(0)\n  s_mov_b32 s97, s48\n" if diag else "") + f"""  v_readfirstlane_b32 s29, v62
  s_cmp_lt_u32 s29, 16
  s_cbranch_scc1 L_{name}_spin1
L_{name}_ret1:""" + ("\n  s_memtime s[48:49]\n  s_waitcnt lgkmcnt(0)\n  s_mov_b32 s75, s48" if diag else "")]
            xl = [('cx', st, ks, n) for st in range(P) for ks in range(2) for n in range(2) if not (st == P-1 and ks == 1)]
            rest = ops[k:]; ops = ops[:k] + chk
            step = max(1, len(rest)//(len(xl)+1))
            while rest or xl:
                if xl: ops.append(xl.pop(0))
                ops += rest[:step]; rest = rest[step:]
        return ops
    def put(o):
        if isinstance(o, str): S.add(o)
        elif o[0] == 'lg': S.add(o[1], 'lg', o[2])
        elif o[0] == 'vm': S.add(o[1], 'vm', o[2])
        elif o[0] == 'lgw': S.wait(lg=o[1])
        elif o[0] == 'vmw': S.wait(vm=o[1])
        elif o[0] == 'cdma': cdma(o[1], o[2]); S.add("  s_nop 0"); cflush()
        elif o[0] == 'cx': cxload(o[1], o[2], o[3])
    S.add("  v_mov_b32 v1, v9")
    q0 = []
    for n in range(4): q0.append(('x', n))
    for n in range(4): q0.append(('vm', f"  buffer_load_dword v{28+n}, v26, s[64:67], 0 offen offset:{64*n} sc1", ('Q', n)))
    q0 += scal + cwsetup
    q0 += [('vmw', ('Q', 3)), f"""  v_min_u32 v2, v28, v29
  v_min3_u32 v2, v2, v30, v31
  v_cmp_eq_u32 vcc, 0, v2
  s_cbranch_vccnz L_{name}_spin0
L_{name}_ret0:"""]
    for n in range(4):
        q0 += [f"  v_and_b32 v2, 0xffff0000, v{28+n}", f"  v_lshlrev_b32 v{12+n}, 16, v{28+n}", f"  v_rcp_f32 v{16+n}, v2", f"  v_mul_f32 v{20+n}, v2, v2",
               f"  v_xor_b32 v{12+n}, 0x80000000, v{12+n}"]
    q0 += ["  v_mov_b32 v11, v27", ('lg', "  ds_read_b128 v[24:27], v11", None), ('lg', "  ds_read_b128 v[28:31], v11 offset:448", ('CS', 0))]
    q0 += [f"  v_mul_f32 v{16+n}, 0xbfb8aa3b, v{16+n}" for n in range(4)]
    ready = list(q0)
    delayed = []
    cs = (24, 28); started = [False]
    early = [(st, n) for st in range(P) for n in range(4)]
    left = {j: 8 for j in range(NT)}
    for i, (j, m, kk) in enumerate(seq):
        if i + AHEAD == nfirst:
            S.wait(vm=('W', 15, NT-1))
            S.add("  s_barrier")
        for n in range(4):
            if n == 0:
                S.wait(lg=('A', 14, i, 1), vm=('X', 14 + (kk >> 1), kk & 1, 3))
            c = acc(j, m, n)
            S.add(f"  v_mfma_f32_16x16x32_bf16 {vr(c,4)}, {ar(AF+4*(i%RING),4)}, {ar(xreg(kk>>1,kk&1,n),4)}, {vr(c,4)}")
            if n == 0 and i + AHEAD < 56: ttr(i + AHEAD)
            cflush()
            if n == 2 and i >= D0 and (i - D0) % DS == 0 and early: cdma(*early.pop(0))
            for d in delayed: d[0] -= 1
            while delayed and delayed[0][0] <= 0:
                ready += delayed.pop(0)[1]; started[0] = True
            k = 0
            kmax = (RATE[n] if isinstance(RATE, tuple) else (RATE if n else RATE-1)) if started[0] else (2 if n in (1, 2) or i == 0 else 1)
            while ready and k < kmax:
                if isinstance(ready[0], str) and 'v_pk_' in ready[0]: break
                o = ready.pop(0)
                if isinstance(o, tuple) and o[0] == 'x': xload(15, 1, o[1])
                else: put(o)
                if not (isinstance(o, tuple) and o[0] in ('lgw', 'vmw')): k += 1
        left[j] -= 1
        if left[j] == 0:
            delayed.append([8, epi(j, *cs)])
            cs = (acc(j, 1, 0), acc(j, 1, 1))
    if diag: S.add("  s_memtime s[36:37]\n  s_waitcnt lgkmcnt(0)")
    assert not early and not cpend
    S.add("  s_nop 7")
    for d in delayed: ready += d[1]
    for o in ready: put(o)
    if diag: S.add("  s_memtime s[38:39]\n  s_waitcnt lgkmcnt(0)")
    S.wait(vm=('CW', 0, 3))
    S.add("  s_barrier")
    for f in range(AHEAD): ctr(0, f)
    for r in range(CACC, CACC+64): C.add(f"  v_mov_b32 v{r}, 0")
    if JA == 1:
        C.add("  s_mov_b64 exec, 1\n  buffer_load_dword v62, v60, s[64:67], s56 offen offset:2048 sc1\n  s_mov_b64 exec, -1", 'vm', None)
    C.add("  s_mov_b32 s19, 0")
    if diag: S.add("  s_memtime s[48:49]\n  s_waitcnt lgkmcnt(0)\n  s_mov_b32 s96, s48")
    for st in range(CNST):
        if st % P == 0:
            C.mark(('cbody', st//P))
            C.add(f"""  s_cmp_lg_u32 s19, 0
  s_cbranch_scc1 L_{name}_hook
L_{name}_ret2:""")
        acts = {}
        for ks in range(2):
            s2, k2 = (st+P-1, 1) if ks == 0 else (st+P, 0)
            acts.setdefault((8*ks+0, 1), []).append(('x', s2, k2, 0))
            acts.setdefault((8*ks+2, 1), []).append(('x', s2, k2, 1))
            acts.setdefault((8*ks+4, 0), []).append(('d', st+P, 2*ks))
            acts.setdefault((8*ks+6, 0), []).append(('d', st+P, 2*ks+1))
        for f in range(16):
            ks, j = divmod(f, 8)
            fa = f + AHEAD
            ring = AF + 4*(f % RING)
            if fa == 16:
                C.wait(vm=('CW', st+1, 3))
                C.add("  s_barrier")
                if st % P == P-1:
                    for q in range(8): C.add(f"  v_xor_b32 v{CT+q}, {P*CSLOT}, v{CT+q}")
            for n in range(2):
                if n == 0:
                    C.wait(lg=('CA', st, f, 1), vm=(('CX', st, ks, 1) if j == 0 else None))
                c = cacc(j, n)
                C.add(f"  v_mfma_f32_16x16x32_bf16 {vr(c,4)}, {ar(ring,4)}, {ar(cxreg(st,ks,n),4)}, {vr(c,4)}")
                if n == 0:
                    if fa < 16: ctr(st, fa)
                    else: ctr(st+1, fa-16)
                cflush()
                for act in acts.get((f, n), []):
                    if act[0] == 'x': cxload(act[1], act[2], act[3])
                    else: cdma(act[1], act[2])
        assert not cpend
        if st % P == P-1:
            C.add(f"  s_add_u32 s19, s19, 1\n  s_cmp_lt_u32 s19, {CNST//P}\n  s_cbranch_scc1 L_{name}_cloop")
    C.mark('end')
    segs = split_marks(C.resolve())
    emit(a, segs[0][1])
    a("  .p2align 6")
    a(f"L_{name}_loop:")
    emit(a, merge_iters([s[1] for s in segs if s[0] and s[0][0] == 'body']))
    a(f"L_{name}_go:")
    emit(a, [s[1] for s in segs if s[0] == 'tail'][0])
    a("  .p2align 6")
    a(f"L_{name}_cloop:")
    emit(a, merge_iters([s[1] for s in segs if s[0] and s[0][0] == 'cbody']))
    if diag: a("  s_memtime s[50:51]")
    SND = cacc(4, 0)
    if xbf:
        a("  s_nop 7")
        for q in range(4):
            for k in range(4): a(f"  v_cvt_pk_bf16_f32 v{SND+4*q+k}, v{SND+8*q+2*k}, v{SND+8*q+2*k+1}")
            a(f"  buffer_store_dwordx4 {vr(SND+4*q,4)}, v{CE}, s[76:79], s80 offen offset:{1024*q} sc1")
        nx = 4
    else:
        a("  s_add_u32 s58, s80, 4096\n  s_add_u32 s59, s81, 4096\n  s_nop 5")
        for q in range(8):
            a(f"  buffer_store_dwordx4 {vr(SND+4*q,4)}, v{CE}, s[76:79], s{80 if q < 4 else 58} offen offset:{1024*(q%4)} sc1")
        nx = 8
    UB = [0, 1, 4, 5]
    for j in range(4):
        a(f"  s_add_u32 s29, s57, {UB[j]*32768}")
        for n in range(2):
            a(f"  buffer_load_dwordx2 {vr(HR+2*(2*j+n),2)}, v{CH}, s[8:11], s29 offen offset:{256*n}")
    a(f"""  s_waitcnt vmcnt(8) lgkmcnt(0)
  s_mov_b64 exec, 1
  buffer_store_dword v61, v60, s[64:67], s82 offen sc1
  buffer_load_dword v12, v60, s[64:67], s83 offen sc1
  s_mov_b64 exec, -1
  s_waitcnt vmcnt(2)""")
    for q in range(8):
        c = CACC+4*q; h = HR+2*q
        a(f"""  v_lshlrev_b32 v14, 16, v{h}
  v_and_b32 v15, 0xffff0000, v{h}
  v_lshlrev_b32 v16, 16, v{h+1}
  v_and_b32 v17, 0xffff0000, v{h+1}
  v_pk_add_f32 {vr(c,2)}, {vr(c,2)}, v[14:15]
  v_pk_add_f32 {vr(c+2,2)}, {vr(c+2,2)}, v[16:17]""")
    a(f"""  s_mov_b32 s20, 0
  s_mov_b64 exec, 1
L_{name}_poll3:
  s_waitcnt vmcnt(0)
  v_cmp_eq_u32 vcc, 0, v12
  s_cbranch_vccz L_{name}_go3
  s_add_u32 s20, s20, 1
  s_cmp_gt_u32 s20, 0x100000
  s_cbranch_scc1 L_{name}_go3
  s_sleep {sleep}
  buffer_load_dword v12, v60, s[64:67], s83 offen sc1
  s_branch L_{name}_poll3
L_{name}_go3:
  s_mov_b64 exec, -1""")
    if diag: a("  s_memtime s[98:99]")
    for q in range(nx):
        so = 81 if (xbf or q < 4) else 59
        a(f"  buffer_load_dwordx4 {vr(RX+4*q,4)}, v{CE}, s[76:79], s{so} offen offset:{1024*(q%4)} sc1")
    for jp in range(2):
        a(f"  s_waitcnt vmcnt({(nx//2)*(1-jp)+2*jp})")
        for q in range(4*jp, 4*jp+4):
            c = CACC+4*q
            if xbf:
                r = RX+2*q
                a(f"""  v_lshlrev_b32 v14, 16, v{r}
  v_and_b32 v15, 0xffff0000, v{r}
  v_lshlrev_b32 v16, 16, v{r+1}
  v_and_b32 v17, 0xffff0000, v{r+1}
  v_pk_add_f32 {vr(c,2)}, {vr(c,2)}, v[14:15]
  v_pk_add_f32 {vr(c+2,2)}, {vr(c+2,2)}, v[16:17]""")
            else:
                for h in range(2):
                    a(f"  v_pk_add_f32 {vr(c+2*h,2)}, {vr(c+2*h,2)}, {vr(RX+4*q+2*h,2)}")
        for n in range(2):
            Pp = 40 + 4*n
            A = cacc(2*jp, n); B = cacc(2*jp+1, n)
            a(f"""  v_cvt_pk_bf16_f32 v{Pp}, v{A}, v{A+1}
  v_cvt_pk_bf16_f32 v{Pp+1}, v{A+2}, v{A+3}
  v_cvt_pk_bf16_f32 v{Pp+2}, v{B}, v{B+1}
  v_cvt_pk_bf16_f32 v{Pp+3}, v{B+2}, v{B+3}
  s_mov_b32 s16, {n*128*2048}
  s_nop 0
  v_permlane16_swap_b32 v{Pp}, v{Pp+2}
  v_permlane16_swap_b32 v{Pp+1}, v{Pp+3}
  buffer_store_dwordx4 {vr(Pp,4)}, v{CO}, s[84:87], s16 offen offset:{64*jp} {outfl}""")
    if diag:
        a("  s_waitcnt vmcnt(0)\n  s_memtime s[100:101]")
        diag_store(a, name, dbg_idx, [30, 32, 34, 36, 97, 75, 38, 96, 50, 98, 100], 24)
    a(f"L_{name}_end:\n  s_endpgm")
    a(f"L_{name}_fin:")
    for q in range(4): a(f"  ds_read_b64 {vr(12+2*q,2)}, v17 offset:{64*q}" if q < 2 else f"  ds_read_b64 {vr(18+2*q,2)}, v17 offset:{64*q}")
    a("""  s_cmp_eq_u32 s28, 0
  s_cselect_b32 s66, 8192, 0
  s_waitcnt lgkmcnt(0)
  v_pk_add_f32 v[12:13], v[12:13], v[14:15]
  v_pk_add_f32 v[22:23], v[22:23], v[24:25]
  v_pk_add_f32 v[12:13], v[12:13], v[22:23]""")
    ln_pack(a, 12, 13, 14, 15)
    a(f"""  s_mov_b64 exec, 0xff
  buffer_store_dword v14, v21, s[64:67], 0 offen sc1
  s_mov_b64 exec, -1
  s_mov_b32 s66, {ZERO_SIZE}
  s_branch L_{name}_finret""")
    a(f"L_{name}_spin0:\n  s_mov_b32 s20, 0\nL_{name}_spin0l:\n  s_sleep 2")
    for n in range(4): a(f"  buffer_load_dword v{28+n}, v26, s[64:67], 0 offen offset:{64*n} sc1")
    a(f"""  s_waitcnt vmcnt(0)
  v_min_u32 v2, v28, v29
  v_min3_u32 v2, v2, v30, v31
  v_cmp_eq_u32 vcc, 0, v2
  s_cbranch_vccz L_{name}_ret0
  s_add_u32 s20, s20, 1
  s_cmp_gt_u32 s20, 0x100000
  s_cbranch_scc0 L_{name}_spin0l
  s_branch L_{name}_ret0""")
    for tagn, so, off, ret in ((1, 56, 0, 1), (2, 56, 2048, 2), (3, 55, 0, 2)):
        a(f"""L_{name}_spin{tagn}:
  s_mov_b32 s20, 0
  s_mov_b64 exec, 1
L_{name}_spin{tagn}l:
  buffer_load_dword v62, v60, s[64:67], s{so} offen offset:{off} sc1
  s_waitcnt vmcnt(0)
  v_readfirstlane_b32 s29, v62
  s_cmp_ge_u32 s29, 16
  s_cbranch_scc1 L_{name}_spin{tagn}x
  s_sleep {sleep}
  s_add_u32 s20, s20, 1
  s_cmp_gt_u32 s20, 0x100000
  s_cbranch_scc0 L_{name}_spin{tagn}l
L_{name}_spin{tagn}x:
  s_mov_b64 exec, -1
  s_branch L_{name}_ret{ret}""")
    assert JA in (1, 2) and JB >= JA+2 and JB >= 3
    NV = 8*P - 1
    a(f"""L_{name}_hook:
  s_cmp_eq_u32 s19, {CNST//P-2}
  s_cselect_b32 s59, 0x40000000, s59
  s_cmp_eq_u32 s19, {CNST//P-1}
  s_cselect_b32 s58, 0x40000000, s58
  s_cmp_lg_u32 s19, 1
  s_cbranch_scc1 L_{name}_h1
  s_add_u32 s54, s52, 4096
  s_add_u32 s55, s56, 4096
  s_mov_b64 exec, 1
  buffer_atomic_add v61, v60, s[60:63], s54 offen sc1
  s_mov_b64 exec, -1
L_{name}_h1:""")
    if JA >= 2:
        a(f"""  s_cmp_lg_u32 s19, {JA-1}
  s_cbranch_scc1 L_{name}_h2
  s_mov_b64 exec, 1
  buffer_load_dword v62, v60, s[64:67], s56 offen offset:2048 sc1
  s_mov_b64 exec, -1
L_{name}_h2:""")
    a(f"""  s_cmp_lg_u32 s19, {JA}
  s_cbranch_scc1 L_{name}_h3
  s_waitcnt vmcnt({NV})
  v_readfirstlane_b32 s29, v62
  s_cmp_lt_u32 s29, 16
  s_cbranch_scc1 L_{name}_spin2
L_{name}_h3:
  s_cmp_lg_u32 s19, {JB-1}
  s_cbranch_scc1 L_{name}_h4
  s_mov_b64 exec, 1
  buffer_load_dword v62, v60, s[64:67], s55 offen sc1
  s_mov_b64 exec, -1
L_{name}_h4:
  s_cmp_lg_u32 s19, {JB}
  s_cbranch_scc1 L_{name}_ret2
  s_waitcnt vmcnt({NV})
  v_readfirstlane_b32 s29, v62
  s_cmp_lt_u32 s29, 16
  s_cbranch_scc1 L_{name}_spin3
  s_branch L_{name}_ret2""")
    desc = kernel_desc(name, 256+nagpr, 102, 256)
    return a.text(), desc, f"; @launch kernel={name} grid=(256,1,1) block=(256,1,1) lds={RED+256}"
```

```python
import sys
from g2 import gen_g2
from ka import gen_a
from kb import gen_b
from ka8 import gen_a8
from kbc import gen_bc
from kbc2 import gen_bc2
try:
    from kc import gen_c
except ImportError:
    gen_c = None
def assemble(parts):
    out = [p[2] for p in parts]
    out.append('.amdgcn_target "amdgcn-amd-amdhsa--gfx950"')
    out += [p[0] for p in parts]
    out.append("  .fill 4096, 4, 0xbf800000")
    out += [p[1] for p in parts]
    return "\n".join(out) + "\n"
if __name__ == "__main__":
    diag = len(sys.argv) > 2 and sys.argv[2] == "diag"
    opts = eval(sys.argv[3]) if len(sys.argv) > 3 else {}
    oldc = opts.get('oldc', False)
    ao = dict(pfnext=('b_kernel','c_kernel')); ao.update(opts.get('a', {}))
    parts = [(gen_a if opts.get('olda') else gen_a8)(diag=diag, dbg_idx=0, **ao), gen_b(diag=diag, dbg_idx=1, **opts.get('b', {})),
             gen_g2(name="c_kernel", diag=diag, dbg_idx=2, perm=True, P=2) if oldc else gen_c(diag=diag, dbg_idx=2, **opts.get('c', {}))]
    if 'bc' in opts:
        ao['pfnext'] = opts.get('a', {}).get('pfnext', ('b_kernel', 'L_b_kernel_go'))
        parts = [gen_a8(diag=diag, dbg_idx=0, **ao), gen_bc(diag=diag, dbg_idx=1, **opts['bc'])]
    if 'bc2' in opts:
        ao['pfnext'] = opts.get('a', {}).get('pfnext', ('b_kernel', 'L_b_kernel_go'))
        parts = [gen_a8(diag=diag, dbg_idx=0, **ao), gen_bc2(diag=diag, dbg_idx=1, **opts['bc2'])]
    open(sys.argv[1], "w").write(assemble(parts))
```

```python
from asmgen import *
from sched import *
from layout import *
from g1 import diag_store
from conv import wave_allsum
from ka import ln_pack, USZ, UTOT, TROW, REG, YOFF, HHOFF, CSOFF

GRL = UTOT+4*REG

def gen_a8(name="a_kernel", diag=False, dbg_idx=0, selfpf=True, pfnext=(), sleep=4, NB1=2, CS1=16, BR=6, prio=True, GB=0, MPF=(), MPFN=32, rowfl='', comb=True, XPF=False, parfl='', THR=1, GP=5, nolds=False, xfl='', WL2=4):
    csdec = f"""  s_mul_i32 s20, s2, 1171
  s_lshr_b32 s20, s20, 16
  s_mul_i32 s21, s20, 56
  s_sub_u32 s21, s2, s21            ; blk
  s_cmp_ge_u32 s21, 28
  s_cselect_b32 s44, s74, s72
  s_cselect_b32 s45, s75, s73
  s_cselect_b32 s22, 28, 0
  s_sub_u32 s22, s21, s22           ; cb
  s_cmp_lt_u32 s2, 224
  s_cselect_b32 s46, {1024*7168}, 0
  s_mov_b32 s47, 0x20000
  s_lshl_b32 s23, s20, 2
  s_add_u32 s23, s23, s28
  s_mul_i32 s23, s23, {64*7168}
  s_lshl_b32 s22, s22, 8
  s_add_u32 s92, s23, s22
  s_mul_i32 s20, s20, {7168*4}
  s_lshl_b32 s21, s21, 9
  s_add_u32 s93, s20, s21"""
    a = Asm()
    a(kernel_head(name))
    a(f"""  s_cmp_ge_u32 s2, 256
  s_cbranch_scc1 L_{name}_end""")
    if diag: a("  s_memrealtime s[40:41]\n  s_memtime s[30:31]")
    a(f"""  s_load_dwordx16 s[52:67], s[0:1], 0
  s_load_dwordx2 s[68:69], s[0:1], 64
  s_load_dwordx4 s[72:75], s[0:1], 80
  s_load_dwordx2 s[24:25], s[0:1], 120
  v_lshrrev_b32 v1, 6, v0
  v_and_b32 v2, 63, v0
  s_and_b32 s3, s2, 7
  v_readfirstlane_b32 s28, v1       ; wave
  s_lshl_b32 s3, s3, 5
  s_lshr_b32 s26, s2, 3
  s_add_u32 s26, s26, s3            ; cg
  s_cmp_ge_u32 s28, 4
  s_cbranch_scc1 L_{name}_helper""")
    BRG = 64
    RW = 64
    ACC = [96, 112]
    if selfpf:
        a(f"""  s_getpc_b64 s[76:77]
  v_lshlrev_b32 v3, 6, v0
  global_load_dword v127, v3, s[76:77]""")
    a(f"""  s_lshl_b32 s27, s26, 2
  s_add_u32 s27, s27, s28           ; d
  s_lshl_b32 s29, s27, 8
  v_lshl_add_u32 v3, v2, 2, s29
  s_lshr_b32 s29, s27, 1
  s_lshl_b32 s29, s29, 2
  s_mul_i32 s19, s28, {REG}
  s_add_u32 s19, s19, {UTOT}
  v_lshl_add_u32 v7, v2, 3, s19
  s_lshr_b32 s20, s2, 2
  s_lshl_b32 s20, s20, 5
  s_and_b32 s21, s2, 3
  s_add_u32 s20, s20, s21
  s_lshl_b32 s21, s28, 3
  s_add_u32 s20, s20, s21
  s_lshl_b32 s20, s20, 11
  s_add_u32 s21, s20, {4*2048}
  v_lshlrev_b32 v14, 4, v2
  s_mov_b32 s6, {4<<20}
  s_mov_b32 s7, 0x20000
  s_mov_b32 s22, {NONCE_OFF}
  s_waitcnt lgkmcnt(0)
  s_mov_b32 s4, s52
  s_mov_b32 s5, s53
  s_load_dword s70, s[24:25], s22
  buffer_load_dwordx4 {vr(RW,4)}, v14, s[4:7], s20 offen {rowfl}
  buffer_load_dwordx4 {vr(RW+4,4)}, v14, s[4:7], s20 offen offset:1024 {rowfl}
  buffer_load_dwordx4 {vr(RW+8,4)}, v14, s[4:7], s21 offen {rowfl}
  buffer_load_dwordx4 {vr(RW+12,4)}, v14, s[4:7], s21 offen offset:1024 {rowfl}
  s_load_dword s16, s[66:67], s29
  s_load_dword s17, s[68:69], s29
  global_load_dword v8, v3, s[54:55] {parfl}
  global_load_dword v9, v3, s[56:57] {parfl}
  global_load_dword v10, v3, s[58:59] {parfl}
  global_load_dword v11, v3, s[60:61] {parfl}
  global_load_dword v12, v3, s[62:63] {parfl}
  global_load_dword v13, v3, s[64:65] {parfl}""")
    if XPF:
        a(f"""  s_lshr_b32 s20, s2, 3
  s_lshl_b32 s20, s20, 2
  s_add_u32 s20, s20, s28
  s_lshl_b32 s20, s20, 15
  s_and_b32 s21, s2, 7
  s_lshl_b32 s21, s21, 8
  s_add_u32 s20, s20, s21
  v_bfe_u32 v14, v2, 1, 4
  v_and_b32 v15, 1, v2
  v_lshlrev_b32 v14, 11, v14
  v_lshl_add_u32 v14, v15, 7, v14
  v_add_u32 v14, s20, v14
  global_load_dword v126, v14, s[52:53]""")
    a("  s_barrier")
    if prio: a("  s_setprio 1")
    MK = [None, 28, 29, 30]; NK = [None, 31, 62, 63]
    a(f"""  v_and_b32 v24, 31, v2
  v_lshlrev_b32 v5, 4, v24
  v_lshlrev_b32 v14, 2, v24
  v_mul_u32_u24 v24, {TROW}, v24
  v_lshrrev_b32 v15, 5, v2          ; h / kg
  v_lshl_add_u32 v24, v15, 4, v24
  v_add_u32 v24, s19, v24
  v_add_u32 v5, s19, v5
  v_lshl_add_u32 v4, v15, 3, v5
  v_lshl_add_u32 v5, v15, 10, v5
  s_add_u32 s20, s19, {YOFF}
  v_lshl_add_u32 v26, v15, 12, v14
  v_add_u32 v26, s20, v26
  v_lshlrev_b32 v16, 10, v15
  v_sub_u32 v27, v14, v16
  s_add_u32 s20, s19, {HHOFF+1040}
  v_add_u32 v27, s20, v27
  v_cmp_eq_u32 s[78:79], 1, v15
  v_bfe_u32 v16, v2, 4, 1           ; gamma&1
  v_and_b32 v17, 1, v2
  v_cmp_eq_u32 s[80:81], 1, v17
  v_lshlrev_b32 v17, 4, v17
  v_lshl_add_u32 v17, v16, 3, v17
  v_and_b32 v16, 2, v2
  v_lshl_add_u32 v17, v16, 1, v17   ; q0
  v_lshlrev_b32 v16, 5, v15
  v_sub_u32 v17, v17, v16
  v_bfe_u32 v16, v2, 2, 2
  v_lshlrev_b32 v16, 2, v16
  v_sub_u32 v17, v17, v16
  v_add_u32 v17, 48, v17
  v_lshl_add_u32 v6, v17, 1, s19
  v_bfe_u32 v16, v2, 2, 3           ; p
  v_add_u32 v16, v16, v15
  v_and_b32 v17, 3, v2              ; rho
  v_mul_u32_u24 v18, 1216, v17
  v_lshl_add_u32 v16, v16, 4, v18
  s_mul_i32 s20, s28, {USZ}
  v_add_u32 v25, s20, v16""")
    for dl in range(1, 4):
        a(f"""  v_cmp_le_u32 vcc, {dl}, v17
  s_nop 1
  v_cndmask_b32 v{MK[dl]}, 0, 1.0, vcc
  v_cndmask_b32 v{NK[dl]}, 1.0, 0, vcc""")
    a(f"""  s_waitcnt lgkmcnt(0)
  s_and_b32 s29, s28, 1
  s_lshl_b32 s29, s29, 4
  s_lshr_b32 s16, s16, s29
  s_lshl_b32 s16, s16, 16           ; log_dt
  s_lshr_b32 s17, s17, s29
  s_lshl_b32 s17, s17, 16           ; Dskip
  v_mov_b32 v14, 0x3fb8aa3b
  v_mul_f32 v14, s16, v14
  v_exp_f32 v14, v14
  v_cmp_eq_u32 vcc, 0, v2
  v_mov_b32 v3, s17
  v_cvt_pk_bf16_f32 v14, v14, v14
  v_cndmask_b32 v3, 0, v3, vcc
  v_lshlrev_b32 v14, 16, v14        ; dt
  v_mul_f32 v15, 0x3fb8aa3b, v14    ; dt*log2e
  v_mul_f32 v16, 0.15915494, v14    ; dt/2pi
{csdec if MPF else ''}
  v_lshrrev_b32 v60, 1, v2
  v_mul_u32_u24 v60, 7168, v60
  v_and_b32 v61, 1, v2
  v_lshl_add_u32 v60, v61, 7, v60
  s_add_u32 s8, s24, {ST1_OFF}
  s_addc_u32 s9, s25, 0
  s_mov_b32 s10, 16384
  s_mov_b32 s11, 0x20000
  v_mov_b32 v32, 0
  v_mov_b32 v33, 0
  v_mov_b32 v34, 0
  v_mov_b32 v35, 0
  s_mov_b32 s22, 0x3f803f80
  s_add_u32 s70, s70, 1
  s_waitcnt vmcnt({8+(1 if XPF else 0)})""")
    for row in range(2):
        if row: a(f"  s_waitcnt vmcnt({6+(1 if XPF else 0)})")
        for i in range(8):
            r = RW+8*row+i
            a(f"  v_dot2c_f32_bf16 v{32+row}, s22, v{r}\n  v_dot2c_f32_bf16 v{34+row}, v{r}, v{r}")
    if diag: a("  s_memtime s[32:33]")
    a("  s_nop 1")
    wave_allsum(a, [32, 33, 34, 35], [36, 37, 38, 39])
    ln_pack(a, 32, 34, 36, 40)
    ln_pack(a, 33, 35, 38, 40)
    a(f"""  v_mov_b32 v37, s70
  v_mov_b32 v39, s70
  s_lshl_b32 s21, s28, 4
  s_add_u32 s21, s21, {GRL}
  v_mov_b32 v32, s21
  v_mov_b32 v33, {GRL+64}
  v_mov_b32 v34, 1
  s_mov_b64 exec, 1
  ds_write_b128 v32, v[36:39]
  ds_add_rtn_u32 v34, v33, v34
  s_waitcnt lgkmcnt(0)
  v_cmp_eq_u32 vcc, 3, v34
  s_mov_b64 exec, -1
  s_cbranch_vccz L_{name}_nopub
  v_and_b32 v32, 3, v2
  v_lshlrev_b32 v32, 4, v32
  v_add_u32 v33, {GRL}, v32
  ds_read_b128 v[36:39], v33
  s_lshl_b32 s20, s2, 6
  s_mov_b64 exec, 15
  s_waitcnt lgkmcnt(0)
  buffer_store_dwordx4 v[36:39], v32, s[8:11], s20 offen sc1
  s_mov_b64 exec, -1
  s_waitcnt vmcnt({1+(1 if XPF else 0)})
  s_branch L_{name}_pub
L_{name}_nopub:
  s_waitcnt vmcnt({1 if XPF else 0})
L_{name}_pub:""")
    if diag: a("  s_memtime s[88:89]")
    def unp(dst, src, n):
        a(f"  v_lshlrev_b32 v{dst}, 16, v{src}" if n == 0 else f"  v_and_b32 v{dst}, 0xffff0000, v{src}")
    for n in range(2):
        unp(32+n, 8, n); unp(34+n, 9, n); unp(36+2*n, 10, n); unp(37+2*n, 11, n); unp(40+2*n, 12, n); unp(41+2*n, 13, n)
    a("""  v_mul_f32 v32, v32, v15
  v_mul_f32 v33, v33, v15
  v_mul_f32 v34, v34, v16
  v_mul_f32 v35, v35, v16
  v_pk_mul_f32 v[36:37], v[36:37], v[14:15] op_sel:[0,0] op_sel_hi:[1,0]
  v_pk_mul_f32 v[38:39], v[38:39], v[14:15] op_sel:[0,0] op_sel_hi:[1,0]""")
    T = 16
    def cmul(dst, x, w):
        for n in range(2):
            a(f"  v_pk_mul_f32 {vr(T+2*n,2)}, {vr(x+2*n,2)}, {vr(w+2*n,2)} op_sel:[0,0] op_sel_hi:[1,0]")
        for n in range(2):
            a(f"  v_pk_fma_f32 {vr(dst+2*n,2)}, {vr(x+2*n,2)}, {vr(w+2*n,2)}, {vr(T+2*n,2)} op_sel:[1,1,0] op_sel_hi:[0,1,1] neg_lo:[1,0,0]")
    def cexp(dst, l):
        lit = {1: "1.0", 8: "0x41000000", 256: "0x43800000"}[l]
        for n in range(2):
            a(f"  v_mul_f32 v{T+n}, {lit}, v{32+n}\n  v_mul_f32 v{T+2+n}, {lit}, v{34+n}")
        for n in range(2):
            a(f"  v_exp_f32 v{T+n}, v{T+n}\n  v_fract_f32 v{T+2+n}, v{T+2+n}")
        for n in range(2):
            a(f"  v_cos_f32 v{dst+2*n}, v{T+2+n}\n  v_sin_f32 v{dst+2*n+1}, v{T+2+n}")
        a("  s_nop 0")
        for n in range(2):
            a(f"  v_pk_mul_f32 {vr(dst+2*n,2)}, {vr(dst+2*n,2)}, {vr(T,2)} op_sel:[0,{n}] op_sel_hi:[1,{n}]")
    tog = [0]; cnt = [0]
    def mpf():
        return a(mpft())
    def mpft():
        return f"""  s_mov_b64 exec, {'-1' if MPFN == 64 else hex((1 << MPFN)-1)}
  buffer_load_dword v61, v60, s[44:47], s92 offen
  s_mov_b64 exec, -1
  s_add_u32 s92, s92, {(MPFN//2)*7168}"""
    def emitrow(x, rows, neg):
        t = 20 + 2*tog[0]; tog[0] ^= 1
        s = "-" if neg else ""
        a(f"  v_cvt_pk_bf16_f32 v{t}, v{x}, {s}v{x+1}\n  v_cvt_pk_bf16_f32 v{t+1}, v{x+2}, {s}v{x+3}")
        for r in rows: a(f"  ds_write_b64 v7, {vr(t,2)} offset:{r*TROW}" if not nolds else "  s_nop 0")
        cnt[0] += 1
        if cnt[0] == GB: a("  s_barrier")
        if cnt[0] in MPF: mpf()
    C, E1, E8, E256, Z, W, E2 = 36, 44, 48, 52, 56, 8, 40
    cmul(C, 36, 40)
    cexp(E1, 1); cexp(E8, 8); cexp(E256, 256)
    rowmap = {}
    for h, lst in enumerate([[0,1,2,3,256,258,260,None,512,516,768,772,1024,1032,1280,1288],
                             [4,5,6,7,260,262,264,None,516,520,772,776,1536,1544,1792,1800]]):
        for k, v in enumerate(lst):
            if v is not None: rowmap.setdefault(v, []).append(8*(k//4) + 4*h + (k % 4))
    emitrow(C, rowmap[0], True)
    cmul(W, C, E1); emitrow(W, rowmap[1], True)
    for l in range(2, 8):
        cmul(W, W, E1); emitrow(W, rowmap[l], True)
    cmul(E2, E1, E1)
    cmul(E1, E2, E2)
    E4 = E1
    cmul(Z, C, E256); emitrow(Z, rowmap[256], True)
    cmul(W, Z, E2); emitrow(W, rowmap[258], True)
    for l in (260, 262, 264):
        cmul(W, W, E2); emitrow(W, rowmap[l], True)
    for b in (512, 768):
        cmul(Z, Z, E256); emitrow(Z, rowmap[b], True)
        cmul(W, Z, E4); emitrow(W, rowmap[b+4], True)
        cmul(W, W, E4); emitrow(W, rowmap[b+8], True)
    for b in (1024, 1280, 1536, 1792):
        cmul(Z, Z, E256); emitrow(Z, rowmap[b], True)
        cmul(W, Z, E8); emitrow(W, rowmap[b+8], True)
    a(f"""  v_mov_b32 v20, 0x3f80
  v_mov_b32 v21, 0x3f80
  ds_write_b64 v7, v[20:21] offset:{32*TROW}""")
    tog[0] = 1
    emitrow(E8, [33], False)
    cmul(W, E8, E8); emitrow(W, [34], False)
    for j in range(3, 32):
        cmul(W, W, E8); emitrow(W, [32+j], False)
    S = Stream()
    for s in range(16):
        S.add(f"  ds_read_b128 {ar(8*s,4)}, v24 offset:{32*s}", 'lg', ('a', s))
        S.add(f"  ds_read_b128 {ar(8*s+4,4)}, v24 offset:{32*TROW+32*s}", 'lg', ('b', s))
        if s >= 6:
            q = s-6
            S.wait(lg=('b', q))
            S.add(f"  v_mfma_f32_32x32x16_bf16 {vr(ACC[0],16)}, {ar(8*q,4)}, {ar(8*q+4,4)}, {vr(ACC[0],16) if q else 0}")
    for q in range(10, 16):
        S.wait(lg=('b', q))
        S.add(f"  v_mfma_f32_32x32x16_bf16 {vr(ACC[0],16)}, {ar(8*q,4)}, {ar(8*q+4,4)}, {vr(ACC[0],16)}")
    emit(a, S.resolve())
    for _ in range(MPF.count(99)): mpf()
    D = ACC[0]
    a(f"""  v_mov_b32 v20, 0
  v_min_u32 v21, 15, v2
  v_lshl_add_u32 v21, v21, 2, s19
  ds_write_b32 v21, v20
  ds_write_b32 v21, v20 offset:{HHOFF}
  s_nop 6
  v_add_f32 v{D}, v{D}, v3
  v_cvt_pk_bf16_f32 v8, v{D}, v{D+1}
  v_cvt_pk_bf16_f32 v9, v{D+2}, v{D+3}
  ds_write_b64 v4, v[8:9] offset:64
  v_cvt_pk_bf16_f32 v10, v{D+4}, v{D+4}
  v_cvt_pk_bf16_f32 v11, v{D+5}, v{D+6}
  ds_write_b64 v4, v[10:11] offset:{64+512}""")
    for k in range(2):
        A, B = D+8+2*k, D+9+2*k
        t = 8+2*k
        a(f"""  v_cndmask_b32 v12, v{A}, v{B}, s[78:79]
  v_cvt_pk_bf16_f32 v{t}, v{A}, v{A}
  v_cvt_pk_bf16_f32 v{t+1}, v12, v{B}
  ds_write_b64 v4, {vr(t,2)} offset:{64+1024+512*k}""")
    for k in range(2):
        A, B = D+12+2*k, D+13+2*k
        t = 16+4*k
        a(f"""  v_cndmask_b32 v12, v{A}, v{B}, s[80:81]
  v_cvt_pk_bf16_f32 v{t}, v{A}, v{A}
  v_cvt_pk_bf16_f32 v{t+1}, v{A}, v{A}
  v_cvt_pk_bf16_f32 v{t+2}, v12, v{B}
  v_cvt_pk_bf16_f32 v{t+3}, v{B}, v{B}
  ds_write_b128 v5, {vr(t,4)} offset:{64+2048+512*k}""")
    S = Stream()
    def AF(c): return 4*c
    def rdA(c):
        return [(f"  ds_read_b64_tr_b16 {ar(AF(c),2)}, v6 offset:{128*c+32}", ('A0', c)),
                (f"  ds_read_b64_tr_b16 {ar(AF(c)+2,2)}, v6 offset:{128*c}", ('A', c))]
    QP = {1: "[3,0,1,2]", 2: "[2,3,0,1]", 3: "[1,2,3,0]"}
    def adds(i):
        ops = []
        D = ACC[i % 2]; H = 22 + (i % 2)
        def dpp(op, dst, src, msk, dl):
            ops.append((f"  {op} v{dst}, v{src}, v{msk} quad_perm:{QP[dl]} row_mask:0xf bank_mask:0xf", 'v'))
        for ip in range(4):
            for dl in range(1, 4):
                dpp("v_fmac_f32_dpp", D+4*ip, D+4*ip+dl, MK[dl], dl)
                if ip < 3: dpp("v_fmac_f32_dpp", D+4*ip+4, D+4*ip+dl, NK[dl], dl)
                else: dpp("v_mul_f32_dpp" if dl == 1 else "v_fmac_f32_dpp", H, D+4*ip+dl, NK[dl], dl)
            if ip % 2 == 1:
                ops.append((f"  ds_write2st64_b32 v26, v{D+4*ip-4}, v{D+4*ip} offset0:{4*ip-4} offset1:{4*ip}", 'w'))
        ops.append((f"  ds_write_b32 v27, v{H} offset:{128*i}", 'w'))
        ops.append((f"  v_add_u32 v26, 128, v26", 'v'))
        return ops
    for c in range(8):
        for t, tag in rdA(c): S.add(t, 'lg', tag)
    if diag: S.add("  s_memtime s[34:35]")
    S.add("  s_waitcnt lgkmcnt(0)\n  s_barrier")
    if diag: S.add("  s_memtime s[36:37]\n  s_waitcnt lgkmcnt(0)")
    seq = [(i, c) for i in range(8) for c in range(4*i+4)]
    def rdB(m):
        i, c = seq[m]
        S.add(f"  ds_read_b128 {vr(BRG+4*(m%BR),4)}, v25 offset:{(7+2*(4*i-c))*16}", 'lg', ('B', m))
    for m in range(BR-1): rdB(m)
    m = 0
    for i in range(8):
        fill = []
        if 1 <= i < 7:
            for c in range(4*i+4, 4*i+8): fill += rdA(c)
        if i > 0: fill = fill + adds(i-1)
        n = 4*i+4
        per = min(-(-len(fill)//(n-1)), 4) if i > 1 else -(-len(fill)//n)
        issued = 0
        for c in range(n):
            S.wait(lg=[('A', c), ('B', m)])
            S.add(f"  v_mfma_f32_32x32x16_bf16 {vr(ACC[i%2],16)}, {ar(AF(c),4)}, {vr(BRG+4*(m%BR),4)}, {vr(ACC[i%2],16) if c else 0}")
            issued += 1
            if m+BR-1 < len(seq):
                rdB(m+BR-1); issued += 1
            m += 1
            if (100+m) in MPF: S.add(mpft())
            cnt = 0
            while fill and cnt < per:
                t, tag = fill[0]
                if tag in ('v', 'w') and issued < 13: break
                fill.pop(0); S.add(t, None if tag == 'v' else 'lg', None if tag == 'w' else tag); cnt += 1; issued += 1
        for t, tag in fill: S.add(t, None if tag == 'v' else 'lg', None if tag == 'w' else tag)
    S.add("  s_nop 11")
    for t, tag in adds(7): S.add(t, None if tag == 'v' else 'lg', None)
    emit(a, S.resolve())
    if diag: a("  s_memtime s[38:39]")
    a("  s_waitcnt lgkmcnt(0)\n  s_barrier")
    if diag:
        a("  s_memtime s[50:51]")
        diag_store(a, name, dbg_idx, [30, 32, 88, 34, 36, 38, 50], 24)
    a("  s_endpgm")
    XP, ST, XF, YR = 16, 32, 48, 80
    a(f"""L_{name}_helper:
  v_and_b32 v0, 255, v0
  v_mov_b32 v12, 0
  v_mov_b32 v13, {GRL+64}
  ds_write_b32 v13, v12
  s_sub_u32 s28, s28, 4
  v_lshrrev_b32 v4, 2, v0           ; tb
  v_and_b32 v5, 3, v0               ; rho
  v_lshl_add_u32 v6, v4, 5, v5
  v_lshlrev_b32 v6, 11, v6
  s_lshl_b32 s18, s26, 3
  s_mov_b32 s6, {4<<20}
  s_mov_b32 s7, 0x20000
  s_mov_b32 s22, {NONCE_OFF}
  v_mov_b32 v112, 0
  v_mov_b32 v113, 0
  v_mov_b32 v114, 0
  v_mov_b32 v115, 0
  v_bfe_u32 v14, v0, 3, 4
  v_mul_u32_u24 v14, 1216, v14
  v_and_b32 v15, 7, v0
  v_lshl_add_u32 v14, v15, 4, v14
  ds_write_b128 v14, v[112:115]
  s_waitcnt lgkmcnt(0)
  s_mov_b32 s4, s52
  s_mov_b32 s5, s53
  s_load_dword s70, s[24:25], s22
  s_barrier""")
    a(f"""  s_add_u32 s8, s24, {ST1_OFF}
  s_addc_u32 s9, s25, 0
  s_mov_b32 s10, 16384
  s_mov_b32 s11, 0x20000
  s_lshl_b32 s20, s28, 12
  v_lshl_add_u32 v3, v2, 4, s20""")
    def granloads():
        for i in range(4):
            a(f"  buffer_load_dwordx4 {vr(ST+4*i,4)}, v3, s[8:11], 0 offen offset:{1024*i} sc1")
    setup = f"""  s_add_u32 s84, s24, {ZERO_OFF}
  s_addc_u32 s85, s25, 0
  s_mov_b32 s86, {ZERO_SIZE}
  s_mov_b32 s87, 0x20000
  s_add_u32 s12, s24, {HB_OFF}
  s_addc_u32 s13, s25, 0
  s_mov_b32 s14, {4<<20}
  s_mov_b32 s15, 0x20000
  v_mul_u32_u24 v7, 1216, v5
  v_lshl_add_u32 v7, v4, 4, v7
{csdec}
  v_lshrrev_b32 v12, 4, v2
  v_and_b32 v13, 15, v2
  s_lshl_b32 s20, s28, 8
  s_add_u32 s20, s20, 128
  v_mul_u32_u24 v108, 1216, v12
  v_lshl_add_u32 v108, v13, 4, v108
  v_add_u32 v108, s20, v108
  v_mul_u32_u24 v12, 7168, v12
  v_lshl_add_u32 v110, v13, 4, v12
  v_lshrrev_b32 v12, 2, v2
  v_mul_u32_u24 v109, 1216, v12
  v_lshl_add_u32 v109, v5, 6, v109
  v_add_u32 v109, s20, v109
  s_waitcnt lgkmcnt(0)
  s_add_u32 s70, s70, 1"""
    for e in range(8):
        a(f"  buffer_load_dwordx2 {vr(XP+2*e,2)}, v6, s[4:7], s18 offen {xfl}")
        if e < 7: a(f"  s_add_u32 s18, s18, 8192")
        if e == 1: a(setup)
        if e == GP: granloads()
        if e >= THR and e < 7:
            extra = 4 if e-THR <= GP <= e else 0
            a(f"  s_waitcnt vmcnt({THR+extra})")
            for ch in range(4): unp(XF+8*ch+e-THR, XP+2*(e-THR)+(ch >> 1), ch & 1)
    if diag: a("  s_memtime s[32:33]")
    a(f"""  s_mov_b32 s20, 0
  s_waitcnt vmcnt({7-GP})
L_{name}_poll:
  v_cmp_ne_u32 vcc, s70, v{ST+1}""")
    for i in range(1, 8):
        a(f"  v_cmp_ne_u32 s[22:23], s70, v{ST+2*i+1}\n  s_or_b64 vcc, vcc, s[22:23]")
    a(f"""  s_cbranch_vccz L_{name}_go
  s_add_u32 s20, s20, 1
  s_cmp_gt_u32 s20, 0x100000
  s_cbranch_scc1 L_{name}_go
  s_sleep {sleep}""")
    granloads()
    a(f"""  s_waitcnt vmcnt(0)
  s_branch L_{name}_poll
L_{name}_go:""")
    if diag: a("  s_memtime s[34:35]")
    for p in range(4):
        g0, g1 = ST+4*p, ST+4*p+2
        a(f"""  v_and_b32 v8, 0xffff0000, v{g0}
  v_and_b32 v9, 0xffff0000, v{g1}
  v_lshlrev_b32 v10, 16, v{g0}
  v_lshlrev_b32 v11, 16, v{g1}
  v_rcp_f32 v{g0}, v8
  v_rcp_f32 v{g0+1}, v9
  s_nop 0
  v_pk_mul_f32 {vr(g1,2)}, v[10:11], {vr(g0,2)} neg_lo:[1,0] neg_hi:[1,0]
  ds_write_b128 v108, {vr(g0,4)} offset:{4*1216*p}""")
    for p in range(4):
        a(f"  ds_read_b128 {vr(ST+4*p,4)}, v109 offset:{16*p}")
    a("  s_waitcnt vmcnt(1)")
    for e in range(7-THR, 7):
        for ch in range(4): unp(XF+8*ch+e, XP+2*e+(ch >> 1), ch & 1)
    UP = YR
    for p in range(4):
        if p == 3:
            a("  s_waitcnt vmcnt(0)")
            if diag: a("  s_memtime s[36:37]")
            for ch in range(4): unp(XF+8*ch+7, XP+14+(ch >> 1), ch & 1)
        a(f"  s_waitcnt lgkmcnt({3-p if not diag else 0})")
        for ch in range(4):
            t = 8+2*(ch % 2)
            a(f"  v_pk_fma_f32 {vr(t,2)}, {vr(XF+8*ch+2*p,2)}, {vr(ST+4*p,2)}, {vr(ST+4*p+2,2)}")
            a(f"  v_cvt_pk_bf16_f32 v{UP+4*ch+p}, v{t}, v{t+1}")
            if p == 3: a(f"  ds_write_b128 v7, {vr(UP+4*ch,4)} offset:{ch*USZ+128}")
    a("  s_waitcnt lgkmcnt(0)\n  s_barrier")
    if diag: a("  s_memtime s[38:39]")
    cl = list(range(16))
    def csld():
        n = cl.pop(0)
        a(f"  buffer_load_dwordx4 {ar(4*n,4)}, v110, s[44:47], s92 offen")
        if n < 15: a(f"  s_add_u32 s92, s92, {4*7168}")
    a(f"""  ; clear the hand-off area of the later launches
  s_mul_i32 s20, s2, 320
  v_min_u32 v14, 79, v0
  v_lshlrev_b32 v14, 2, v14
  buffer_store_dword v112, v14, s[84:87], s20 offen""")
    a(f"""  s_cmp_lg_u32 s2, 0
  s_cbranch_scc1 L_{name}_noep
  v_mov_b32 v8, {NONCE_OFF}
  v_mov_b32 v9, s70
  global_store_dword v8, v9, s[24:25]
L_{name}_noep:
  v_lshlrev_b32 v7, 2, v0
  v_add_u32 v7, {UTOT+YOFF}, v7
  v_add_u32 v8, {REG}, v7
  v_add_u32 v9, {2*REG}, v7
  v_add_u32 v10, {3*REG}, v7
  s_lshl_b32 s20, s28, 13
  v_lshl_add_u32 v11, v2, 4, s20
  s_and_b32 s20, s26, 1
  s_lshl_b32 s20, s20, 3
  v_add_u32 v11, s20, v11
  s_lshr_b32 s20, s26, 1
  s_lshl_b32 s20, s20, 15
  s_add_u32 s21, s20, 4096
  v_and_b32 v12, 15, v2
  v_and_b32 v13, 1, v2
  v_lshlrev_b32 v13, 4, v13
  v_mov_b32 v14, 0x3f80
  v_lshlrev_b32 v13, v13, v14
  v_lshrrev_b32 v14, 1, v12""")
    for q in range(4):
        a(f"  v_cmp_eq_u32 vcc, {q}, v14\n  s_nop 1\n  v_cndmask_b32 v{116+q}, 0, v13, vcc")
    a(f"""  v_lshlrev_b32 v12, 5, v12
  v_lshrrev_b32 v13, 4, v2
  v_and_b32 v14, 1, v13
  v_lshl_add_u32 v12, v14, 4, v12
  v_lshrrev_b32 v13, 1, v13
  v_lshl_add_u32 v12, v13, 9, v12
  s_mul_i32 s19, s28, {REG}
  s_add_u32 s19, s19, {UTOT+CSOFF}
  v_add_u32 v124, s19, v12
  s_add_u32 s84, s24, {CS_OFF}
  s_addc_u32 s85, s25, 0
  s_cmp_lt_u32 s2, 224
  s_cselect_b32 s86, {4*7168*4}, 0
  s_mov_b32 s87, 0x20000
  v_and_b32 v125, 127, v0
  v_lshlrev_b32 v125, 2, v125
  v_add_u32 v126, {UTOT+CSOFF}, v125
  v_add_u32 v3, {2*REG}, v126""")
    while cl: csld()
    if WL2:
        a(f"""  s_cmp_ge_u32 s28, 2
  s_cselect_b32 s76, s74, s72
  s_cselect_b32 s77, s75, s73
  s_lshr_b32 s22, s2, 3
  s_lshl_b32 s22, s22, 1
  s_and_b32 s23, s28, 1
  s_add_u32 s22, s22, s23
  s_mul_i32 s22, s22, {WL2*7168}
  s_bfe_u32 s23, s2, 0x20001
  s_mul_i32 s23, s23, 1792
  s_add_u32 s22, s22, s23
  v_min_u32 v12, {14*WL2-1}, v2
  v_mul_u32_u24 v13, 4682, v12
  v_lshrrev_b32 v13, 16, v13
  v_mul_u32_u24 v14, 14, v13
  v_sub_u32 v12, v12, v14
  v_mul_u32_u24 v13, 7168, v13
  v_lshl_add_u32 v12, v12, 7, v13
  v_add_u32 v12, s22, v12
  global_load_dword v127, v12, s[76:77]""")
    a("  v_lshlrev_b32 v12, 6, v0")
    for lab in pfnext:
        a(f"""  s_getpc_b64 s[76:77]
L_{name}_pc_{lab}:
  s_add_u32 s76, s76, {lab}-L_{name}_pc_{lab}
  s_addc_u32 s77, s77, 0
  global_load_dword v127, v12, s[76:77]""")
    if diag: a("  s_memtime s[88:89]")
    a(f"  s_waitcnt vmcnt({(1 if WL2 else 0) + len(pfnext)})")
    for n in range(16):
        a(f"  v_mfma_f32_16x16x32_bf16 v[120:123], v[116:119], {ar(4*n,4)}, {'v[120:123]' if n else 0}")
    a(f"""  s_nop 7
  ds_write_b128 v124, v[120:123]
  s_waitcnt lgkmcnt(0)
  s_barrier""")
    AD = [7, 8, 9, 10]
    for ch in range(4):
        a(f"  ds_read_b32 v{16+2*ch}, v{AD[ch]} offset:8192")
        a(f"  ds_read_b32 v{17+2*ch}, v{AD[ch]} offset:{8192+1040}")
    for p in range(4):
        for ch in range(4):
            a(f"  ds_read2st64_b32 {vr(YR+8*ch+2*p,2)}, v{AD[ch]} offset0:{8*p} offset1:{8*p+4}")
        if p == 0:
            a("  s_waitcnt lgkmcnt(4)")
            for ch in range(4):
                a(f"  v_add_f32 v{XF+8*ch}, v{XF+8*ch}, v{16+2*ch}\n  v_add_f32 v{XF+8*ch+4}, v{XF+8*ch+4}, v{17+2*ch}")
    for p in range(4):
        a(f"  s_waitcnt lgkmcnt({12-4*p})")
        for ch in range(4):
            a(f"  v_pk_add_f32 {vr(YR+8*ch+2*p,2)}, {vr(YR+8*ch+2*p,2)}, {vr(XF+8*ch+2*p,2)}")
        for k in range(2):
            e = 2*p+k; t = 24+2*(e % 4)
            a(f"""  v_cvt_pk_bf16_f32 v{t}, v{YR+e}, v{YR+8+e}
  v_cvt_pk_bf16_f32 v{t+1}, v{YR+16+e}, v{YR+24+e}
  buffer_store_dwordx2 {vr(t,2)}, v11, s[12:15], s{20+e//4} offen offset:{1024*(e%4)}""")
    if diag: a("  s_memtime s[90:91]")
    a(f"""  ds_read_b32 v14, v126
  ds_read_b32 v15, v126 offset:{REG}
  ds_read_b32 v16, v3
  ds_read_b32 v17, v3 offset:{REG}
  s_waitcnt lgkmcnt(0)
  v_add_f32 v14, v14, v15
  v_add_f32 v16, v16, v17
  v_add_f32 v14, v14, v16
  buffer_store_dword v14, v125, s[84:87], s93 offen""")
    if diag:
        a("  s_waitcnt vmcnt(0)\n  s_memtime s[50:51]\n  v_add_u32 v0, 256, v0")
        diag_store(a, name, dbg_idx, [30, 32, 34, 36, 38, 88, 90, 50], 24)
    a(f"L_{name}_end:\n  s_endpgm")
    return a.text(), kernel_desc(name, 256, 96, 128), f"; @launch kernel={name} grid=(256,1,1) block=(512,1,1) lds={UTOT+4*REG+128}"
```

```python
from asmgen import *
from sched import *
from layout import *
from g1 import diag_store
from ka import ln_pack

def gen_bc2(name="b_kernel", diag=False, dbg_idx=0, AHEAD=3, P=4, sleep=1, xbf=True, outfl='', JA=1, JB=3, LAG=1, RATE=(0,1,1,1), PPOS=0.5, order=0, NSC=4, D0=16, DS=2, fine=True, nostat=False, exp=0, cpf=True):
    a = Asm()
    NT = 7; ROWB = NT*32; MATB = 64*ROWB; SLOT = 2*MATB; NF = 2*NT
    RING = AHEAD+1
    ACC = 32
    def acc(j, m, n): return ACC + ((j*2+m)*4+n)*4
    AF = 0
    XR = 4*RING
    def xreg(st2, ks, n): return XR + ((st2*2+ks)*4+n)*4
    SA = XR + 64
    DUMMY = SA + 16
    CXR = DUMMY + 4
    nagpr = CXR + 16*P
    CPF = 14
    CSL = 131072
    RED = CSL + 1024
    a(kernel_head(name))
    a(f"""  s_cmp_ge_u32 s2, 256
  s_cbranch_scc1 L_{name}_end""")
    if diag: a("  s_memrealtime s[40:41]\n  s_memtime s[30:31]")
    a(f"""  s_load_dwordx8 s[88:95], s[0:1], 80
  s_load_dwordx2 s[24:25], s[0:1], 120
  v_lshrrev_b32 v10, 6, v0
  v_and_b32 v11, 63, v0
  s_and_b32 s26, s2, 7
  s_lshr_b32 s27, s2, 3
  v_readfirstlane_b32 s28, v10
  s_and_b32 s3, s26, 1
  s_lshl_b32 s3, s3, 2
  s_and_b32 s29, s27, 3
  s_add_u32 s3, s3, s29             ; tt
  s_lshr_b32 s26, s26, 1
  s_lshl_b32 s26, s26, 3
  s_lshr_b32 s27, s27, 2
  s_add_u32 s26, s26, s27           ; ft
  s_lshl_b32 s52, s3, 1
  s_lshr_b32 s29, s26, 4
  s_add_u32 s52, s52, s29
  s_lshl_b32 s52, s52, 7
  s_lshl_b32 s3, s3, 8              ; t0
  s_lshl_b32 s54, s26, 3
  s_add_u32 s54, s54, s3
  s_lshl_b32 s29, s28, 6
  s_add_u32 s3, s3, s29             ; t0 + 64 w
  s_and_b32 s29, s28, 1
  s_lshl_b32 s29, s29, 5            ; 32*hf
  s_movk_i32 s19, 4682
  s_movk_i32 s18, 7168""")
    for n in range(NT):
        a(f"""  v_add_u32 v12, {64*n}, v11
  v_mul_u32_u24 v13, s19, v12
  v_lshrrev_b32 v13, 16, v13        ; pos_local
  v_mul_u32_u24 v14, 14, v13
  v_sub_u32 v12, v12, v14           ; part
  v_and_b32 v14, 4, v13
  v_and_b32 v15, 8, v13
  v_and_b32 v13, 0x13, v13
  v_lshl_or_b32 v13, v14, 1, v13
  v_lshrrev_b32 v15, 1, v15
  v_or3_b32 v13, v13, v15, s29      ; row
  v_mul_u32_u24 v13, s18, v13
  v_lshl_add_u32 v{1+n}, v12, 4, v13""")
    a(f"""  v_lshrrev_b32 v12, 4, v11         ; g
  v_and_b32 v13, 15, v11
  v_add_u32 v13, s3, v13            ; position
  v_lshlrev_b32 v14, 11, v12
  v_add_lshl_u32 v8, v14, v13, 4    ; X voffset
  s_mul_i32 s18, s28, {MATB//2}
  s_add_u32 s18, s18, {2*SLOT}
  s_mov_b32 s16, 0                  ; W soffset
  s_mov_b32 s17, 0                  ; X soffset
  s_mov_b32 s7, 0x20000
  s_mov_b32 s10, {4<<20}
  s_mov_b32 s11, 0x20000
  s_mul_i32 s27, s26, {ROWB}
  s_sub_u32 s6, {1024*7168}, s27
  s_cmp_ge_u32 s28, 2
  s_waitcnt lgkmcnt(0)
  s_cselect_b32 s4, s90, s88
  s_cselect_b32 s5, s91, s89
  s_add_u32 s4, s4, s27
  s_addc_u32 s5, s5, 0
  s_add_u32 s8, s24, {HB_OFF}
  s_addc_u32 s9, s25, 0""")
    if diag: a("  s_memtime s[74:75]")
    S = Stream()
    NST = 16
    pend = []
    def dma(st, n):
        S.add(f"  s_add_u32 m0, s18, {(st%2)*SLOT + n*1024}")
        pend.append((f"  buffer_load_dwordx4 v{1+n}, s[4:7], s16 offen lds", ('W', st, n)))
    def xload(st, ks, n):
        S.add(f"  buffer_load_dwordx4 {ar(xreg(st%2,ks,n),4)}, v8, s[8:11], s17 offen offset:{256*n}", 'vm', ('X', st, ks, n))
        if n == 3: S.add(f"  s_add_u32 s17, s17, {4*32768}")
    def flush_pend():
        while pend:
            t, tag = pend.pop(0)
            S.add(t, 'vm', tag)
            if tag[2] == NT-1:
                S.add(f"  s_add_u32 s16, s16, {64*7168}")
                if tag[1] % 2 == 1:
                    S.add(f"  s_add_u32 s18, s18, s22\n  s_sub_u32 s22, 0, s22")
    def trread(st, f):
        ks, rem = divmod(f, NF); j, m = divmod(rem, 2)
        r = AF + 4*(((st%2)*2*NF + f) % RING)
        for jj in range(2):
            off = (st%2)*SLOT + m*MATB + (32*ks+8*jj)*ROWB + 32*j
            S.add(f"  ds_read_b64_tr_b16 {ar(r+2*jj,2)}, v9 offset:{off}", 'lg', ('A', st, f, jj))
    for n in range(NT):
        dma(0, n); S.add("  s_nop 0"); flush_pend()
    for n in range(4): xload(0, 0, n)
    for n in range(4): xload(0, 1, n)
    S.add(f"""  s_mov_b32 s21, {-2*SLOT}
  s_mov_b32 s22, {-2*SLOT}
  v_lshrrev_b32 v14, 1, v12
  v_and_b32 v15, 1, v12
  v_lshlrev_b32 v16, 11, v14
  v_lshl_add_u32 v16, v15, 4, v16
  v_add_lshl_u32 v10, v16, v13, 4
  v_lshlrev_b32 v14, 4, v14
  v_lshl_add_u32 v14, v15, 2, v14
  v_bfe_u32 v15, v11, 2, 2
  v_add_u32 v14, v14, v15
  v_mul_u32_u24 v14, {ROWB}, v14
  v_and_b32 v15, 3, v11
  v_lshl_add_u32 v9, v15, 3, v14
  v_add_u32 v9, {2*SLOT}, v9
  v_lshlrev_b32 v26, 2, v13
  v_lshlrev_b32 v27, 4, v12
  v_add_u32 v27, {CSL}, v27
  v_lshrrev_b32 v16, 3, v0
  v_and_b32 v17, 7, v0
  v_lshlrev_b32 v16, 15, v16
  v_lshl_add_u32 v16, v17, 4, v16
  v_add_lshl_u32 v21, v17, s54, 2
  v_lshlrev_b32 v17, 3, v17
  v_add_u32 v17, {RED}, v17
  s_lshl_b32 s29, s28, 6
  v_add_u32 v20, s29, v17
  s_lshl_b32 s55, s54, 4
  v_min_u32 v18, 223, v0
  v_cmp_le_u32 vcc, 112, v18
  v_lshlrev_b32 v18, 2, v18
  v_add_u32 v19, {(3584-112)*4}, v18
  s_mul_i32 s59, s26, {112*4}
  v_cndmask_b32 v19, v18, v19, vcc
  v_add_u32 v18, {CSL}, v18
  v_and_b32 v11, 7, v11
  s_mul_i32 s29, s28, 8
  v_add_lshl_u32 v11, v11, s29, 7
  s_mul_i32 s72, s2, {32*128}
  s_add_u32 s60, s24, {CS_OFF}
  s_addc_u32 s61, s25, 0
  s_mov_b32 s62, {4*7168*4}
  s_mov_b32 s63, 0x20000
  s_add_u32 s12, s24, {ACT_OFF}
  s_addc_u32 s13, s25, 0
  s_mov_b32 s14, {ACT_SIZE}
  s_mov_b32 s15, 0x20000
  s_add_u32 s64, s24, {ST2_OFF}
  s_addc_u32 s65, s25, 0
  s_mov_b32 s66, {ZERO_SIZE}
  s_mov_b32 s67, 0x20000
  s_mov_b32 s68, s92
  s_mov_b32 s69, s93
  s_mov_b32 s70, {3584*2048}
  s_mov_b32 s71, 0x20000
  s_getpc_b64 s[56:57]
L_{name}_pc:
  s_add_u32 s56, s56, L_{name}_go-L_{name}_pc
  s_addc_u32 s57, s57, 0
  v_and_b32 v22, 31, v0
  v_lshlrev_b32 v22, 7, v22
  s_lshl_b32 s29, s28, 12
  v_add_u32 v{CPF}, s29, v22
  v_mov_b32 v22, 0
  v_mov_b32 v23, 0
  s_mov_b32 s23, 0x3f803f80
  s_mov_b32 s19, 1""")
    S.wait(vm=('W', 0, NT-1))
    S.add("  s_barrier")
    if diag: S.add("  s_memtime s[32:33]\n  s_waitcnt lgkmcnt(0)")
    for f in range(AHEAD): trread(0, f)
    dpos = [8, 10, 12, NF, NF+8, NF+10, NF+12]
    xpos = [1, 3, 5, 7]
    for st in range(NST-2):
        if st % 2 == 0 and st > 0:
            S.mark(('body', st//2))
            S.add(f"  s_cmp_eq_u32 s19, 1\n  s_cbranch_scc1 L_{name}_fin\nL_{name}_finret:")
        if diag and fine and st == 1: S.add("  s_memtime s[48:49]\n  s_waitcnt lgkmcnt(0)\n  s_mov_b32 s97, s48")
        acts = {}
        def at(f, n, x): acts.setdefault((f, n), []).append(x)
        if st == 0:
            for n in range(NT): at(n, 1, ('d', 1, n))
            for n in range(4):
                at(7+n, 1, ('x', 1, 0, n)); at(NF-3+n, 2, ('x', 1, 1, n)); at(NF+2+n, 1, ('x', 2, 0, n))
            for n in range(NT): at(NF+6+n, 1, ('d', 2, n))
            for n in range(4): at(NF+6+2*n, 3, ('S', n))
        else:
            for n in range(4):
                at(xpos[n], 1, ('x', st+1, 1, n)); at(NF+xpos[n], 1, ('x', st+2, 0, n))
            for n in range(NT): at(dpos[n], 1, ('d', st+2, n))
        if st % 2 == 0 and st > 0: at(NF+2, 2, ('p',))
        if st % 2 == 1 and st > 1 and cpf: at(NF+2, 2, ('q',))
        if st == 1:
            at(NF+2, 2, ('p',))
            for q in range(4): at(2*q, 3, ('C', q))
            ops = []
            for i in range(16):
                ops.append(('w', ('S', i//4)) if i % 4 == 0 else None)
                ops.append(f"  v_accvgpr_read_b32 v{12+(i%2)}, a{SA+i}")
                ops.append(f"  v_dot2c_f32_bf16 v22, s23, v{12+(i%2)}")
                ops.append(f"  v_dot2c_f32_bf16 v23, v{12+(i%2)}, v{12+(i%2)}")
            ops += [('w', ('C', 3)), "  v_add_f32 v28, v28, v29", "  v_add_f32 v30, v30, v31", "  v_add_f32 v28, v28, v30", ('l', "  ds_write_b32 v18, v28"),
                    "  v_add_f32_dpp v22, v22, v22 row_ror:8 row_mask:0xf bank_mask:0xf",
                    "  v_add_f32_dpp v23, v23, v23 row_ror:8 row_mask:0xf bank_mask:0xf"]
            for sw in ["v_permlane16_swap_b32", "v_permlane32_swap_b32"]:
                ops += ["  v_mov_b32 v24, v22", "  v_mov_b32 v25, v23", "  s_nop 0", f"  {sw} v24, v22", f"  {sw} v25, v23",
                        "  v_add_f32 v22, v22, v24", "  v_add_f32 v23, v23, v25"]
            ops += [('l', "  ds_write_b64 v20, v[22:23]")]
            ops = [o for o in ops if o is not None]
            slots = [(f, n) for f in range(6, 2*NF-AHEAD-1) for n in (1, 2, 3, 3)]
            i = 0
            for o in ops:
                at(*slots[i], ('o', o))
                if not (isinstance(o, tuple) and o[0] == 'w'): i += 1
        for f in range(2*NF):
            ks, rem = divmod(f, NF); j, m = divmod(rem, 2)
            fa = f + AHEAD
            ring = AF + 4*(((st%2)*2*NF + f) % RING)
            if fa == 2*NF:
                S.wait(vm=('W', st+1, NT-1), lg=(('R',) if st == 1 else None))
                S.add("  s_barrier")
                if st % 2 == 1:
                    S.add("  v_add_u32 v9, s21, v9\n  s_sub_u32 s21, 0, s21")
            for n in range(4):
                if n == 0:
                    S.wait(lg=('A', st, f, 1), vm=(('X', st, ks, 3) if rem == 0 else None))
                c = acc(j, m, n)
                src = vr(c, 4) if (st or ks) else "0"
                S.add(f"  v_mfma_f32_16x16x32_bf16 {vr(c,4)}, {ar(ring,4)}, {ar(xreg(st%2,ks,n),4)}, {src}")
                if n == 0:
                    if fa < 2*NF: trread(st, fa)
                    else: trread(st+1, fa-2*NF)
                flush_pend()
                for act in acts.get((f, n), []):
                    if act[0] == 'x': xload(act[1], act[2], act[3])
                    elif act[0] == 'd': dma(act[1], act[2])
                    elif act[0] == 'S':
                        S.add(f"  buffer_load_dwordx4 {ar(SA+4*act[1],4)}, v16, s[8:11], s55 offen" if not nostat else "  buffer_load_dwordx4 a[80:83], v8, s[8:11], s17 offen", 'vm', ('S', act[1]))
                        S.add(f"  s_add_u32 s55, s55, {1<<20}")
                    elif act[0] == 'C':
                        S.add(f"  buffer_load_dword v{28+act[1]}, v19, s[60:63], s59 offen", 'vm', ('C', act[1]))
                        S.add(f"  s_add_u32 s59, s59, {7168*4}")
                    elif act[0] == 'q':
                        S.add(f"  global_load_dword a{DUMMY+1}, v{CPF}, s[56:57]", 'vm', ('PQ', st))
                    elif act[0] == 'o':
                        o = act[1]
                        if isinstance(o, tuple):
                            if o[0] == 'w': S.wait(vm=o[1])
                            else: S.add(o[1], 'lg', ('R',))
                        else: S.add(o)
                    else:
                        S.add(f"  buffer_load_dword a{DUMMY}, v11, s[68:71], s72 offen", 'vm', ('P', st))
                        S.add(f"  s_add_u32 s72, s72, {8192*128}")
        assert not pend
        if diag and fine and st == 1: S.add("  s_memtime s[48:49]\n  s_waitcnt lgkmcnt(0)\n  s_mov_b32 s75, s48")
        if st % 2 == 1 and st > 1:
            S.add(f"  s_add_u32 s19, s19, 1\n  s_cmp_lt_u32 s19, {NST//2-1}\n  s_cbranch_scc1 L_{name}_loop")
    S.mark('tail')
    C = S
    CSLOT = 16384; CNST = 28
    if diag: S.add("  s_memtime s[34:35]\n  s_waitcnt lgkmcnt(0)")
    CW = 6
    CX, CH, CO, CE = 24, 25, 26, 27
    CT = 32
    CACC = 96
    RX = 160
    HR = 192
    def cacc(j, n): return CACC + (j*2+n)*4
    cpend = []
    def cxreg(st, ks, n): return CXR + (((st % P)*2+ks)*2+n)*4
    def cdma(st, n):
        C.add(f"  s_add_u32 m0, s18, {(st%P)*CSLOT + n*1024}")
        cpend.append((f"  buffer_load_dwordx4 v{CW+n}, s[4:7], s16 offen lds", ('CW', st, n)))
    def cxload(st, ks, n):
        C.add(f"  buffer_load_dwordx4 {ar(cxreg(st,ks,n),4)}, v{CX}, s[12:15], s17 offen offset:{256*n} sc1", 'vm', ('CX', st, ks, n))
        if n == 1: C.add(f"  s_add_u32 s17, s17, {28*32768 if (2*st+ks) % 8 < 7 else 's58'}")
    def cflush():
        while cpend:
            t, tag = cpend.pop(0)
            C.add(t, 'vm', tag)
            if tag[2] == 3:
                C.add(f"  s_add_u32 s16, s16, {448*2048 if tag[1] % 4 < 3 else 's59'}")
                if tag[1] % P == P-1:
                    C.add(f"  s_xor_b32 s18, s18, {P*CSLOT}")
    def ctr(st, f):
        ks, j = divmod(f, 8)
        r = AF + 4*(f % RING)
        for jj in range(2):
            off = (st%P)*CSLOT + (32*ks+4*jj)*256
            C.add(f"  ds_read_b64_tr_b16 {ar(r+2*jj,2)}, v{CT+j} offset:{off}", 'lg', ('CA', st, f, jj))
    XBW = 4096 if xbf else 8192
    scal = f"""  s_and_b32 s53, s2, 1              ; kh
  s_bfe_u32 s3, s2, 0x20001
  s_lshl_b32 s3, s3, 2
  s_bfe_u32 s29, s2, 0x20003
  s_add_u32 s3, s3, s29             ; tt
  s_lshr_b32 s27, s2, 5             ; ct
  s_and_b32 s56, s3, 14
  s_add_u32 s56, s56, s53
  s_lshl_b32 s56, s56, 7            ; counter this tile waits for
  s_lshl_b32 s3, s3, 7
  s_lshl_b32 s29, s28, 5
  s_add_u32 s3, s3, s29             ; t0 + 32 w
  s_mul_i32 s16, s53, {1792*2048}   ; W soffset
  s_mul_i32 s17, s53, {224*32768}   ; X soffset
  s_lshl_b32 s18, s28, 12
  s_add_u32 s18, s18, {P*CSLOT}     ; LDS dest base of this wave inside a slot
  s_lshl_b32 s29, s27, 8
  s_add_u32 s4, s92, s29
  s_addc_u32 s5, s93, 0
  s_sub_u32 s6, {3584*2048}, s29
  s_mov_b32 s7, 0x20000
  s_lshl_b32 s27, s27, 1
  s_add_u32 s27, s27, s53           ; 64-column block kept by this workgroup
  s_mul_i32 s73, s26, {NT*2*32768}
  s_mov_b32 s58, {(2-196)*32768}
  s_mov_b32 s59, {(16-3*448)*2048}
  s_add_u32 s76, s24, {XB_OFF}
  s_addc_u32 s77, s25, 0
  s_mov_b32 s78, {8<<20}
  s_mov_b32 s79, 0x20000
  s_lshl_b32 s80, s2, 2
  s_add_u32 s80, s80, s28
  s_xor_b32 s81, s80, 4
  s_lshl_b32 s82, s80, 6
  s_add_u32 s82, s82, {FLG_OFF-ZERO_OFF}   ; own flag
  s_lshl_b32 s83, s81, 6
  s_add_u32 s83, s83, {FLG_OFF-ZERO_OFF}   ; partner flag
  s_mul_i32 s80, s80, {XBW}         ; own slab
  s_mul_i32 s81, s81, {XBW}         ; partner slab
  s_add_u32 s52, s52, {CNT_OFF-ZERO_OFF}
  s_add_u32 s56, s56, {CNT_OFF-ZERO_OFF}
  s_lshl_b32 s57, s27, 18
  s_lshl_b32 s27, s27, 7
  s_add_u32 s84, s94, s27
  s_addc_u32 s85, s95, 0
  s_sub_u32 s86, {4<<20}, s27
  s_mov_b32 s87, 0x20000
  s_cmp_eq_u32 s28, 0
  s_cselect_b32 s62, {ZERO_SIZE}, 0
  s_mov_b32 s60, s64
  s_mov_b32 s61, s65
  s_mov_b32 s63, 0x20000""".split("\n")
    cwsetup = f"""  v_and_b32 v2, 63, v0
  v_lshrrev_b32 v3, 4, v2           ; g
  s_mul_i32 s29, s28, 112
  v_add_lshl_u32 v4, v3, s29, 11
  v_and_b32 v5, 1, v3
  v_and_b32 v3, 2, v3
  v_lshl_add_u32 v3, v3, 1, v5      ; q0 + 4 q1
  v_and_b32 v2, 15, v2
  v_xor_b32 v3, v3, v2
  v_lshl_add_u32 v{CW}, v3, 4, v4
  v_add_u32 v{CW+1}, {4*2048}, v{CW}
  v_xor_b32 v{CW+2}, 128, v{CW}
  v_add_u32 v{CW+2}, {8*2048}, v{CW+2}
  v_add_u32 v{CW+3}, {4*2048}, v{CW+2}""".split("\n")
    csetup = f"""  v_and_b32 v60, 63, v0
  v_lshrrev_b32 v61, 4, v60         ; g
  v_and_b32 v56, 1, v61
  v_and_b32 v63, 15, v60
  v_add_u32 v63, s3, v63            ; position
  v_lshrrev_b32 v57, 1, v61
  v_mul_u32_u24 v58, 14, v57
  v_add_lshl_u32 v58, v58, v56, 11
  v_add_lshl_u32 v{CX}, v58, v63, 4
  v_lshlrev_b32 v57, 12, v57
  v_add_lshl_u32 v{CH}, v57, v63, 4
  v_lshl_add_u32 v{CH}, v56, 3, v{CH}
  v_and_b32 v{CO}, 0x603, v63
  v_bfe_u32 v57, v63, 2, 4
  v_lshl_or_b32 v{CO}, v57, 5, v{CO}
  v_bfe_u32 v57, v63, 6, 3
  v_lshl_or_b32 v{CO}, v57, 2, v{CO}
  v_lshlrev_b32 v{CO}, 11, v{CO}
  v_lshl_add_u32 v{CO}, v61, 4, v{CO}
  v_lshlrev_b32 v{CE}, 4, v60
  v_bfe_u32 v57, v60, 2, 2          ; r
  v_lshl_add_u32 v58, v61, 3, v57   ; 8g + r
  v_lshlrev_b32 v58, 8, v58
  v_and_b32 v59, 1, v57
  v_and_b32 v57, 2, v57
  v_lshl_add_u32 v59, v57, 1, v59   ; r0 + 4 r1
  v_xor_b32 v56, s53, v56
  v_lshl_add_u32 v59, v56, 3, v59   ; + 8 (g0 ^ kh)
  v_and_b32 v57, 2, v60
  v_or_b32 v59, v59, v57            ; + 2 c1
  v_lshl_add_u32 v58, v59, 4, v58
  v_and_b32 v57, 1, v60
  v_lshl_add_u32 v{CT}, v57, 3, v58
  v_add_u32 v{CT}, {P*CSLOT}, v{CT}""".split("\n")
    for j in range(1, 8):
        csetup.append(f"  v_xor_b32 v{CT+j}, {16*((j&1)+4*(j>>1))}, v{CT}")
    csetup += ["  v_mov_b32 v60, 0", "  v_mov_b32 v61, 1"]
    def bc(base, n): return vr(base + (n & ~1), 2), n & 1
    pre = [(0, 0, 0), (0, 1, 0), (1, 0, 0)]
    assert AHEAD == 3
    NH = 3 if order == 0 else 2
    seq = [(j, m, 0) for j in range(NH) for m in range(2)] + [(j, m, 1) for j in range(NH) for m in range(2)]
    nfirst = len(seq)
    for j in range(NH): seq += [(j, m, kk) for kk in (2, 3) for m in range(2)]
    for j in range(NH, NT): seq += [(j, m, kk) for kk in range(4) for m in range(2)]
    assert seq[:3] == pre and len(seq) == 56
    def ttr(i):
        j, m, kk = seq[i]
        r = AF + 4*(i % RING)
        for jj in range(2):
            off = (kk >> 1)*SLOT + m*MATB + (32*(kk & 1)+8*jj)*ROWB + 32*j
            S.add(f"  ds_read_b64_tr_b16 {ar(r+2*jj,2)}, v1 offset:{off}", 'lg', ('A', 14, i, jj))
    def epi(j, csG, csU):
        ops = [('lgw', ('CS', j))]
        for n in range(4):
            G = acc(j, 0, n); U = acc(j, 1, n); h = n & 1
            M, x = bc(12, n); K1, _ = bc(16, n); S2, _ = bc(20, n)
            if 4*j+n < NSC:
                for q in range(4): ops.append(f"  v_fmac_f32 v{G+q}, v{csG+q}, v{12+n}")
                for q in range(4): ops.append(f"  v_mul_f32 v{2+q}, v{G+q}, v{16+n}")
                for q in range(4):
                    ops.append(f"  v_exp_f32 v{2+q}, v{2+q}")
                    ops.append(f"  v_fmac_f32 v{U+q}, v{csU+q}, v{12+n}")
                for q in range(4): ops.append(f"  v_fma_f32 v{2+q}, v{2+q}, v{20+n}, v{20+n}")
                for q in range(4):
                    ops.append(f"  v_rcp_f32 v{2+q}, v{2+q}")
                    ops.append(f"  v_mul_f32 v{G+q}, v{G+q}, v{U+q}")
                for q in range(4): ops.append(f"  v_mul_f32 v{G+q}, v{G+q}, v{2+q}")
            else:
                for (R, cs) in ((G, csG), (U, csU)):
                    for q in range(2):
                        ops.append(f"  v_pk_fma_f32 {vr(R+2*q,2)}, {vr(cs+2*q,2)}, {M}, {vr(R+2*q,2)} op_sel:[0,{x},0] op_sel_hi:[1,{x},1]")
                    if R == G:
                        for q in range(2):
                            ops.append(f"  v_pk_mul_f32 {vr(2+2*q,2)}, {vr(G+2*q,2)}, {K1} op_sel:[0,{x}] op_sel_hi:[1,{x}]")
                        for q in range(4): ops.append(f"  v_exp_f32 v{2+q}, v{2+q}")
                for q in range(2):
                    ops.append(f"  v_pk_fma_f32 {vr(2+2*q,2)}, {vr(2+2*q,2)}, {S2}, {S2} op_sel:[0,{x},{x}] op_sel_hi:[1,{x},{x}]")
                for q in range(4): ops.append(f"  v_rcp_f32 v{2+q}, v{2+q}")
                for q in range(2): ops.append(f"  v_pk_mul_f32 {vr(G+2*q,2)}, {vr(G+2*q,2)}, {vr(U+2*q,2)}")
                for q in range(2): ops.append(f"  v_pk_mul_f32 {vr(G+2*q,2)}, {vr(G+2*q,2)}, {vr(2+2*q,2)}")
            if h == 0:
                ops.append(f"  v_cvt_pk_bf16_f32 v{G+3}, v{G+2}, v{G+3}")
                ops.append(f"  v_cvt_pk_bf16_f32 v{G+2}, v{G}, v{G+1}")
            else:
                ops.append(f"  v_cvt_pk_bf16_f32 v{G}, v{G}, v{G+1}")
                ops.append(f"  v_cvt_pk_bf16_f32 v{G+1}, v{G+2}, v{G+3}")
            if n < 2 and j < NT-1:
                ops.append(('lg', f"  ds_read_b128 {vr(U,4)}, v11 offset:{448*n+64*(j+1)}", ('CS', j+1) if n else None))
            if h == 1:
                ops.append(f"  s_nop 1\n  v_permlane16_swap_b32 v{G-2}, v{G}")
                ops.append(f"  v_permlane16_swap_b32 v{G-1}, v{G+1}")
                ops.append(('vm', f"  buffer_store_dwordx4 {vr(G-2,4)}, v10, s[12:15], s73 offen offset:{256*(n-1)} {'' if exp == 1 else 'sc1'}" if exp != 2 else "  s_nop 0", ('ST', j, n)))
        if j < NT-1: ops.append(f"  s_add_u32 s73, s73, {2*32768}")
        if j == 0: ops += csetup
        for JJ, off in ((JA, 0), (JB, 2048)):
            if j == JJ+LAG:
                ops += ([('vmw', ('ST', JJ, 3))] if exp != 3 else []) + ["  s_barrier" if exp != 4 else "  s_nop 0",
                        ('vm', f"  s_mov_b64 exec, 1\n  buffer_atomic_add v61, v60, s[60:63], s52 offen offset:{off} sc1\n  s_mov_b64 exec, -1", None)]
        if j == NT-1:
            ops.insert(1, ('vm', "  s_mov_b64 exec, 1\n  buffer_load_dword v62, v60, s[64:67], s56 offen sc1\n  s_mov_b64 exec, -1", ('PL',)))
            k = int(len(ops)*PPOS)
            while isinstance(ops[k], tuple) or not ops[k].startswith("  v_pk_fma_f32"): k += 1
            chk = [('vmw', ('PL',)), ("  s_memtime s[48:49]\n  s_waitcnt lgkmcnt(0)\n  s_mov_b32 s97, s48\n" if diag and not fine else "") + f"""  v_readfirstlane_b32 s29, v62
  s_cmp_lt_u32 s29, 16
  s_cbranch_scc1 L_{name}_spin1
L_{name}_ret1:""" + ("\n  s_memtime s[48:49]\n  s_waitcnt lgkmcnt(0)\n  s_mov_b32 s75, s48" if diag and not fine else "")]
            xl = [('cx', st, ks, n) for st in range(P) for ks in range(2) for n in range(2) if not (st == P-1 and ks == 1)]
            rest = ops[k:]; ops = ops[:k] + chk
            step = max(1, len(rest)//(len(xl)+1))
            while rest or xl:
                if xl: ops.append(xl.pop(0))
                ops += rest[:step]; rest = rest[step:]
        return ops
    def put(o):
        if isinstance(o, str): S.add(o)
        elif o[0] == 'lg': S.add(o[1], 'lg', o[2])
        elif o[0] == 'vm': S.add(o[1], 'vm', o[2])
        elif o[0] == 'lgw': S.wait(lg=o[1])
        elif o[0] == 'vmw': S.wait(vm=o[1])
        elif o[0] == 'cdma': cdma(o[1], o[2]); S.add("  s_nop 0"); cflush()
        elif o[0] == 'cx': cxload(o[1], o[2], o[3])
    S.add("  v_mov_b32 v1, v9")
    q0 = []
    for n in range(4): q0.append(('x', n))
    for n in range(4): q0.append(('vm', f"  buffer_load_dword v{28+n}, v26, s[64:67], 0 offen offset:{64*n} sc1", ('Q', n)))
    q0 += scal + cwsetup
    q0 += [('vmw', ('Q', 3)), f"""  v_min_u32 v2, v28, v29
  v_min3_u32 v2, v2, v30, v31
  v_cmp_eq_u32 vcc, 0, v2
  s_cbranch_vccnz L_{name}_spin0
L_{name}_ret0:"""]
    for n in range(4):
        q0 += [f"  v_and_b32 v2, 0xffff0000, v{28+n}", f"  v_lshlrev_b32 v{12+n}, 16, v{28+n}", f"  v_rcp_f32 v{16+n}, v2", f"  v_mul_f32 v{20+n}, v2, v2",
               f"  v_xor_b32 v{12+n}, 0x80000000, v{12+n}"]
    q0 += ["  v_mov_b32 v11, v27", ('lg', "  ds_read_b128 v[24:27], v11", None), ('lg', "  ds_read_b128 v[28:31], v11 offset:448", ('CS', 0))]
    q0 += [f"  v_mul_f32 v{16+n}, 0xbfb8aa3b, v{16+n}" for n in range(4)]
    ready = list(q0)
    delayed = []
    cs = (24, 28); started = [False]
    early = [(st, n) for st in range(P) for n in range(4)]
    left = {j: 8 for j in range(NT)}
    for i, (j, m, kk) in enumerate(seq):
        if i + AHEAD == nfirst:
            S.wait(vm=('W', 15, NT-1))
            S.add("  s_barrier")
        for n in range(4):
            if n == 0:
                S.wait(lg=('A', 14, i, 1), vm=('X', 14 + (kk >> 1), kk & 1, 3))
            c = acc(j, m, n)
            S.add(f"  v_mfma_f32_16x16x32_bf16 {vr(c,4)}, {ar(AF+4*(i%RING),4)}, {ar(xreg(kk>>1,kk&1,n),4)}, {vr(c,4)}")
            if n == 0 and i + AHEAD < 56: ttr(i + AHEAD)
            cflush()
            if n == 2 and i >= D0 and (i - D0) % DS == 0 and early: cdma(*early.pop(0))
            for d in delayed: d[0] -= 1
            while delayed and delayed[0][0] <= 0:
                ready += delayed.pop(0)[1]; started[0] = True
            k = 0
            kmax = (RATE[n] if isinstance(RATE, tuple) else (RATE if n else RATE-1)) if started[0] else (2 if n in (1, 2) or i == 0 else 1)
            while ready and k < kmax:
                if isinstance(ready[0], str) and 'v_pk_' in ready[0]: break
                o = ready.pop(0)
                if isinstance(o, tuple) and o[0] == 'x': xload(15, 1, o[1])
                else: put(o)
                if not (isinstance(o, tuple) and o[0] in ('lgw', 'vmw')): k += 1
        left[j] -= 1
        if left[j] == 0:
            delayed.append([8, epi(j, *cs)])
            cs = (acc(j, 1, 0), acc(j, 1, 1))
    if diag: S.add("  s_memtime s[36:37]\n  s_waitcnt lgkmcnt(0)")
    assert not early and not cpend
    S.add("  s_nop 7")
    for d in delayed: ready += d[1]
    for o in ready: put(o)
    if diag: S.add("  s_memtime s[38:39]\n  s_waitcnt lgkmcnt(0)")
    S.wait(vm=('CW', 0, 3))
    S.add("  s_barrier")
    for f in range(AHEAD): ctr(0, f)
    for r in range(CACC, CACC+64): C.add(f"  v_mov_b32 v{r}, 0")
    if JA == 1:
        C.add("  s_mov_b64 exec, 1\n  buffer_load_dword v62, v60, s[64:67], s56 offen offset:2048 sc1\n  s_mov_b64 exec, -1", 'vm', None)
    C.add("  s_mov_b32 s19, 0")
    if diag: S.add("  s_memtime s[48:49]\n  s_waitcnt lgkmcnt(0)\n  s_mov_b32 s96, s48")
    for st in range(CNST):
        if st % P == 0:
            C.mark(('cbody', st//P))
            C.add(f"""  s_cmp_lg_u32 s19, 0
  s_cbranch_scc1 L_{name}_hook
L_{name}_ret2:""")
        acts = {}
        for ks in range(2):
            s2, k2 = (st+P-1, 1) if ks == 0 else (st+P, 0)
            acts.setdefault((8*ks+0, 1), []).append(('x', s2, k2, 0))
            acts.setdefault((8*ks+2, 1), []).append(('x', s2, k2, 1))
            acts.setdefault((8*ks+4, 0), []).append(('d', st+P, 2*ks))
            acts.setdefault((8*ks+6, 0), []).append(('d', st+P, 2*ks+1))
        for f in range(16):
            ks, j = divmod(f, 8)
            fa = f + AHEAD
            ring = AF + 4*(f % RING)
            if fa == 16:
                C.wait(vm=('CW', st+1, 3))
                C.add("  s_barrier")
                if st % P == P-1:
                    for q in range(8): C.add(f"  v_xor_b32 v{CT+q}, {P*CSLOT}, v{CT+q}")
            for n in range(2):
                if n == 0:
                    C.wait(lg=('CA', st, f, 1), vm=(('CX', st, ks, 1) if j == 0 else None))
                c = cacc(j, n)
                C.add(f"  v_mfma_f32_16x16x32_bf16 {vr(c,4)}, {ar(ring,4)}, {ar(cxreg(st,ks,n),4)}, {vr(c,4)}")
                if n == 0:
                    if fa < 16: ctr(st, fa)
                    else: ctr(st+1, fa-16)
                cflush()
                for act in acts.get((f, n), []):
                    if act[0] == 'x': cxload(act[1], act[2], act[3])
                    else: cdma(act[1], act[2])
        assert not cpend
        if st % P == P-1:
            C.add(f"  s_add_u32 s19, s19, 1\n  s_cmp_lt_u32 s19, {CNST//P}\n  s_cbranch_scc1 L_{name}_cloop")
    C.mark('end')
    segs = split_marks(C.resolve())
    emit(a, segs[0][1])
    a("  .p2align 6")
    a(f"L_{name}_loop:")
    emit(a, merge_iters([s[1] for s in segs if s[0] and s[0][0] == 'body']))
    a(f"L_{name}_go:")
    emit(a, [s[1] for s in segs if s[0] == 'tail'][0])
    a("  .p2align 6")
    a(f"L_{name}_cloop:")
    emit(a, merge_iters([s[1] for s in segs if s[0] and s[0][0] == 'cbody']))
    if diag: a("  s_memtime s[50:51]")
    SND = cacc(4, 0)
    if xbf:
        a("  s_nop 7")
        for q in range(4):
            for k in range(4): a(f"  v_cvt_pk_bf16_f32 v{SND+4*q+k}, v{SND+8*q+2*k}, v{SND+8*q+2*k+1}")
            a(f"  buffer_store_dwordx4 {vr(SND+4*q,4)}, v{CE}, s[76:79], s80 offen offset:{1024*q} sc1")
        nx = 4
    else:
        a("  s_add_u32 s58, s80, 4096\n  s_add_u32 s59, s81, 4096\n  s_nop 5")
        for q in range(8):
            a(f"  buffer_store_dwordx4 {vr(SND+4*q,4)}, v{CE}, s[76:79], s{80 if q < 4 else 58} offen offset:{1024*(q%4)} sc1")
        nx = 8
    UB = [0, 1, 4, 5]
    for j in range(4):
        a(f"  s_add_u32 s29, s57, {UB[j]*32768}")
        for n in range(2):
            a(f"  buffer_load_dwordx2 {vr(HR+2*(2*j+n),2)}, v{CH}, s[8:11], s29 offen offset:{256*n}")
    a(f"""  s_waitcnt vmcnt(8) lgkmcnt(0)
  s_mov_b64 exec, 1
  buffer_store_dword v61, v60, s[64:67], s82 offen sc1
  buffer_load_dword v12, v60, s[64:67], s83 offen sc1
  s_mov_b64 exec, -1
  s_waitcnt vmcnt(2)""")
    for q in range(8):
        c = CACC+4*q; h = HR+2*q
        a(f"""  v_lshlrev_b32 v14, 16, v{h}
  v_and_b32 v15, 0xffff0000, v{h}
  v_lshlrev_b32 v16, 16, v{h+1}
  v_and_b32 v17, 0xffff0000, v{h+1}
  v_pk_add_f32 {vr(c,2)}, {vr(c,2)}, v[14:15]
  v_pk_add_f32 {vr(c+2,2)}, {vr(c+2,2)}, v[16:17]""")
    a(f"""  s_mov_b32 s20, 0
  s_mov_b64 exec, 1
L_{name}_poll3:
  s_waitcnt vmcnt(0)
  v_cmp_eq_u32 vcc, 0, v12
  s_cbranch_vccz L_{name}_go3
  s_add_u32 s20, s20, 1
  s_cmp_gt_u32 s20, 0x100000
  s_cbranch_scc1 L_{name}_go3
  s_sleep {sleep}
  buffer_load_dword v12, v60, s[64:67], s83 offen sc1
  s_branch L_{name}_poll3
L_{name}_go3:
  s_mov_b64 exec, -1""")
    if diag: a("  s_memtime s[98:99]")
    for q in range(nx):
        so = 81 if (xbf or q < 4) else 59
        a(f"  buffer_load_dwordx4 {vr(RX+4*q,4)}, v{CE}, s[76:79], s{so} offen offset:{1024*(q%4)} sc1")
    for jp in range(2):
        a(f"  s_waitcnt vmcnt({(nx//2)*(1-jp)+2*jp})")
        for q in range(4*jp, 4*jp+4):
            c = CACC+4*q
            if xbf:
                r = RX+2*q
                a(f"""  v_lshlrev_b32 v14, 16, v{r}
  v_and_b32 v15, 0xffff0000, v{r}
  v_lshlrev_b32 v16, 16, v{r+1}
  v_and_b32 v17, 0xffff0000, v{r+1}
  v_pk_add_f32 {vr(c,2)}, {vr(c,2)}, v[14:15]
  v_pk_add_f32 {vr(c+2,2)}, {vr(c+2,2)}, v[16:17]""")
            else:
                for h in range(2):
                    a(f"  v_pk_add_f32 {vr(c+2*h,2)}, {vr(c+2*h,2)}, {vr(RX+4*q+2*h,2)}")
        for n in range(2):
            Pp = 40 + 4*n
            A = cacc(2*jp, n); B = cacc(2*jp+1, n)
            a(f"""  v_cvt_pk_bf16_f32 v{Pp}, v{A}, v{A+1}
  v_cvt_pk_bf16_f32 v{Pp+1}, v{A+2}, v{A+3}
  v_cvt_pk_bf16_f32 v{Pp+2}, v{B}, v{B+1}
  v_cvt_pk_bf16_f32 v{Pp+3}, v{B+2}, v{B+3}
  s_mov_b32 s16, {n*128*2048}
  s_nop 0
  v_permlane16_swap_b32 v{Pp}, v{Pp+2}
  v_permlane16_swap_b32 v{Pp+1}, v{Pp+3}
  buffer_store_dwordx4 {vr(Pp,4)}, v{CO}, s[84:87], s16 offen offset:{64*jp} {outfl}""")
    if diag:
        a("  s_waitcnt vmcnt(0)\n  s_memtime s[100:101]")
        diag_store(a, name, dbg_idx, [30, 32, 97, 75, 34, 36, 38, 96, 50, 98, 100] if fine else [30, 32, 34, 36, 97, 75, 38, 96, 50, 98, 100], 24)
    a(f"L_{name}_end:\n  s_endpgm")
    a(f"L_{name}_fin:")
    for q, r in enumerate((12, 18, 22, 24)): a(f"  ds_read_b64 {vr(r,2)}, v17 offset:{64*q}")
    a("""  s_cmp_eq_u32 s28, 0
  s_cselect_b32 s66, 8192, 0
  s_waitcnt lgkmcnt(0)
  v_add_f32 v12, v12, v18
  v_add_f32 v13, v13, v19
  v_add_f32 v22, v22, v24
  v_add_f32 v23, v23, v25
  v_add_f32 v12, v12, v22
  v_add_f32 v13, v13, v23""")
    ln_pack(a, 12, 13, 18, 15)
    a(f"""  s_mov_b64 exec, 0xff
  buffer_store_dword v18, v21, s[64:67], 0 offen sc1
  s_mov_b64 exec, -1
  s_mov_b32 s66, {ZERO_SIZE}
  s_branch L_{name}_finret""")
    a(f"L_{name}_spin0:\n  s_mov_b32 s20, 0\nL_{name}_spin0l:\n  s_sleep 2")
    for n in range(4): a(f"  buffer_load_dword v{28+n}, v26, s[64:67], 0 offen offset:{64*n} sc1")
    a(f"""  s_waitcnt vmcnt(0)
  v_min_u32 v2, v28, v29
  v_min3_u32 v2, v2, v30, v31
  v_cmp_eq_u32 vcc, 0, v2
  s_cbranch_vccz L_{name}_ret0
  s_add_u32 s20, s20, 1
  s_cmp_gt_u32 s20, 0x100000
  s_cbranch_scc0 L_{name}_spin0l
  s_branch L_{name}_ret0""")
    for tagn, so, off, ret in ((1, 56, 0, 1), (2, 56, 2048, 2), (3, 55, 0, 2)):
        a(f"""L_{name}_spin{tagn}:
  s_mov_b32 s20, 0
  s_mov_b64 exec, 1
L_{name}_spin{tagn}l:
  buffer_load_dword v62, v60, s[64:67], s{so} offen offset:{off} sc1
  s_waitcnt vmcnt(0)
  v_readfirstlane_b32 s29, v62
  s_cmp_ge_u32 s29, 16
  s_cbranch_scc1 L_{name}_spin{tagn}x
  s_sleep {sleep}
  s_add_u32 s20, s20, 1
  s_cmp_gt_u32 s20, 0x100000
  s_cbranch_scc0 L_{name}_spin{tagn}l
L_{name}_spin{tagn}x:
  s_mov_b64 exec, -1
  s_branch L_{name}_ret{ret}""")
    assert JA in (1, 2) and JB >= JA+2 and JB >= 3
    NV = 8*P - 1
    a(f"""L_{name}_hook:
  s_cmp_eq_u32 s19, {CNST//P-2}
  s_cselect_b32 s59, 0x40000000, s59
  s_cmp_eq_u32 s19, {CNST//P-1}
  s_cselect_b32 s58, 0x40000000, s58
  s_cmp_lg_u32 s19, 1
  s_cbranch_scc1 L_{name}_h1
  s_add_u32 s54, s52, 4096
  s_add_u32 s55, s56, 4096
  s_mov_b64 exec, 1
  buffer_atomic_add v61, v60, s[60:63], s54 offen sc1
  s_mov_b64 exec, -1
L_{name}_h1:""")
    if JA >= 2:
        a(f"""  s_cmp_lg_u32 s19, {JA-1}
  s_cbranch_scc1 L_{name}_h2
  s_mov_b64 exec, 1
  buffer_load_dword v62, v60, s[64:67], s56 offen offset:2048 sc1
  s_mov_b64 exec, -1
L_{name}_h2:""")
    a(f"""  s_cmp_lg_u32 s19, {JA}
  s_cbranch_scc1 L_{name}_h3
  s_waitcnt vmcnt({NV})
  v_readfirstlane_b32 s29, v62
  s_cmp_lt_u32 s29, 16
  s_cbranch_scc1 L_{name}_spin2
L_{name}_h3:
  s_cmp_lg_u32 s19, {JB-1}
  s_cbranch_scc1 L_{name}_h4
  s_mov_b64 exec, 1
  buffer_load_dword v62, v60, s[64:67], s55 offen sc1
  s_mov_b64 exec, -1
L_{name}_h4:
  s_cmp_lg_u32 s19, {JB}
  s_cbranch_scc1 L_{name}_ret2
  s_waitcnt vmcnt({NV})
  v_readfirstlane_b32 s29, v62
  s_cmp_lt_u32 s29, 16
  s_cbranch_scc1 L_{name}_spin3
  s_branch L_{name}_ret2""")
    desc = kernel_desc(name, 256+nagpr, 102, 256)
    return a.text(), desc, f"; @launch kernel={name} grid=(256,1,1) block=(256,1,1) lds={RED+256}"
```

```python
from asmgen import *
from sched import *
from layout import *
from g1 import diag_store
from ka import ln_pack

def gen_bc3(name="b_kernel", diag=False, dbg_idx=0, AHEAD=3, P=2, sleep=1, xbf=True, outfl='', JA=1, JB=3, LAG=2, RATE=(0,1,1,1), PPOS=0.5, order=0, NSC=4, D0=16, DS=4, fine=True, nostat=False, exp=0, cpf=False):
    a = Asm()
    NT = 7; ROWB = NT*32; MATB = 64*ROWB; SLOT = 2*MATB; NF = 2*NT
    RING = AHEAD+1
    ACC = 32
    def acc(j, m, n): return ACC + ((j*2+m)*4+n)*4
    AF = 0
    XR = 4*RING
    def xreg(st2, ks, n): return XR + ((st2*2+ks)*4+n)*4
    SA = XR + 64
    DUMMY = SA + 16
    CXR = DUMMY + 4
    HA = CXR + 64
    RA = HA + 16
    nagpr = RA + 48
    CPF = 14
    CSL = 131072
    RED = CSL + 1024
    a(kernel_head(name))
    a(f"""  s_cmp_ge_u32 s2, 256
  s_cbranch_scc1 L_{name}_end""")
    if diag: a("  s_memrealtime s[40:41]\n  s_memtime s[30:31]")
    a(f"""  s_load_dwordx8 s[88:95], s[0:1], 80
  s_load_dwordx2 s[24:25], s[0:1], 120
  v_lshrrev_b32 v10, 6, v0
  v_and_b32 v11, 63, v0
  s_and_b32 s26, s2, 7
  s_lshr_b32 s27, s2, 3
  v_readfirstlane_b32 s28, v10
  s_and_b32 s3, s26, 1
  s_lshl_b32 s3, s3, 2
  s_and_b32 s29, s27, 3
  s_add_u32 s3, s3, s29             ; tt
  s_lshr_b32 s26, s26, 1
  s_lshl_b32 s26, s26, 3
  s_lshr_b32 s27, s27, 2
  s_add_u32 s26, s26, s27           ; ft
  s_lshl_b32 s52, s3, 2
  s_lshr_b32 s29, s26, 3
  s_add_u32 s52, s52, s29
  s_lshl_b32 s52, s52, 6
  s_lshl_b32 s3, s3, 8              ; t0
  s_lshl_b32 s54, s26, 3
  s_add_u32 s54, s54, s3
  s_lshl_b32 s29, s28, 6
  s_add_u32 s3, s3, s29             ; t0 + 64 w
  s_and_b32 s29, s28, 1
  s_lshl_b32 s29, s29, 5            ; 32*hf
  s_movk_i32 s19, 4682
  s_movk_i32 s18, 7168""")
    for n in range(NT):
        a(f"""  v_add_u32 v12, {64*n}, v11
  v_mul_u32_u24 v13, s19, v12
  v_lshrrev_b32 v13, 16, v13        ; pos_local
  v_mul_u32_u24 v14, 14, v13
  v_sub_u32 v12, v12, v14           ; part
  v_and_b32 v14, 4, v13
  v_and_b32 v15, 8, v13
  v_and_b32 v13, 0x13, v13
  v_lshl_or_b32 v13, v14, 1, v13
  v_lshrrev_b32 v15, 1, v15
  v_or3_b32 v13, v13, v15, s29      ; row
  v_mul_u32_u24 v13, s18, v13
  v_lshl_add_u32 v{1+n}, v12, 4, v13""")
    a(f"""  v_lshrrev_b32 v12, 4, v11         ; g
  v_and_b32 v13, 15, v11
  v_add_u32 v13, s3, v13            ; position
  v_lshlrev_b32 v14, 11, v12
  v_add_lshl_u32 v8, v14, v13, 4    ; X voffset
  s_mul_i32 s18, s28, {MATB//2}
  s_add_u32 s18, s18, {2*SLOT}
  s_mov_b32 s16, 0                  ; W soffset
  s_mov_b32 s17, 0                  ; X soffset
  s_mov_b32 s7, 0x20000
  s_mov_b32 s10, {4<<20}
  s_mov_b32 s11, 0x20000
  s_mul_i32 s27, s26, {ROWB}
  s_sub_u32 s6, {1024*7168}, s27
  s_cmp_ge_u32 s28, 2
  s_waitcnt lgkmcnt(0)
  s_cselect_b32 s4, s90, s88
  s_cselect_b32 s5, s91, s89
  s_add_u32 s4, s4, s27
  s_addc_u32 s5, s5, 0
  s_add_u32 s8, s24, {HB_OFF}
  s_addc_u32 s9, s25, 0""")
    if diag: a("  s_memtime s[74:75]")
    S = Stream()
    NST = 16
    pend = []
    def dma(st, n):
        S.add(f"  s_add_u32 m0, s18, {(st%2)*SLOT + n*1024}")
        pend.append((f"  buffer_load_dwordx4 v{1+n}, s[4:7], s16 offen lds", ('W', st, n)))
    def xload(st, ks, n):
        S.add(f"  buffer_load_dwordx4 {ar(xreg(st%2,ks,n),4)}, v8, s[8:11], s17 offen offset:{256*n}", 'vm', ('X', st, ks, n))
        if n == 3: S.add(f"  s_add_u32 s17, s17, {4*32768}")
    def flush_pend():
        while pend:
            t, tag = pend.pop(0)
            S.add(t, 'vm', tag)
            if tag[2] == NT-1:
                S.add(f"  s_add_u32 s16, s16, {64*7168}")
                if tag[1] % 2 == 1:
                    S.add(f"  s_add_u32 s18, s18, s22\n  s_sub_u32 s22, 0, s22")
    def trread(st, f):
        ks, rem = divmod(f, NF); j, m = divmod(rem, 2)
        r = AF + 4*(((st%2)*2*NF + f) % RING)
        for jj in range(2):
            off = (st%2)*SLOT + m*MATB + (32*ks+8*jj)*ROWB + 32*j
            S.add(f"  ds_read_b64_tr_b16 {ar(r+2*jj,2)}, v9 offset:{off}", 'lg', ('A', st, f, jj))
    for n in range(NT):
        dma(0, n); S.add("  s_nop 0"); flush_pend()
    for n in range(4): xload(0, 0, n)
    for n in range(4): xload(0, 1, n)
    S.add(f"""  s_mov_b32 s21, {-2*SLOT}
  s_mov_b32 s22, {-2*SLOT}
  v_lshrrev_b32 v14, 1, v12
  v_and_b32 v15, 1, v12
  v_lshlrev_b32 v16, 11, v14
  v_lshl_add_u32 v16, v15, 4, v16
  v_add_lshl_u32 v10, v16, v13, 4
  v_lshlrev_b32 v14, 4, v14
  v_lshl_add_u32 v14, v15, 2, v14
  v_bfe_u32 v15, v11, 2, 2
  v_add_u32 v14, v14, v15
  v_mul_u32_u24 v14, {ROWB}, v14
  v_and_b32 v15, 3, v11
  v_lshl_add_u32 v9, v15, 3, v14
  v_add_u32 v9, {2*SLOT}, v9
  v_lshlrev_b32 v26, 2, v13
  v_lshlrev_b32 v27, 4, v12
  v_add_u32 v27, {CSL}, v27
  v_lshrrev_b32 v16, 3, v0
  v_and_b32 v17, 7, v0
  v_lshlrev_b32 v16, 15, v16
  v_lshl_add_u32 v16, v17, 4, v16
  v_add_lshl_u32 v21, v17, s54, 2
  v_lshlrev_b32 v17, 3, v17
  v_add_u32 v17, {RED}, v17
  s_lshl_b32 s29, s28, 6
  v_add_u32 v20, s29, v17
  s_lshl_b32 s55, s54, 4
  v_min_u32 v18, 223, v0
  v_cmp_le_u32 vcc, 112, v18
  v_lshlrev_b32 v18, 2, v18
  v_add_u32 v19, {(3584-112)*4}, v18
  s_mul_i32 s59, s26, {112*4}
  v_cndmask_b32 v19, v18, v19, vcc
  v_add_u32 v18, {CSL}, v18
  v_and_b32 v11, 7, v11
  s_mul_i32 s29, s28, 8
  v_add_lshl_u32 v11, v11, s29, 7
  s_mul_i32 s72, s2, {32*128}
  s_add_u32 s60, s24, {CS_OFF}
  s_addc_u32 s61, s25, 0
  s_mov_b32 s62, {4*7168*4}
  s_mov_b32 s63, 0x20000
  s_add_u32 s12, s24, {ACT_OFF}
  s_addc_u32 s13, s25, 0
  s_mov_b32 s14, {ACT_SIZE}
  s_mov_b32 s15, 0x20000
  s_add_u32 s64, s24, {ST2_OFF}
  s_addc_u32 s65, s25, 0
  s_mov_b32 s66, {ZERO_SIZE}
  s_mov_b32 s67, 0x20000
  s_mov_b32 s68, s92
  s_mov_b32 s69, s93
  s_mov_b32 s70, {3584*2048}
  s_mov_b32 s71, 0x20000
  s_getpc_b64 s[56:57]
L_{name}_pc:
  s_add_u32 s56, s56, L_{name}_go-L_{name}_pc
  s_addc_u32 s57, s57, 0
  v_and_b32 v22, 31, v0
  v_lshlrev_b32 v22, 7, v22
  s_lshl_b32 s29, s28, 12
  v_add_u32 v{CPF}, s29, v22
  v_mov_b32 v22, 0
  v_mov_b32 v23, 0
  s_mov_b32 s23, 0x3f803f80
  s_mov_b32 s19, 1""")
    S.wait(vm=('W', 0, NT-1))
    S.add("  s_barrier")
    if diag: S.add("  s_memtime s[32:33]\n  s_waitcnt lgkmcnt(0)")
    for f in range(AHEAD): trread(0, f)
    dpos = [8, 10, 12, NF, NF+8, NF+10, NF+12]
    xpos = [1, 3, 5, 7]
    for st in range(NST-2):
        if st % 2 == 0 and st > 0:
            S.mark(('body', st//2))
            S.add(f"  s_cmp_eq_u32 s19, 1\n  s_cbranch_scc1 L_{name}_fin\nL_{name}_finret:")
        if diag and fine and st == 1: S.add("  s_memtime s[48:49]\n  s_waitcnt lgkmcnt(0)\n  s_mov_b32 s97, s48")
        acts = {}
        def at(f, n, x): acts.setdefault((f, n), []).append(x)
        if st == 0:
            for n in range(NT): at(n, 1, ('d', 1, n))
            for n in range(4):
                at(7+n, 1, ('x', 1, 0, n)); at(NF-3+n, 2, ('x', 1, 1, n)); at(NF+2+n, 1, ('x', 2, 0, n))
            for n in range(NT): at(NF+6+n, 1, ('d', 2, n))
            for n in range(4): at(NF+6+2*n, 3, ('S', n))
        else:
            for n in range(4):
                at(xpos[n], 1, ('x', st+1, 1, n)); at(NF+xpos[n], 1, ('x', st+2, 0, n))
            for n in range(NT): at(dpos[n], 1, ('d', st+2, n))
        if st % 2 == 0 and st > 0: at(NF+2, 2, ('p',))
        if st % 2 == 1 and st > 1 and cpf: at(NF+2, 2, ('q',))
        if st == 1:
            at(NF+2, 2, ('p',))
            for q in range(4): at(2*q, 3, ('C', q))
            ops = []
            for i in range(16):
                ops.append(('w', ('S', i//4)) if i % 4 == 0 else None)
                ops.append(f"  v_accvgpr_read_b32 v{12+(i%2)}, a{SA+i}")
                ops.append(f"  v_dot2c_f32_bf16 v22, s23, v{12+(i%2)}")
                ops.append(f"  v_dot2c_f32_bf16 v23, v{12+(i%2)}, v{12+(i%2)}")
            ops += [('w', ('C', 3)), "  v_add_f32 v28, v28, v29", "  v_add_f32 v30, v30, v31", "  v_add_f32 v28, v28, v30", ('l', "  ds_write_b32 v18, v28"),
                    "  v_add_f32_dpp v22, v22, v22 row_ror:8 row_mask:0xf bank_mask:0xf",
                    "  v_add_f32_dpp v23, v23, v23 row_ror:8 row_mask:0xf bank_mask:0xf"]
            for sw in ["v_permlane16_swap_b32", "v_permlane32_swap_b32"]:
                ops += ["  v_mov_b32 v24, v22", "  v_mov_b32 v25, v23", "  s_nop 0", f"  {sw} v24, v22", f"  {sw} v25, v23",
                        "  v_add_f32 v22, v22, v24", "  v_add_f32 v23, v23, v25"]
            ops += [('l', "  ds_write_b64 v20, v[22:23]")]
            ops = [o for o in ops if o is not None]
            slots = [(f, n) for f in range(6, 2*NF-AHEAD-1) for n in (1, 2, 3, 3)]
            i = 0
            for o in ops:
                at(*slots[i], ('o', o))
                if not (isinstance(o, tuple) and o[0] == 'w'): i += 1
        for f in range(2*NF):
            ks, rem = divmod(f, NF); j, m = divmod(rem, 2)
            fa = f + AHEAD
            ring = AF + 4*(((st%2)*2*NF + f) % RING)
            if fa == 2*NF:
                S.wait(vm=('W', st+1, NT-1), lg=(('R',) if st == 1 else None))
                S.add("  s_barrier")
                if st % 2 == 1:
                    S.add("  v_add_u32 v9, s21, v9\n  s_sub_u32 s21, 0, s21")
            for n in range(4):
                if n == 0:
                    S.wait(lg=('A', st, f, 1), vm=(('X', st, ks, 3) if rem == 0 else None))
                c = acc(j, m, n)
                src = vr(c, 4) if (st or ks) else "0"
                S.add(f"  v_mfma_f32_16x16x32_bf16 {vr(c,4)}, {ar(ring,4)}, {ar(xreg(st%2,ks,n),4)}, {src}")
                if n == 0:
                    if fa < 2*NF: trread(st, fa)
                    else: trread(st+1, fa-2*NF)
                flush_pend()
                for act in acts.get((f, n), []):
                    if act[0] == 'x': xload(act[1], act[2], act[3])
                    elif act[0] == 'd': dma(act[1], act[2])
                    elif act[0] == 'S':
                        S.add(f"  buffer_load_dwordx4 {ar(SA+4*act[1],4)}, v16, s[8:11], s55 offen" if not nostat else "  buffer_load_dwordx4 a[80:83], v8, s[8:11], s17 offen", 'vm', ('S', act[1]))
                        S.add(f"  s_add_u32 s55, s55, {1<<20}")
                    elif act[0] == 'C':
                        S.add(f"  buffer_load_dword v{28+act[1]}, v19, s[60:63], s59 offen", 'vm', ('C', act[1]))
                        S.add(f"  s_add_u32 s59, s59, {7168*4}")
                    elif act[0] == 'q':
                        S.add(f"  global_load_dword a{DUMMY+1}, v{CPF}, s[56:57]", 'vm', ('PQ', st))
                    elif act[0] == 'o':
                        o = act[1]
                        if isinstance(o, tuple):
                            if o[0] == 'w': S.wait(vm=o[1])
                            else: S.add(o[1], 'lg', ('R',))
                        else: S.add(o)
                    else:
                        S.add(f"  buffer_load_dword a{DUMMY}, v11, s[68:71], s72 offen", 'vm', ('P', st))
                        S.add(f"  s_add_u32 s72, s72, {8192*128}")
        assert not pend
        if diag and fine and st == 1: S.add("  s_memtime s[48:49]\n  s_waitcnt lgkmcnt(0)\n  s_mov_b32 s75, s48")
        if st % 2 == 1 and st > 1:
            S.add(f"  s_add_u32 s19, s19, 1\n  s_cmp_lt_u32 s19, {NST//2-1}\n  s_cbranch_scc1 L_{name}_loop")
    S.mark('tail')
    C = S
    CSLOT = 16384; CNST = 14; CB = 65536
    if diag: S.add("  s_memtime s[34:35]\n  s_waitcnt lgkmcnt(0)")
    CW = 6
    CX, CH, CO, CE, CF = 24, 25, 26, 27, 28
    CT = 32
    CACC = 96
    SEL = 40
    TO = [2, 3, 4, 5, 6, 7, 0, 1]
    def cacc(j, n): return CACC + (j*4+n)*4
    cpend = []
    def cxreg(st, ks, n): return CXR + (((st % P)*2+ks)*4+n)*4
    def cdma(st, n):
        C.add(f"  s_add_u32 m0, s18, {(st%P)*CSLOT + n*1024}")
        cpend.append((f"  buffer_load_dwordx4 v{CW+n}, s[4:7], s16 offen lds", ('CW', st, n)))
    def cxload(st, ks, n):
        C.add(f"  buffer_load_dwordx4 {ar(cxreg(st,ks,n),4)}, v{CX}, s[12:15], s17 offen offset:{256*n} sc1", 'vm', ('CX', st, ks, n))
        if n == 3: C.add(f"  s_add_u32 s17, s17, {28*32768 if (2*st+ks) % 4 < 3 else (2-84)*32768}")
    def cflush():
        while cpend:
            t, tag = cpend.pop(0)
            C.add(t, 'vm', tag)
            if tag[2] == 3:
                C.add(f"  s_add_u32 s16, s16, {448*2048 if tag[1] % 2 == 0 else (16-448)*2048}")
                if tag[1] % P == P-1:
                    C.add(f"  s_xor_b32 s18, s18, {P*CSLOT}")
    def ctr2(st, ks, j, i, tag):
        r = AF + 4*(i % RING)
        for jj in range(2):
            off = (st%P)*CSLOT + (32*ks+4*jj)*256
            C.add(f"  ds_read_b64_tr_b16 {ar(r+2*jj,2)}, v{CT+j} offset:{off}", 'lg', tag + (jj,))
    def ctr(st, f): ctr2(st, f//8, TO[f % 8], f, ('CA', st, f))
    scal = f"""  s_lshr_b32 s53, s26, 3            ; kq
  s_and_b32 s27, s26, 7             ; ct
  s_mul_i32 s16, s53, {896*2048}    ; W soffset
  s_mul_i32 s17, s53, {112*32768}   ; X soffset
  s_lshl_b32 s18, s28, 12
  s_add_u32 s18, s18, {CB}          ; LDS dest base of this wave inside a slot
  s_lshl_b32 s29, s27, 8
  s_add_u32 s4, s92, s29
  s_addc_u32 s5, s93, 0
  s_sub_u32 s6, {3584*2048}, s29
  s_mov_b32 s7, 0x20000
  s_lshl_b32 s27, s27, 2
  s_add_u32 s27, s27, s53           ; 32-column block kept by this workgroup
  s_mul_i32 s73, s26, {NT*2*32768}
  s_add_u32 s76, s24, {XB_OFF}
  s_addc_u32 s77, s25, 0
  s_mov_b32 s78, {12<<20}
  s_mov_b32 s79, 0x20000
  s_lshl_b32 s80, s2, 2
  s_add_u32 s80, s80, s28
  s_lshl_b32 s82, s80, 6
  s_add_u32 s82, s82, {FLG_OFF-ZERO_OFF}   ; own flag
  s_xor_b32 s81, s80, 8
  s_mul_i32 s81, s81, 12288
  s_xor_b32 s58, s80, 16
  s_mul_i32 s58, s58, 12288
  s_add_u32 s58, s58, 4096
  s_xor_b32 s59, s80, 24
  s_mul_i32 s59, s59, 12288
  s_add_u32 s59, s59, 8192
  s_mul_i32 s80, s80, 12288         ; own slab
  s_add_u32 s52, s52, {CNT_OFF-ZERO_OFF}
  s_mov_b32 s56, s52
  s_lshl_b32 s57, s27, 17
  s_lshl_b32 s27, s27, 6
  s_add_u32 s84, s94, s27
  s_addc_u32 s85, s95, 0
  s_sub_u32 s86, {4<<20}, s27
  s_mov_b32 s87, 0x20000
  s_cmp_eq_u32 s28, 0
  s_cselect_b32 s62, {ZERO_SIZE}, 0
  s_mov_b32 s60, s64
  s_mov_b32 s61, s65
  s_mov_b32 s63, 0x20000""".split("\n")
    cwsetup = f"""  v_and_b32 v2, 63, v0
  v_lshrrev_b32 v3, 4, v2           ; g
  s_mul_i32 s29, s28, 112
  v_add_lshl_u32 v4, v3, s29, 11
  v_and_b32 v5, 1, v3
  v_and_b32 v3, 2, v3
  v_lshl_add_u32 v3, v3, 1, v5      ; q0 + 4 q1
  v_and_b32 v2, 15, v2
  v_xor_b32 v3, v3, v2
  v_lshl_add_u32 v{CW}, v3, 4, v4
  v_add_u32 v{CW+1}, {4*2048}, v{CW}
  v_xor_b32 v{CW+2}, 128, v{CW}
  v_add_u32 v{CW+2}, {8*2048}, v{CW+2}
  v_add_u32 v{CW+3}, {4*2048}, v{CW+2}""".split("\n")
    csetup = f"""  v_and_b32 v60, 63, v0
  v_lshrrev_b32 v61, 4, v60         ; g
  v_and_b32 v56, 1, v61
  v_and_b32 v63, 15, v60
  v_add_u32 v63, s3, v63            ; position
  v_lshrrev_b32 v57, 1, v61
  v_mul_u32_u24 v58, 14, v57
  v_add_lshl_u32 v58, v58, v56, 11
  v_add_lshl_u32 v{CX}, v58, v63, 4
  v_lshlrev_b32 v57, 11, v61
  v_add_lshl_u32 v{CH}, v57, v63, 4
  v_add_u32 v57, 1, v60
  v_lshlrev_b32 v57, 9, v57
  v_xor_b32 v{CF}, s82, v57
  v_and_b32 v{CO}, 0x603, v63
  v_bfe_u32 v57, v63, 2, 4
  v_lshl_or_b32 v{CO}, v57, 5, v{CO}
  v_bfe_u32 v57, v63, 6, 3
  v_lshl_or_b32 v{CO}, v57, 2, v{CO}
  v_lshlrev_b32 v{CO}, 11, v{CO}
  v_lshl_add_u32 v{CO}, v61, 4, v{CO}
  v_lshlrev_b32 v{CE}, 4, v60
  v_bfe_u32 v57, v60, 2, 2          ; r
  v_lshl_add_u32 v58, v61, 3, v57   ; 8g + r
  v_lshlrev_b32 v58, 8, v58
  v_and_b32 v59, 1, v57
  v_and_b32 v57, 2, v57
  v_lshl_add_u32 v59, v57, 1, v59   ; r0 + 4 r1
  v_lshl_add_u32 v59, v56, 3, v59   ; + 8 g0
  s_lshl_b32 s29, s53, 2
  v_xor_b32 v59, s29, v59           ; column quarter kept by this workgroup first
  v_and_b32 v57, 2, v60
  v_or_b32 v59, v59, v57            ; + 2 c1
  v_lshl_add_u32 v58, v59, 4, v58
  v_and_b32 v57, 1, v60
  v_lshl_add_u32 v{CT}, v57, 3, v58
  v_add_u32 v{CT}, {CB}, v{CT}""".split("\n")
    for j in range(1, 8):
        csetup.append(f"  v_xor_b32 v{CT+j}, {16*((j&1)+4*(j>>1))}, v{CT}")
    csetup += ["  v_mov_b32 v60, 0", "  v_mov_b32 v61, 1"]
    def bc(base, n): return vr(base + (n & ~1), 2), n & 1
    pre = [(0, 0, 0), (0, 1, 0), (1, 0, 0)]
    assert AHEAD == 3
    NH = 3 if order == 0 else 2
    seq = [(j, m, 0) for j in range(NH) for m in range(2)] + [(j, m, 1) for j in range(NH) for m in range(2)]
    nfirst = len(seq)
    for j in range(NH): seq += [(j, m, kk) for kk in (2, 3) for m in range(2)]
    for j in range(NH, NT): seq += [(j, m, kk) for kk in range(4) for m in range(2)]
    assert seq[:3] == pre and len(seq) == 56
    def ttr(i):
        j, m, kk = seq[i]
        r = AF + 4*(i % RING)
        for jj in range(2):
            off = (kk >> 1)*SLOT + m*MATB + (32*(kk & 1)+8*jj)*ROWB + 32*j
            S.add(f"  ds_read_b64_tr_b16 {ar(r+2*jj,2)}, v1 offset:{off}", 'lg', ('A', 14, i, jj))
    def epi(j, csG, csU):
        ops = [('lgw', ('CS', j))]
        for n in range(4):
            G = acc(j, 0, n); U = acc(j, 1, n); h = n & 1
            M, x = bc(12, n); K1, _ = bc(16, n); S2, _ = bc(20, n)
            if 4*j+n < NSC:
                for q in range(4): ops.append(f"  v_fmac_f32 v{G+q}, v{csG+q}, v{12+n}")
                for q in range(4): ops.append(f"  v_mul_f32 v{2+q}, v{G+q}, v{16+n}")
                for q in range(4):
                    ops.append(f"  v_exp_f32 v{2+q}, v{2+q}")
                    ops.append(f"  v_fmac_f32 v{U+q}, v{csU+q}, v{12+n}")
                for q in range(4): ops.append(f"  v_fma_f32 v{2+q}, v{2+q}, v{20+n}, v{20+n}")
                for q in range(4):
                    ops.append(f"  v_rcp_f32 v{2+q}, v{2+q}")
                    ops.append(f"  v_mul_f32 v{G+q}, v{G+q}, v{U+q}")
                for q in range(4): ops.append(f"  v_mul_f32 v{G+q}, v{G+q}, v{2+q}")
            else:
                for (R, cs) in ((G, csG), (U, csU)):
                    for q in range(2):
                        ops.append(f"  v_pk_fma_f32 {vr(R+2*q,2)}, {vr(cs+2*q,2)}, {M}, {vr(R+2*q,2)} op_sel:[0,{x},0] op_sel_hi:[1,{x},1]")
                    if R == G:
                        for q in range(2):
                            ops.append(f"  v_pk_mul_f32 {vr(2+2*q,2)}, {vr(G+2*q,2)}, {K1} op_sel:[0,{x}] op_sel_hi:[1,{x}]")
                        for q in range(4): ops.append(f"  v_exp_f32 v{2+q}, v{2+q}")
                for q in range(2):
                    ops.append(f"  v_pk_fma_f32 {vr(2+2*q,2)}, {vr(2+2*q,2)}, {S2}, {S2} op_sel:[0,{x},{x}] op_sel_hi:[1,{x},{x}]")
                for q in range(4): ops.append(f"  v_rcp_f32 v{2+q}, v{2+q}")
                for q in range(2): ops.append(f"  v_pk_mul_f32 {vr(G+2*q,2)}, {vr(G+2*q,2)}, {vr(U+2*q,2)}")
                for q in range(2): ops.append(f"  v_pk_mul_f32 {vr(G+2*q,2)}, {vr(G+2*q,2)}, {vr(2+2*q,2)}")
            if h == 0:
                ops.append(f"  v_cvt_pk_bf16_f32 v{G+3}, v{G+2}, v{G+3}")
                ops.append(f"  v_cvt_pk_bf16_f32 v{G+2}, v{G}, v{G+1}")
            else:
                ops.append(f"  v_cvt_pk_bf16_f32 v{G}, v{G}, v{G+1}")
                ops.append(f"  v_cvt_pk_bf16_f32 v{G+1}, v{G+2}, v{G+3}")
            if n < 2 and j < NT-1:
                ops.append(('lg', f"  ds_read_b128 {vr(U,4)}, v11 offset:{448*n+64*(j+1)}", ('CS', j+1) if n else None))
            if h == 1:
                ops.append(f"  s_nop 1\n  v_permlane16_swap_b32 v{G-2}, v{G}")
                ops.append(f"  v_permlane16_swap_b32 v{G-1}, v{G+1}")
                ops.append(('vm', f"  buffer_store_dwordx4 {vr(G-2,4)}, v10, s[12:15], s73 offen offset:{256*(n-1)} {'' if exp == 1 else 'sc1'}" if exp != 2 else "  s_nop 0", ('ST', j, n)))
        if j < NT-1: ops.append(f"  s_add_u32 s73, s73, {2*32768}")
        if j == 0: ops += csetup
        for JJ, off in ((JA, 0), (JB, 2048)):
            if j == JJ+LAG:
                ops += ([('vmw', ('ST', JJ, 3))] if exp != 3 else []) + ["  s_barrier" if exp != 4 else "  s_nop 0",
                        ('vm', f"  s_mov_b64 exec, 1\n  buffer_atomic_add v61, v60, s[60:63], s52 offen offset:{off} sc1\n  s_mov_b64 exec, -1", None)]
        if j == NT-1:
            ops.insert(1, ('vm', "  s_mov_b64 exec, 1\n  buffer_load_dword v62, v60, s[64:67], s56 offen sc1\n  s_mov_b64 exec, -1", ('PL',)))
            k = int(len(ops)*PPOS)
            while isinstance(ops[k], tuple) or not ops[k].startswith("  v_pk_fma_f32"): k += 1
            chk = [('vmw', ('PL',)), ("  s_memtime s[48:49]\n  s_waitcnt lgkmcnt(0)\n  s_mov_b32 s97, s48\n" if diag and not fine else "") + f"""  v_readfirstlane_b32 s29, v62
  s_cmp_lt_u32 s29, 8
  s_cbranch_scc1 L_{name}_spin1
L_{name}_ret1:""" + ("\n  s_memtime s[48:49]\n  s_waitcnt lgkmcnt(0)\n  s_mov_b32 s75, s48" if diag and not fine else "")]
            xl = [('cx', st, ks, n) for st in range(P) for ks in range(2) for n in range(4) if not (st == P-1 and ks == 1)]
            rest = ops[k:]; ops = ops[:k] + chk
            step = max(1, len(rest)//(len(xl)+1))
            while rest or xl:
                if xl: ops.append(xl.pop(0))
                ops += rest[:step]; rest = rest[step:]
        return ops
    def put(o):
        if isinstance(o, str): S.add(o)
        elif o[0] == 'lg': S.add(o[1], 'lg', o[2])
        elif o[0] == 'vm': S.add(o[1], 'vm', o[2])
        elif o[0] == 'lgw': S.wait(lg=o[1])
        elif o[0] == 'vmw': S.wait(vm=o[1])
        elif o[0] == 'cdma': cdma(o[1], o[2]); S.add("  s_nop 0"); cflush()
        elif o[0] == 'cx': cxload(o[1], o[2], o[3])
    S.add("  v_mov_b32 v1, v9")
    q0 = []
    for n in range(4): q0.append(('x', n))
    for n in range(4): q0.append(('vm', f"  buffer_load_dword v{28+n}, v26, s[64:67], 0 offen offset:{64*n} sc1", ('Q', n)))
    q0 += scal + cwsetup
    q0 += [('vmw', ('Q', 3)), f"""  v_min_u32 v2, v28, v29
  v_min3_u32 v2, v2, v30, v31
  v_cmp_eq_u32 vcc, 0, v2
  s_cbranch_vccnz L_{name}_spin0
L_{name}_ret0:"""]
    for n in range(4):
        q0 += [f"  v_and_b32 v2, 0xffff0000, v{28+n}", f"  v_lshlrev_b32 v{12+n}, 16, v{28+n}", f"  v_rcp_f32 v{16+n}, v2", f"  v_mul_f32 v{20+n}, v2, v2",
               f"  v_xor_b32 v{12+n}, 0x80000000, v{12+n}"]
    q0 += ["  v_mov_b32 v11, v27", ('lg', "  ds_read_b128 v[24:27], v11", None), ('lg', "  ds_read_b128 v[28:31], v11 offset:448", ('CS', 0))]
    q0 += [f"  v_mul_f32 v{16+n}, 0xbfb8aa3b, v{16+n}" for n in range(4)]
    ready = list(q0)
    delayed = []
    cs = (24, 28); started = [False]
    early = [(st, n) for st in range(P) for n in range(4)]
    left = {j: 8 for j in range(NT)}
    for i, (j, m, kk) in enumerate(seq):
        if i + AHEAD == nfirst:
            S.wait(vm=('W', 15, NT-1))
            S.add("  s_barrier")
        for n in range(4):
            if n == 0:
                S.wait(lg=('A', 14, i, 1), vm=('X', 14 + (kk >> 1), kk & 1, 3))
            c = acc(j, m, n)
            S.add(f"  v_mfma_f32_16x16x32_bf16 {vr(c,4)}, {ar(AF+4*(i%RING),4)}, {ar(xreg(kk>>1,kk&1,n),4)}, {vr(c,4)}")
            if n == 0 and i + AHEAD < 56: ttr(i + AHEAD)
            cflush()
            if n == 2 and i >= D0 and (i - D0) % DS == 0 and early: cdma(*early.pop(0))
            for d in delayed: d[0] -= 1
            while delayed and delayed[0][0] <= 0:
                ready += delayed.pop(0)[1]; started[0] = True
            k = 0
            kmax = (RATE[n] if isinstance(RATE, tuple) else (RATE if n else RATE-1)) if started[0] else (2 if n in (1, 2) or i == 0 else 1)
            while ready and k < kmax:
                if isinstance(ready[0], str) and 'v_pk_' in ready[0]: break
                o = ready.pop(0)
                if isinstance(o, tuple) and o[0] == 'x': xload(15, 1, o[1])
                else: put(o)
                if not (isinstance(o, tuple) and o[0] in ('lgw', 'vmw')): k += 1
        left[j] -= 1
        if left[j] == 0:
            delayed.append([8, epi(j, *cs)])
            cs = (acc(j, 1, 0), acc(j, 1, 1))
    if diag: S.add("  s_memtime s[36:37]\n  s_waitcnt lgkmcnt(0)")
    assert not early and not cpend
    S.add("  s_nop 7")
    for d in delayed: ready += d[1]
    for o in ready: put(o)
    if diag: S.add("  s_memtime s[38:39]\n  s_waitcnt lgkmcnt(0)")
    S.wait(vm=('CW', 0, 3))
    S.add("  s_barrier")
    for f in range(AHEAD): ctr(0, f)
    if JA == 1:
        C.add("  s_mov_b64 exec, 1\n  buffer_load_dword v62, v60, s[64:67], s56 offen offset:2048 sc1\n  s_mov_b64 exec, -1", 'vm', None)
    C.add("  s_mov_b32 s19, 0")
    if diag: S.add("  s_memtime s[48:49]\n  s_waitcnt lgkmcnt(0)\n  s_mov_b32 s96, s48")
    for st in range(CNST-P):
        if st % P == 0:
            C.mark(('cbody', st//P))
            C.add(f"  s_branch L_{name}_hook\nL_{name}_ret2:")
        acts = {}
        for ks in range(2):
            s2, k2 = (st+P-1, 1) if ks == 0 else (st+P, 0)
            for n in range(4): acts.setdefault((8*ks+n, 1), []).append(('x', s2, k2, n))
            acts.setdefault((8*ks+4, 1), []).append(('d', st+P, 2*ks))
            acts.setdefault((8*ks+6, 1), []).append(('d', st+P, 2*ks+1))
        for f in range(16):
            ks, jj_ = divmod(f, 8); j = TO[jj_]
            fa = f + AHEAD
            ring = AF + 4*(f % RING)
            if f == 8 and st % P == 0: C.add(f"L_{name}_cmid:")
            if fa == 16:
                C.wait(vm=('CW', st+1, 3))
                C.add("  s_barrier")
                if st % P == P-1:
                    for q in range(8): C.add(f"  v_xor_b32 v{CT+q}, {P*CSLOT}, v{CT+q}")
            for n in range(4):
                if n == 0:
                    C.wait(lg=('CA', st, f, 1), vm=(('CX', st, ks, 3) if jj_ == 0 else None))
                c = cacc(j, n)
                C.add(f"  v_mfma_f32_16x16x32_bf16 {vr(c,4)}, {ar(ring,4)}, {ar(cxreg(st,ks,n),4)}, {vr(c,4)}")
                if n == 0:
                    if fa < 16: ctr(st, fa)
                    else: ctr(st+1, fa-16)
                cflush()
                for act in acts.get((f, n), []):
                    if act[0] == 'x': cxload(act[1], act[2], act[3])
                    else: cdma(act[1], act[2])
        assert not cpend
        if st % P == P-1:
            C.add(f"  s_add_u32 s19, s19, 1\n  s_cmp_lt_u32 s19, {CNST//P-1}\n  s_cbranch_scc1 L_{name}_cloop")
    C.mark('ctail')
    if diag: C.add("  s_memtime s[50:51]\n  s_waitcnt lgkmcnt(0)")
    L0 = CNST-2
    cseq = [(kk, t) for kk in (0, 1) for t in (2, 3, 4, 5)]
    cfirst = len(cseq)
    cseq += [(kk, t) for d in (1, 2) for kk in (2, 3) for t in (2*d, 2*d+1)]
    cseq += [(kk, t) for d in (3, 0) for kk in range(4) for t in (2*d, 2*d+1)]
    ready = [('cx', L0+1, 1, n) for n in range(4)]
    ready += [('vm', f"  buffer_load_dwordx4 {ar(HA+4*n,4)}, v{CH}, s[8:11], s57 offen offset:{256*n}", ('H', n)) for n in range(4)]
    ready += f"""  v_and_b32 v12, 15, v0             ; row
  v_bfe_u32 v13, v0, 4, 2           ; g
  v_and_b32 v14, 1, v0
  v_lshlrev_b32 v14, 4, v14
  v_mov_b32 v15, 0x3f80
  v_lshlrev_b32 v14, v14, v15       ; 1.0 in the half of this row
  v_lshrrev_b32 v15, 2, v12
  v_cmp_eq_u32 s[20:21], v13, v15
  v_bfe_u32 v16, v12, 1, 1
  v_mov_b32 v{SEL}, 0
  v_mov_b32 v{SEL+1}, 0
  v_cndmask_b32 v17, 0, v14, s[20:21]
  v_cmp_eq_u32 s[20:21], 0, v16
  v_mov_b32 v{SEL+4}, 0
  v_mov_b32 v{SEL+5}, 0
  v_cndmask_b32 v{SEL+2}, 0, v17, s[20:21]
  v_cndmask_b32 v{SEL+3}, v17, 0, s[20:21]
  v_lshrrev_b32 v15, 3, v12
  v_lshlrev_b32 v15, 1, v15
  v_cmp_eq_u32 s[20:21], v13, v15
  v_add_u32 v15, 1, v15
  v_cmp_eq_u32 s[22:23], v13, v15
  v_bfe_u32 v16, v12, 1, 2
  v_cndmask_b32 v17, 0, v14, s[20:21]
  v_cndmask_b32 v18, 0, v14, s[22:23]""".split("\n")
    for q in range(4):
        ready += [f"  v_cmp_eq_u32 s[20:21], {q}, v16", "  s_nop 1", f"  v_cndmask_b32 v{SEL+6+q}, 0, v17, s[20:21]", f"  v_cndmask_b32 v{SEL+10+q}, 0, v18, s[20:21]"]
    def send(d):
        ops = []
        for n in range(4):
            t0, t1 = cacc(2*d, n), cacc(2*d+1, n)
            ops += [f"  v_cvt_pk_bf16_f32 v{t0}, v{t0}, v{t0+1}", f"  v_cvt_pk_bf16_f32 v{t0+1}, v{t0+2}, v{t0+3}",
                    f"  v_cvt_pk_bf16_f32 v{t0+2}, v{t1}, v{t1+1}", f"  v_cvt_pk_bf16_f32 v{t0+3}, v{t1+2}, v{t1+3}",
                    ('vm', f"  buffer_store_dwordx4 {vr(t0,4)}, v{CE}, s[76:79], s80 offen offset:{1024*n} sc1", ('XS', d, n))]
        ops.append("  s_add_u32 s80, s80, 4096")
        return ops
    delayed = []; left = {d: 8 for d in range(4)}
    for i, (kk, t) in enumerate(cseq):
        if i + AHEAD == cfirst:
            C.wait(vm=('CW', L0+1, 3))
            C.add("  s_barrier")
        if i == len(cseq)-4:
            C.wait(vm=('H', 3))
            for n in range(4):
                for tt in range(2):
                    C.add(f"  v_mfma_f32_16x16x32_bf16 {vr(cacc(tt,n),4)}, {vr(SEL+6+4*tt,4)}, {ar(HA+4*n,4)}, {vr(cacc(tt,n),4)}")
        for n in range(4):
            if n == 0:
                C.wait(lg=('CA', L0, i, 1), vm=('CX', L0 + (kk >> 1), kk & 1, 3))
            c = cacc(t, n)
            C.add(f"  v_mfma_f32_16x16x32_bf16 {vr(c,4)}, {ar(AF+4*(i%RING),4)}, {ar(cxreg(L0+(kk>>1),kk&1,n),4)}, {vr(c,4)}")
            if n == 0 and i + AHEAD < len(cseq):
                k2, t2 = cseq[i+AHEAD]
                ctr2(L0 + (k2 >> 1), k2 & 1, t2, i+AHEAD, ('CA', L0, i+AHEAD))
            for dd in delayed: dd[0] -= 1
            while delayed and delayed[0][0] <= 0: ready += delayed.pop(0)[1]
            k = 0
            while ready and k < (2 if n else 0):
                put(ready.pop(0)); k += 1
        left[t//2] -= 1
        if left[t//2] == 0 and t//2 > 0: delayed.append([8, send(t//2)])
    assert not ready and not delayed
    C.wait(vm=('XS', 3, 3))
    C.add(f"""  s_mov_b64 exec, 1
  buffer_store_dword v61, v60, s[64:67], s82 offen sc1
  s_mov_b64 exec, 7
  s_mov_b32 s20, 0
L_{name}_poll3:
  buffer_load_dword v12, v{CF}, s[64:67], 0 offen sc1
  s_waitcnt vmcnt(0)
  v_cmp_eq_u32 vcc, 0, v12
  s_cbranch_vccz L_{name}_go3
  s_add_u32 s20, s20, 1
  s_cmp_gt_u32 s20, 0x100000
  s_cbranch_scc1 L_{name}_go3
  s_sleep {sleep}
  s_branch L_{name}_poll3
L_{name}_go3:
  s_mov_b64 exec, -1""")
    if diag: C.add("  s_memtime s[98:99]")
    for n in range(4):
        for d in range(3):
            C.add(f"  buffer_load_dwordx4 {ar(RA+4*(3*n+d),4)}, v{CE}, s[76:79], s{(81,58,59)[d]} offen offset:{1024*n} sc1", 'vm', ('XR', n, d))
    def outp(n):
        Pp = 12 + 4*(n % 2)
        A = cacc(0, n); B = cacc(1, n)
        C.add(f"""  v_cvt_pk_bf16_f32 v{Pp}, v{A}, v{A+1}
  v_cvt_pk_bf16_f32 v{Pp+1}, v{A+2}, v{A+3}
  v_cvt_pk_bf16_f32 v{Pp+2}, v{B}, v{B+1}
  v_cvt_pk_bf16_f32 v{Pp+3}, v{B+2}, v{B+3}
  s_mov_b32 s16, {n*128*2048}
  s_nop 0
  v_permlane16_swap_b32 v{Pp}, v{Pp+2}
  v_permlane16_swap_b32 v{Pp+1}, v{Pp+3}""")
        C.add(f"  buffer_store_dwordx4 {vr(Pp,4)}, v{CO}, s[84:87], s16 offen {outfl}", 'vm', None)
    for n in range(4):
        for d in range(3):
            C.wait(vm=('XR', n, d))
            C.add(f"  v_mfma_f32_16x16x32_bf16 {vr(cacc(0,n),4)}, {vr(SEL+2,4)}, {ar(RA+4*(3*n+d),4)}, {vr(cacc(0,n),4)}")
            C.add(f"  v_mfma_f32_16x16x32_bf16 {vr(cacc(1,n),4)}, {vr(SEL,4)}, {ar(RA+4*(3*n+d),4)}, {vr(cacc(1,n),4)}")
        if n > 0:
            C.add("  s_nop 1"); outp(n-1)
    C.add("  s_nop 3"); outp(3)
    C.mark('end')
    segs = split_marks(C.resolve())
    emit(a, segs[0][1])
    a("  .p2align 6")
    a(f"L_{name}_loop:")
    emit(a, merge_iters([s[1] for s in segs if s[0] and s[0][0] == 'body']))
    a(f"L_{name}_go:")
    emit(a, [s[1] for s in segs if s[0] == 'tail'][0])
    cb = merge_iters([s[1] for s in segs if s[0] and s[0][0] == 'cbody'])
    mid = cb.index(f"L_{name}_cmid:")
    import re
    first = [re.sub(r", v\[\d+:\d+\]$", ", 0", x) if isinstance(x, str) and x.startswith("  v_mfma") else x for x in cb[1:mid]]
    emit(a, first)
    a(f"  s_branch L_{name}_cmid")
    a("  .p2align 6")
    a(f"L_{name}_cloop:")
    emit(a, cb)
    emit(a, [s[1] for s in segs if s[0] == 'ctail'][0])
    if diag:
        a("  s_waitcnt vmcnt(0)\n  s_memtime s[100:101]")
        diag_store(a, name, dbg_idx, [30, 32, 97, 75, 34, 36, 38, 96, 50, 98, 100] if fine else [30, 32, 34, 36, 97, 75, 38, 96, 50, 98, 100], 24)
    a(f"L_{name}_end:\n  s_endpgm")
    a(f"L_{name}_fin:")
    for q, r in enumerate((12, 18, 22, 24)): a(f"  ds_read_b64 {vr(r,2)}, v17 offset:{64*q}")
    a("""  s_cmp_eq_u32 s28, 0
  s_cselect_b32 s66, 8192, 0
  s_waitcnt lgkmcnt(0)
  v_add_f32 v12, v12, v18
  v_add_f32 v13, v13, v19
  v_add_f32 v22, v22, v24
  v_add_f32 v23, v23, v25
  v_add_f32 v12, v12, v22
  v_add_f32 v13, v13, v23""")
    ln_pack(a, 12, 13, 18, 15)
    a(f"""  s_mov_b64 exec, 0xff
  buffer_store_dword v18, v21, s[64:67], 0 offen sc1
  s_mov_b64 exec, -1
  s_mov_b32 s66, {ZERO_SIZE}
  s_branch L_{name}_finret""")
    a(f"L_{name}_spin0:\n  s_mov_b32 s20, 0\nL_{name}_spin0l:\n  s_sleep 2")
    for n in range(4): a(f"  buffer_load_dword v{28+n}, v26, s[64:67], 0 offen offset:{64*n} sc1")
    a(f"""  s_waitcnt vmcnt(0)
  v_min_u32 v2, v28, v29
  v_min3_u32 v2, v2, v30, v31
  v_cmp_eq_u32 vcc, 0, v2
  s_cbranch_vccz L_{name}_ret0
  s_add_u32 s20, s20, 1
  s_cmp_gt_u32 s20, 0x100000
  s_cbranch_scc0 L_{name}_spin0l
  s_branch L_{name}_ret0""")
    for tagn, so, off, ret in ((1, 56, 0, 1), (2, 56, 2048, 2), (3, 55, 0, 2)):
        a(f"""L_{name}_spin{tagn}:
  s_mov_b32 s20, 0
  s_mov_b64 exec, 1
L_{name}_spin{tagn}l:
  buffer_load_dword v62, v60, s[64:67], s{so} offen offset:{off} sc1
  s_waitcnt vmcnt(0)
  v_readfirstlane_b32 s29, v62
  s_cmp_ge_u32 s29, 8
  s_cbranch_scc1 L_{name}_spin{tagn}x
  s_sleep {sleep}
  s_add_u32 s20, s20, 1
  s_cmp_gt_u32 s20, 0x100000
  s_cbranch_scc0 L_{name}_spin{tagn}l
L_{name}_spin{tagn}x:
  s_mov_b64 exec, -1
  s_branch L_{name}_ret{ret}""")
    assert JA in (1, 2) and JB >= JA+2 and JB >= 3
    NV = 12*P - 1
    a(f"""L_{name}_hook:
  s_cmp_lg_u32 s19, 1
  s_cbranch_scc1 L_{name}_h1
  s_add_u32 s54, s52, 4096
  s_add_u32 s55, s56, 4096
  s_mov_b64 exec, 1
  buffer_atomic_add v61, v60, s[60:63], s54 offen sc1
  s_mov_b64 exec, -1
L_{name}_h1:""")
    if JA >= 2:
        a(f"""  s_cmp_lg_u32 s19, {JA-1}
  s_cbranch_scc1 L_{name}_h2
  s_mov_b64 exec, 1
  buffer_load_dword v62, v60, s[64:67], s56 offen offset:2048 sc1
  s_mov_b64 exec, -1
L_{name}_h2:""")
    a(f"""  s_cmp_lg_u32 s19, {JA}
  s_cbranch_scc1 L_{name}_h3
  s_waitcnt vmcnt({NV})
  v_readfirstlane_b32 s29, v62
  s_cmp_lt_u32 s29, 8
  s_cbranch_scc1 L_{name}_spin2
L_{name}_h3:
  s_cmp_lg_u32 s19, {JB-1}
  s_cbranch_scc1 L_{name}_h4
  s_mov_b64 exec, 1
  buffer_load_dword v62, v60, s[64:67], s55 offen sc1
  s_mov_b64 exec, -1
L_{name}_h4:
  s_cmp_lg_u32 s19, {JB}
  s_cbranch_scc1 L_{name}_ret2
  s_waitcnt vmcnt({NV})
  v_readfirstlane_b32 s29, v62
  s_cmp_lt_u32 s29, 8
  s_cbranch_scc1 L_{name}_spin3
  s_branch L_{name}_ret2""")
    desc = kernel_desc(name, 256+nagpr, 102, 256)
    return a.text(), desc, f"; @launch kernel={name} grid=(256,1,1) block=(256,1,1) lds={RED+256}"
```

```python
import sys
from g2 import gen_g2
from ka import gen_a
from kb import gen_b
from ka8 import gen_a8
from kbc import gen_bc
from kbc2 import gen_bc2
from kbc3 import gen_bc3
try:
    from kc import gen_c
except ImportError:
    gen_c = None
def assemble(parts):
    out = [p[2] for p in parts]
    out.append('.amdgcn_target "amdgcn-amd-amdhsa--gfx950"')
    out += [p[0] for p in parts]
    out.append("  .fill 4096, 4, 0xbf800000")
    out += [p[1] for p in parts]
    return "\n".join(out) + "\n"
if __name__ == "__main__":
    diag = len(sys.argv) > 2 and sys.argv[2] == "diag"
    opts = eval(sys.argv[3]) if len(sys.argv) > 3 else {}
    oldc = opts.get('oldc', False)
    ao = dict(pfnext=('b_kernel','c_kernel')); ao.update(opts.get('a', {}))
    parts = [(gen_a if opts.get('olda') else gen_a8)(diag=diag, dbg_idx=0, **ao), gen_b(diag=diag, dbg_idx=1, **opts.get('b', {})),
             gen_g2(name="c_kernel", diag=diag, dbg_idx=2, perm=True, P=2) if oldc else gen_c(diag=diag, dbg_idx=2, **opts.get('c', {}))]
    if 'bc' in opts:
        ao['pfnext'] = opts.get('a', {}).get('pfnext', ('b_kernel', 'L_b_kernel_go'))
        parts = [gen_a8(diag=diag, dbg_idx=0, **ao), gen_bc(diag=diag, dbg_idx=1, **opts['bc'])]
    if 'bc2' in opts:
        ao['pfnext'] = opts.get('a', {}).get('pfnext', ('b_kernel', 'L_b_kernel_go'))
        parts = [gen_a8(diag=diag, dbg_idx=0, **ao), gen_bc2(diag=diag, dbg_idx=1, **opts['bc2'])]
    if 'bc3' in opts:
        ao['pfnext'] = opts.get('a', {}).get('pfnext', ('b_kernel', 'L_b_kernel_go'))
        parts = [gen_a8(diag=diag, dbg_idx=0, **ao), gen_bc3(diag=diag, dbg_idx=1, **opts['bc3'])]
    open(sys.argv[1], "w").write(assemble(parts))
```
